```python
import torch

def _softmax(x, axis=-1):
    return torch.softmax(x, dim=axis)
def _gelu(x):
    return torch.nn.functional.gelu(x, approximate="tanh")
def _silu(x):
    return torch.nn.functional.silu(x)
def _sigmoid(x):
    return torch.sigmoid(x)
def _layernorm(x, axis=-1, eps=1e-5):
    m = x.mean(dim=axis, keepdim=True)
    v = x.var(dim=axis, keepdim=True, unbiased=False)
    return (x - m) / torch.sqrt(v + eps)
def _scatter_add(tgt, idx, src, axis=0):
    return tgt.clone().index_add_(axis, idx, src)
def _segment_sum(src, seg, n):
    out = torch.zeros((n,) + src.shape[1:], dtype=src.dtype)
    return out.index_add_(0, seg, src)
def _pad(x, pw):
    flat = tuple(v for pair in reversed(pw) for v in pair)
    return torch.nn.functional.pad(x, flat)

kernel_name = 'parallel_sum__compressed_kv_cla__geglu_ffn__decode'

def setup_inputs():

    _w = (lambda a: (lambda t: t.to(torch.bfloat16) if t.is_floating_point() else t)(torch.as_tensor(a)))
    def _A_setup():
        B, H, Sq, Sk, D, M = 8, 32, 1, 4096, 128, 512
        Dc = 4 * D
        return {
            "x": _w((lambda *s: torch.randn(*s, dtype=torch.bfloat16) * 0.05)(B, Sq, M)),
            "c_kv": _w((lambda *s: torch.randn(*s, dtype=torch.bfloat16) * 1.6)(B, Sk, Dc)),
            "w_q": _w((lambda *s: torch.randn(*s, dtype=torch.bfloat16) * 3.2)(M, H, D) * (M ** -0.5)),
            "w_uk": _w((lambda *s: torch.randn(*s, dtype=torch.bfloat16) * 3.2)(Dc, H, D) * (Dc ** -0.5)),
            "w_uv": _w((lambda *s: torch.randn(*s, dtype=torch.bfloat16) * 1.6)(Dc, H, D) * (Dc ** -0.5)),
            "w_o": _w((lambda *s: torch.randn(*s, dtype=torch.bfloat16) * 1.6)(H, D, M) * ((H * D) ** -0.5)),
        }
    _A_in = _A_setup()

    def _B_setup():
        B, S, D, F = 8, 1, 512, 1376
        return {
            "x": _w((lambda *s: torch.randn(*s, dtype=torch.bfloat16) * 0.05)(B, S, D)),
            "w_gate": _w((lambda *s: torch.randn(*s, dtype=torch.bfloat16) * 0.1)(D, F)),
            "w_up": _w((lambda *s: torch.randn(*s, dtype=torch.bfloat16) * 0.1)(D, F)),
            "w_down": _w((lambda *s: torch.randn(*s, dtype=torch.bfloat16) * 0.1)(F, D)),
        }
    _B_in = _B_setup()

    return {
        "A_x": _A_in["x"],
        "A_c_kv": _A_in["c_kv"],
        "A_w_q": _A_in["w_q"],
        "A_w_uk": _A_in["w_uk"],
        "A_w_uv": _A_in["w_uv"],
        "A_w_o": _A_in["w_o"],
        "B_x": _B_in["x"],
        "B_w_gate": _B_in["w_gate"],
        "B_w_up": _B_in["w_up"],
        "B_w_down": _B_in["w_down"],
    }

def reference(A_x, A_c_kv, A_w_q, A_w_uk, A_w_uv, A_w_o, B_x, B_w_gate, B_w_up, B_w_down):
    def _A_ref(x, c_kv, w_q, w_uk, w_uv, w_o):
        B, Sq, M = x.shape[0], x.shape[1], x.shape[2]
        Sk = c_kv.shape[1]
        H, D = w_q.shape[1], w_q.shape[2]
        q = torch.einsum("bqm,mhd->bhqd", x, w_q)
        k = torch.einsum("bkc,chd->bhkd", c_kv, w_uk)
        v = torch.einsum("bkc,chd->bhkd", c_kv, w_uv)
        scores = torch.einsum("bhqd,bhkd->bhqk", q, k) * (D ** -0.5)
        off = Sk - Sq
        qi = torch.arange(Sq)[:, None]
        kj = torch.arange(Sk)[None, :]
        cmask = kj <= (qi + off)
        scores = torch.where(cmask[None, None], scores, -1e9)
        p = _softmax(scores, axis=-1)
        ctx = torch.einsum("bhqk,bhkd->bhqd", p, v)
        return torch.einsum("bhqd,hdm->bqm", ctx, w_o)

    def _B_ref(x, w_gate, w_up, w_down):
        return (_gelu(x @ w_gate) * (x @ w_up)) @ w_down

    x = A_x
    xn = _layernorm(x, axis=-1)
    return x + _A_ref(xn, A_c_kv, A_w_q, A_w_uk, A_w_uv, A_w_o) + _B_ref(xn, B_w_gate, B_w_up, B_w_down)
```

```python
import sys
L = []
def e(s=""):
    L.append(s)
def c(s):
    L.append("    ; " + s)
def I(s):
    L.append("    " + s)

QABS = 0x0
HH   = 0x40000
STATS= 0x50000
OPART= 0x100000
OUTP = 0x1100000
WSSZ = 0x1500000

SC = (128 ** -0.5) * 1.4426950408889634
import struct
def f2u(x):
    return struct.unpack("<I", struct.pack("<f", x))[0]

def srd(d, base_lo, base_hi, nbytes):
    I(f"s_mov_b32 s{d}, s{base_lo}")
    I(f"s_and_b32 s{d+1}, s{base_hi}, 0xffff")
    I(f"s_mov_b32 s{d+2}, {nbytes}")
    I(f"s_mov_b32 s{d+3}, 0x00020000")

def header():
    e("; Kernarg layout for this problem (104 bytes, ptrs only, base s[0:1]):")
    e("; @launch kernel=k1_kernel grid=(256,1,1) block=(256,1,1) lds=147456")
    e("; @launch kernel=k2_kernel grid=(256,1,1) block=(256,1,1) lds=140800")
    e("; @launch kernel=k3_kernel grid=(256,1,1) block=(256,1,1) lds=156672")
    e("; @launch kernel=k4_kernel grid=(64,1,1) block=(256,1,1) lds=4096")
    e('.amdgcn_target "amdgcn-amd-amdhsa--gfx950"')
    e(".text")

def kstart(name):
    e(f".globl {name}")
    e(".p2align 8")
    e(f".type {name},@function")
    e(f"{name}:")

def kdesc(name, vgpr, sgpr=102):
    e(f".amdhsa_kernel {name}")
    e(f"  .amdhsa_next_free_vgpr {vgpr}")
    e(f"  .amdhsa_next_free_sgpr {sgpr}")
    e(f"  .amdhsa_accum_offset {(vgpr+3)//4*4}")
    e("  .amdhsa_group_segment_fixed_size 0")
    e("  .amdhsa_kernarg_size 104")
    e("  .amdhsa_user_sgpr_count 2")
    e("  .amdhsa_user_sgpr_kernarg_segment_ptr 1")
    e("  .amdhsa_system_sgpr_workgroup_id_x 1")
    e(".end_amdhsa_kernel")

def swz_reduce32(v, tmp, op):
    for off in (0x041F, 0x081F, 0x101F, 0x201F, 0x401F):
        I(f"ds_swizzle_b32 v{tmp}, v{v} offset:{off:#x}")
        I("s_waitcnt lgkmcnt(0)")
        I(f"{op} v{v}, v{v}, v{tmp}")

def k1():
    XN = 131072; XNS = 1040
    QB = XN + 8 * XNS
    QS = 272
    RED = QB + 16 * QS
    RED = 32768
    kstart("k1_kernel")
    I("s_cmp_ge_u32 s2, 256")
    I("s_cbranch_scc1 K1_END")
    I("s_load_dwordx2 s[4:5], s[0:1], 0")
    I("s_load_dwordx4 s[8:11], s[0:1], 16")
    I("s_load_dwordx4 s[12:15], s[0:1], 56")
    I("s_load_dwordx2 s[6:7], s[0:1], 96")
    I("s_and_b32 s16, s2, 31")
    I("s_lshr_b32 s17, s2, 5")
    I("v_lshrrev_b32 v1, 6, v0")
    I("v_and_b32 v2, 63, v0")
    I("s_nop 0")
    I("v_readfirstlane_b32 s18, v1")
    I("s_waitcnt lgkmcnt(0)")
    srd(20, 4, 5, 8192)
    srd(24, 8, 9, 4194304)
    srd(28, 10, 11, 4194304)
    srd(32, 12, 13, 1409024)
    srd(36, 14, 15, 1409024)
    srd(40, 6, 7, WSSZ)
    c("x loads for LN: thread t: b=t>>5, seg=t&31 -> 32B")
    I("v_lshlrev_b32 v3, 5, v0")
    I("buffer_load_dwordx4 v[8:11], v3, s[20:23], 0 offen")
    I("buffer_load_dwordx4 v[12:15], v3, s[20:23], 0 offen offset:16")
    c("w_q DMA : lane: rowsub=l>>4, p=l&15")
    I("v_lshrrev_b32 v4, 4, v2")
    I("v_and_b32 v5, 15, v2")
    I("v_lshlrev_b32 v6, 1, v4")
    I("v_xor_b32 v6, v6, v5")
    I("v_lshlrev_b32 v6, 4, v6")
    I("v_lshl_add_u32 v6, v4, 13, v6")
    I("v_xor_b32 v7, 0x80, v6")
    I("s_lshl_b32 s19, s18, 7")
    I("s_lshl_b32 s44, s19, 13")
    I("s_lshl_b32 s45, s16, 8")
    I("s_add_u32 s44, s44, s45")
    I("s_lshl_b32 s45, s19, 8")
    I("s_mov_b32 m0, s45")
    for i in range(32):
        I(f"buffer_load_dwordx4 v{6 + (i & 1)}, s[24:27], s44 offen lds")
        if i != 31:
            I("s_add_u32 m0, m0, 1024")
            I("s_add_u32 s44, s44, 32768")
    c("w_uk fragments: c = 64j+16w+(l&15), addr=(c*32+h)*256 + ks*64 + g*16")
    I("s_lshl_b32 s45, s17, 6")
    I("s_lshl_b32 s46, s18, 4")
    I("s_add_u32 s45, s45, s46")
    I("s_lshl_b32 s45, s45, 13")
    I("s_lshl_b32 s46, s16, 8")
    I("s_add_u32 s45, s45, s46")
    I("v_lshlrev_b32 v16, 13, v5")
    I("v_lshl_add_u32 v16, v4, 4, v16")
    for ks in range(4):
        I(f"buffer_load_dwordx4 v[{20+4*ks}:{23+4*ks}], v16, s[28:31], s45 offen offset:{ks*64}")
    c("FFN loads to regs (wg<86): v[36:67]")
    I("s_cmp_ge_u32 s2, 86")
    I("s_cbranch_scc1 K1_NOFFN0")
    I("v_lshrrev_b32 v17, 1, v0")
    I("s_mov_b32 s46, 2752")
    I("v_mul_lo_u32 v17, v17, s46")
    I("v_and_b32 v18, 1, v0")
    I("v_lshl_add_u32 v17, v18, 4, v17")
    I("s_lshl_b32 s46, s2, 5")
    for i in range(4):
        I(f"buffer_load_dwordx4 v[{36+4*i}:{39+4*i}], v17, s[32:35], s46 offen")
        I(f"buffer_load_dwordx4 v[{52+4*i}:{55+4*i}], v17, s[36:39], s46 offen")
        if i != 3:
            I(f"s_add_u32 s46, s46, {128*2752}")
    e("K1_NOFFN0:")
    c("LN : wait for x (first two loads). conservative: count = everything issued after")
    I("s_waitcnt vmcnt(36)")
    for k in range(8):
        I(f"v_lshlrev_b32 v{70+2*k}, 16, v{8+k}")
        I(f"v_and_b32 v{71+2*k}, 0xffff0000, v{8+k}")
    I("v_add_f32 v86, v70, v71")
    for k in range(2, 16):
        I(f"v_add_f32 v86, v86, v{70+k}")
    swz_reduce32(86, 87, "v_add_f32")
    I("v_mul_f32 v86, 0x3b000000, v86")
    I("v_sub_f32 v88, v70, v86")
    I("v_mul_f32 v89, v88, v88")
    for k in range(1, 16):
        I(f"v_sub_f32 v88, v{70+k}, v86")
        I("v_fmac_f32 v89, v88, v88")
    swz_reduce32(89, 87, "v_add_f32")
    I("v_mul_f32 v89, 0x3b000000, v89")
    I("v_cvt_pk_bf16_f32 v90, v86, v89")
    I("v_lshlrev_b32 v86, 16, v90")
    I("v_and_b32 v89, 0xffff0000, v90")
    I(f"v_add_f32 v89, {f2u(1e-5):#x}, v89")
    I("v_cvt_pk_bf16_f32 v89, v89, v89")
    I("v_lshlrev_b32 v89, 16, v89")
    I("v_sqrt_f32 v89, v89")
    I("s_nop 0")
    I("v_cvt_pk_bf16_f32 v89, v89, v89")
    I("v_lshlrev_b32 v89, 16, v89")
    I("v_rcp_f32 v89, v89")
    for k in range(16):
        I(f"v_sub_f32 v{70+k}, v{70+k}, v86")
    for k in range(8):
        I(f"v_cvt_pk_bf16_f32 v{90+k}, v{70+2*k}, v{71+2*k}")
    for k in range(8):
        I(f"v_lshlrev_b32 v{70+2*k}, 16, v{90+k}")
        I(f"v_and_b32 v{71+2*k}, 0xffff0000, v{90+k}")
    for k in range(16):
        I(f"v_mul_f32 v{70+k}, v{70+k}, v89")
    for k in range(8):
        I(f"v_cvt_pk_bf16_f32 v{92+k}, v{70+2*k}, v{71+2*k}")
    I("v_lshrrev_b32 v87, 5, v0")
    I(f"v_mul_u32_u24 v87, {XNS}, v87")
    I("v_and_b32 v88, 31, v0")
    I("v_lshl_add_u32 v87, v88, 5, v87")
    I(f"v_add_u32 v87, {XN}, v87")
    I("ds_write_b128 v87, v[92:95]")
    I("ds_write_b128 v87, v[96:99] offset:16")
    c("address regs for A (xn frags): XN + (l&7)*1040 + g*8")
    I("v_and_b32 v70, 7, v2")
    I(f"v_mul_u32_u24 v70, {XNS}, v70")
    I("v_lshl_add_u32 v70, v4, 3, v70")
    I(f"v_add_u32 v70, {XN}, v70")
    c("tr addr: row0=4g+(i>>2); seg=(2w+nt)^(4*(g&1)+(i>>2)); + (i&3)*8")
    I("v_lshrrev_b32 v71, 2, v5")
    I("v_lshl_add_u32 v72, v4, 2, v71")
    I("v_and_b32 v73, 7, v72")
    I("s_lshl_b32 s46, s18, 1")
    I("v_xor_b32 v73, s46, v73")
    I("v_lshlrev_b32 v74, 8, v72")
    I("v_lshl_add_u32 v74, v73, 5, v74")
    I("v_and_b32 v75, 3, v5")
    I("v_lshl_add_u32 v74, v75, 3, v74")
    I("v_xor_b32 v75, 32, v74")
    I("v_add_u32 v76, 0x10000, v74")
    I("v_add_u32 v77, 0x10000, v75")
    I("s_waitcnt vmcnt(0) lgkmcnt(0)")
    I("s_barrier")
    c("q MFMAs; acc v[80:83] nt0, v[84:87] nt1")
    for r in range(8):
        I(f"v_mov_b32 v{80+r}, 0")
    for ch in range(4):
        for k4 in range(4):
            ks = ch * 4 + k4
            I(f"ds_read2_b64 v[{100+4*k4}:{103+4*k4}], v70 offset0:{ks*8} offset1:{ks*8+4}")
            for nt in range(2):
                base = (74 + nt) if ks < 8 else (76 + nt)
                off = (ks & 7) * 8192
                d = 116 + (k4 * 2 + nt) * 4
                I(f"ds_read_b64_tr_b16 v[{d}:{d+1}], v{base} offset:{off}")
                I(f"ds_read_b64_tr_b16 v[{d+2}:{d+3}], v{base} offset:{off+4096}")
        I("s_waitcnt lgkmcnt(0)")
        for k4 in range(4):
            for nt in range(2):
                d = 116 + (k4 * 2 + nt) * 4
                I(f"v_mfma_f32_16x16x32_bf16 v[{80+4*nt}:{83+4*nt}], v[{100+4*k4}:{103+4*k4}], v[{d}:{d+3}], v[{80+4*nt}:{83+4*nt}]")
    c("write q bf16 to LDS QB[row=4g+r][d=32w+16nt+i]")
    I(f"v_mul_u32_u24 v88, {4*QS}, v4")
    I("v_lshl_add_u32 v88, v5, 1, v88")
    I("s_lshl_b32 s46, s18, 6")
    I(f"s_add_u32 s46, s46, {QB}")
    I("v_add_u32 v88, s46, v88")
    I("s_nop 7")
    for nt in range(2):
        I(f"v_cvt_pk_bf16_f32 v{90+2*nt}, v{80+4*nt}, v{81+4*nt}")
        I(f"v_cvt_pk_bf16_f32 v{91+2*nt}, v{82+4*nt}, v{83+4*nt}")
    for nt in range(2):
        I(f"ds_write_b16 v88, v{90+2*nt} offset:{nt*32}")
        I(f"ds_write_b16_d16_hi v88, v{90+2*nt} offset:{nt*32+QS}")
        I(f"ds_write_b16 v88, v{91+2*nt} offset:{nt*32+2*QS}")
        I(f"ds_write_b16_d16_hi v88, v{91+2*nt} offset:{nt*32+3*QS}")
    I("s_waitcnt lgkmcnt(0)")
    I("s_barrier")
    c("FFN regs -> LDS [0,32768)")
    I("s_cmp_ge_u32 s2, 86")
    I("s_cbranch_scc1 K1_NOFFN1")
    I("v_lshlrev_b32 v89, 4, v0")
    for i in range(4):
        I(f"ds_write_b128 v89, v[{36+4*i}:{39+4*i}] offset:{i*4096}")
        I(f"ds_write_b128 v89, v[{52+4*i}:{55+4*i}] offset:{16384+i*4096}")
    e("K1_NOFFN1:")
    c("q_abs: B = q[b=l&15][32ks+8g..]")
    I(f"v_mul_u32_u24 v89, {QS}, v5")
    I("v_lshl_add_u32 v89, v4, 4, v89")
    I(f"v_add_u32 v89, {QB}, v89")
    for ks in range(4):
        I(f"ds_read_b128 v[{100+4*ks}:{103+4*ks}], v89 offset:{ks*64}")
    for r in range(4):
        I(f"v_mov_b32 v{80+r}, 0")
    I("s_waitcnt lgkmcnt(0)")
    for ks in range(4):
        I(f"v_mfma_f32_16x16x32_bf16 v[80:83], v[{20+4*ks}:{23+4*ks}], v[{100+4*ks}:{103+4*ks}], v[80:83]")
    c("store: QABS + ((b*32+h)*512 + 64j+16w+4g)*2")
    I("v_lshlrev_b32 v90, 15, v5")
    I("v_lshl_add_u32 v90, v4, 3, v90")
    I("v_cmp_lt_u32 vcc, 7, v5")
    I("v_mov_b32 v91, 0x7f000000")
    I("s_lshl_b32 s46, s16, 10")
    I("s_lshl_b32 s47, s17, 7")
    I("v_cndmask_b32 v90, v90, v91, vcc")
    I("s_add_u32 s46, s46, s47")
    I("s_lshl_b32 s47, s18, 5")
    I("s_add_u32 s46, s46, s47")
    I("s_nop 4")
    I("v_cvt_pk_bf16_f32 v92, v80, v81")
    I("v_cvt_pk_bf16_f32 v93, v82, v83")
    I("buffer_store_dwordx2 v[92:93], v90, s[40:43], s46 offen")
    c("FFN part")
    I("s_cmp_ge_u32 s2, 86")
    I("s_cbranch_scc1 K1_END")
    I("s_waitcnt lgkmcnt(0)")
    I("s_barrier")
    c("A: xn frags for k=128w+32ks ; B: tr at mat*16384 + row*32 + (i&3)*8")
    I("s_lshl_b32 s46, s18, 8")
    I("v_add_u32 v94, s46, v70")
    I("v_lshlrev_b32 v95, 5, v72")
    I("v_and_b32 v96, 3, v5")
    I("v_lshl_add_u32 v95, v96, 3, v95")
    I("s_lshl_b32 s46, s18, 12")
    I("v_add_u32 v95, s46, v95")
    for ks in range(4):
        I(f"ds_read2_b64 v[{100+4*ks}:{103+4*ks}], v94 offset0:{ks*8} offset1:{ks*8+4}")
        for m in range(2):
            d = 116 + (ks * 2 + m) * 4
            I(f"ds_read_b64_tr_b16 v[{d}:{d+1}], v95 offset:{m*16384+ks*1024}")
            I(f"ds_read_b64_tr_b16 v[{d+2}:{d+3}], v95 offset:{m*16384+ks*1024+512}")
    for r in range(8):
        I(f"v_mov_b32 v{80+r}, 0")
    I("s_waitcnt lgkmcnt(0)")
    for ks in range(4):
        for m in range(2):
            d = 116 + (ks * 2 + m) * 4
            I(f"v_mfma_f32_16x16x32_bf16 v[{80+4*m}:{83+4*m}], v[{100+4*ks}:{103+4*ks}], v[{d}:{d+3}], v[{80+4*m}:{83+4*m}]")
    c("cross-wave reduce: RED[w][lane][8 f32]")
    I("v_lshlrev_b32 v96, 5, v0")
    I(f"v_add_u32 v96, {RED}, v96")
    I("s_nop 7")
    I("ds_write_b128 v96, v[80:83]")
    I("ds_write_b128 v96, v[84:87] offset:16")
    I("s_waitcnt lgkmcnt(0)")
    I("s_barrier")
    I("s_cmp_lg_u32 s18, 0")
    I("s_cbranch_scc1 K1_END")
    for w in range(1, 4):
        I(f"ds_read_b128 v[{100+8*w}:{103+8*w}], v96 offset:{w*2048}")
        I(f"ds_read_b128 v[{104+8*w}:{107+8*w}], v96 offset:{w*2048+16}")
    I("s_waitcnt lgkmcnt(0)")
    for w in range(1, 4):
        for r in range(8):
            I(f"v_add_f32 v{80+r}, v{80+r}, v{100+8*w+r}")
    c("round g,u to bf16; gelu")
    for r in range(4):
        I(f"v_cvt_pk_bf16_f32 v{100+r}, v{80+r}, v{84+r}")
    for r in range(4):
        I(f"v_lshlrev_b32 v{80+r}, 16, v{100+r}")
        I(f"v_and_b32 v{84+r}, 0xffff0000, v{100+r}")
    K0 = f2u(0.044715); K1c = f2u(-2.0 * 0.7978845608028654 * 1.4426950408889634)
    I(f"s_mov_b32 s46, {K0:#x}")
    I(f"s_mov_b32 s47, {K1c:#x}")
    for r in range(4):
        I(f"v_mul_f32 v{100+r}, v{80+r}, v{80+r}")
        I(f"v_mul_f32 v{100+r}, s46, v{100+r}")
        I(f"v_fma_f32 v{100+r}, v{100+r}, v{80+r}, v{80+r}")
        I(f"v_mul_f32 v{100+r}, s47, v{100+r}")
        I(f"v_exp_f32 v{100+r}, v{100+r}")
        I("s_nop 0")
        I(f"v_add_f32 v{100+r}, 1.0, v{100+r}")
        I(f"v_rcp_f32 v{100+r}, v{100+r}")
        I("s_nop 0")
        I(f"v_mul_f32 v{100+r}, v{100+r}, v{80+r}")
    for r in range(4):
        I(f"v_cvt_pk_bf16_f32 v{100+r}, v{100+r}, v{100+r}")
        I(f"v_lshlrev_b32 v{100+r}, 16, v{100+r}")
        I(f"v_mul_f32 v{100+r}, v{100+r}, v{84+r}")
        I(f"v_cvt_pk_bf16_f32 v{100+r}, v{100+r}, v{100+r}")
    c("store hh[b=4g+r][16f+i] for g<2")
    I("v_mul_u32_u24 v104, 11008, v4")
    I("v_lshl_add_u32 v104, v5, 1, v104")
    I("v_cmp_lt_u32 vcc, 1, v4")
    I("v_mov_b32 v105, 0x7f000000")
    I("s_lshl_b32 s46, s2, 5")
    I(f"s_add_u32 s46, s46, {HH}")
    I("v_cndmask_b32 v104, v104, v105, vcc")
    for r in range(4):
        I(f"buffer_store_short v{100+r}, v104, s[40:43], s46 offen offset:{r*2752}" if r*2752 < 4096 else None) if r < 2 else None
    I("v_add_u32 v104, 5504, v104")
    for r in range(2, 4):
        I(f"buffer_store_short v{100+r}, v104, s[40:43], s46 offen offset:{(r-2)*2752}")
    e("K1_END:")
    I("s_endpgm")

def k2():
    PB = 131072
    MX = PB + 8192
    LB = MX + 512
    kstart("k2_kernel")
    I("s_cmp_ge_u32 s2, 256")
    I("s_cbranch_scc1 K2_END")
    I("s_load_dwordx2 s[4:5], s[0:1], 8")
    I("s_load_dwordx2 s[6:7], s[0:1], 96")
    I("s_lshr_b32 s16, s2, 5")
    I("s_and_b32 s17, s2, 31")
    I("v_lshrrev_b32 v1, 6, v0")
    I("v_and_b32 v2, 63, v0")
    I("s_nop 0")
    I("v_readfirstlane_b32 s18, v1")
    I("s_waitcnt lgkmcnt(0)")
    srd(20, 4, 5, 33554432)
    srd(40, 6, 7, WSSZ)
    c("DMA: key rows 32w..32w+31")
    I("v_lshlrev_b32 v3, 4, v2")
    I("s_lshl_b32 s44, s2, 17")
    I("s_lshl_b32 s45, s18, 15")
    I("s_add_u32 s44, s44, s45")
    I("s_mov_b32 m0, s45")
    for kk in range(32):
        f = ((kk & 3) << 2) | ((kk >> 2) & 3)
        I(f"v_xor_b32 v{4 + (kk & 3)}, {f*16}, v3")
        I(f"buffer_load_dwordx4 v{4 + (kk & 3)}, s[20:23], s44 offen lds")
        if kk != 31:
            I("s_add_u32 m0, m0, 1024")
            I("s_add_u32 s44, s44, 1024")
    c("Q frags v[64:191]: addr = (b*32+h)*1024 + st*32 + half*16")
    I("v_and_b32 v8, 31, v2")
    I("v_lshrrev_b32 v9, 5, v2")
    I("v_lshlrev_b32 v10, 10, v8")
    I("v_lshl_add_u32 v10, v9, 4, v10")
    I("s_lshl_b32 s45, s16, 15")
    for st in range(32):
        I(f"buffer_load_dwordx4 v[{64+4*st}:{67+4*st}], v10, s[40:43], s45 offen offset:{st*32}")
    c("QK address regs v[12:19]")
    I("v_and_b32 v11, 3, v8")
    I("v_lshlrev_b32 v11, 2, v11")
    I("v_bfe_u32 v12, v8, 2, 2")
    I("v_or_b32 v11, v11, v12")
    I("v_xor_b32 v11, v11, v9")
    I("v_lshlrev_b32 v11, 4, v11")
    I("v_lshl_add_u32 v11, v8, 10, v11")
    I("s_lshl_b32 s45, s18, 15")
    I("v_add_u32 v11, s45, v11")
    for q in range(8):
        I(f"v_xor_b32 v{12+q}, {q*32}, v11")
    for r in range(16):
        I(f"v_mov_b32 v{20+r}, 0")
    c("each wave reads only own rows for QK -> only own vmcnt needed")
    I("s_waitcnt vmcnt(0)")
    for blk in range(4):
        for q in range(8):
            I(f"ds_read_b128 v[{192+4*q}:{195+4*q}], v{12+q} offset:{blk*256}")
        for q in range(8):
            st = blk * 8 + q
            I(f"s_waitcnt lgkmcnt({7-q})")
            I(f"v_mfma_f32_32x32x16_bf16 v[20:35], v[{192+4*q}:{195+4*q}], v[{64+4*st}:{67+4*st}], v[20:35]")
    I("s_nop 15")
    c("max")
    I("v_max3_f32 v36, v20, v21, v22")
    for r in range(3, 15, 2):
        I(f"v_max3_f32 v36, v36, v{20+r}, v{21+r}")
    I("v_max_f32 v36, v36, v35")
    I("v_mov_b32 v37, v36")
    I("s_nop 1")
    I("v_permlane32_swap_b32 v36, v37")
    I("s_nop 1")
    I("v_max_f32 v36, v36, v37")
    I("v_lshlrev_b32 v38, 4, v8")
    I("s_lshl_b32 s45, s18, 2")
    I(f"s_add_u32 s46, s45, {MX}")
    I("v_add_u32 v39, s46, v38")
    I("ds_write_b32 v39, v36")
    I("s_waitcnt lgkmcnt(0)")
    I("s_barrier")
    I(f"v_add_u32 v40, {MX}, v38")
    I("ds_read_b128 v[44:47], v40")
    I(f"s_mov_b32 s46, {f2u(SC):#x}")
    I("s_waitcnt lgkmcnt(0)")
    I("v_max3_f32 v36, v44, v45, v46")
    I("v_max_f32 v36, v36, v47")
    I("v_mul_f32 v36, s46, v36")
    for r in range(16):
        I(f"v_fma_f32 v{20+r}, v{20+r}, s46, -v36")
    for r in range(16):
        I(f"v_exp_f32 v{20+r}, v{20+r}")
    I("s_nop 0")
    I("v_add_f32 v37, v20, v21")
    for r in range(2, 16):
        I(f"v_add_f32 v37, v37, v{20+r}")
    for r in range(8):
        I(f"v_cvt_pk_bf16_f32 v{48+r}, v{20+2*r}, v{21+2*r}")
    I("v_mov_b32 v41, v37")
    I("s_nop 1")
    I("v_permlane32_swap_b32 v37, v41")
    I("s_nop 1")
    I("v_add_f32 v37, v37, v41")
    I(f"v_add_u32 v39, {LB-MX}, v39")
    I("ds_write_b32 v39, v37")
    I("s_lshl_b32 s45, s18, 11")
    I(f"s_add_u32 s45, s45, {PB}")
    I("v_add_u32 v42, s45, v3")
    I("ds_write_b128 v42, v[48:51]")
    I("ds_write_b128 v42, v[52:55] offset:1024")
    c("PV address base: G=l>>4, i=l&15; half=G>>1, ch=G&1")
    I("v_and_b32 v43, 15, v2")
    I("v_lshrrev_b32 v44, 2, v43")
    I("v_bfe_u32 v45, v2, 4, 1")
    I("v_lshl_add_u32 v46, v9, 2, v44")
    I("v_bfe_u32 v47, v43, 1, 1")
    I("v_lshl_add_u32 v47, v45, 1, v47")
    I("v_lshl_add_u32 v56, v44, 2, v9")
    I("v_xor_b32 v47, v47, v56")
    I("v_lshlrev_b32 v47, 4, v47")
    I("v_and_b32 v56, 1, v43")
    I("v_lshl_add_u32 v47, v56, 3, v47")
    I("v_lshl_add_u32 v47, v46, 10, v47")
    I("s_lshl_b32 s45, s18, 8")
    I("v_add_u32 v47, s45, v47")
    for nt in range(4):
        for sec in range(2):
            x = (nt << 6) ^ (sec * 32)
            I(f"v_xor_b32 v{224+nt*2+sec}, {x}, v47")
            if sec:
                I(f"v_add_u32 v{224+nt*2+sec}, 8192, v{224+nt*2+sec}")
    for q in range(8):
        I(f"v_add_u32 v{232+q}, 0x10000, v{224+q}")
    I("s_waitcnt vmcnt(0) lgkmcnt(0)")
    I("s_barrier")
    I(f"v_add_u32 v42, {PB}, v3")
    for t in range(8):
        I(f"ds_read_b128 v[{96+4*t}:{99+4*t}], v42 offset:{t*1024}")
    for r in range(64):
        I(f"v_mov_b32 v{128+r}, 0")
    c("PV: O acc v[128:191]")
    for t in range(8):
        for nt in range(4):
            for sec in range(2):
                a = (224 if t < 4 else 232) + nt * 2 + sec
                d = 192 + nt * 4 + sec * 2
                I(f"ds_read_b64_tr_b16 v[{d}:{d+1}], v{a} offset:{(t&3)*16384}")
        for nt in range(4):
            I(f"s_waitcnt lgkmcnt({6-2*nt})")
            I(f"v_mfma_f32_32x32x16_bf16 v[{128+16*nt}:{143+16*nt}], v[{96+4*t}:{99+4*t}], v[{192+4*nt}:{195+4*nt}], v[{128+16*nt}:{143+16*nt}]")
    c("stats by wave 0")
    I("s_cmp_lg_u32 s18, 0")
    I("s_cbranch_scc1 K2_NOSTAT")
    I(f"v_add_u32 v40, {LB}, v38")
    I("ds_read_b128 v[44:47], v40")
    I("s_waitcnt lgkmcnt(0)")
    I("v_add_f32 v37, v44, v45")
    I("v_add_f32 v46, v46, v47")
    I("v_add_f32 v37, v37, v46")
    I("v_lshlrev_b32 v40, 11, v8")
    I("v_cmp_lt_u32 vcc, 0, v9")
    I("v_mov_b32 v41, 0x7f000000")
    I("s_lshl_b32 s45, s2, 3")
    I(f"s_add_u32 s45, s45, {STATS}")
    I("v_cndmask_b32 v40, v40, v41, vcc")
    I("buffer_store_dwordx2 v[36:37], v40, s[40:43], s45 offen")
    e("K2_NOSTAT:")
    c("store O")
    I("v_lshlrev_b32 v40, 21, v9")
    I("v_lshl_add_u32 v40, v8, 2, v40")
    I("s_lshl_b32 s45, s2, 8")
    I("s_lshl_b32 s46, s18, 17")
    I("s_add_u32 s45, s45, s46")
    I(f"s_add_u32 s45, s45, {OPART}")
    I("s_nop 7")
    for nt in range(4):
        for r in range(16):
            hh = 8 * (r >> 2) + (r & 3)
            so = hh * 524288 + (nt >> 1) * 65536
            I(f"s_add_u32 s46, s45, {so}")
            I(f"buffer_store_dword v{128+16*nt+r}, v40, s[40:43], s46 offen offset:{(nt&1)*128}")
    e("K2_END:")
    I("s_endpgm")

def k3():
    WO = 0
    WUV = 131072
    COEF = WUV + 16384
    CL = COEF + 1024
    CLS = 144
    CX = CL + 8 * CLS
    CXS = 272
    kstart("k3_kernel")
    I("s_cmp_ge_u32 s2, 256")
    I("s_cbranch_scc1 K3_END")
    I("s_load_dwordx4 s[8:11], s[0:1], 32")
    I("s_load_dwordx2 s[12:13], s[0:1], 72")
    I("s_load_dwordx2 s[6:7], s[0:1], 96")
    I("s_and_b32 s16, s2, 31")
    I("s_lshr_b32 s17, s2, 5")
    I("v_lshrrev_b32 v1, 6, v0")
    I("v_and_b32 v2, 63, v0")
    I("s_nop 0")
    I("v_readfirstlane_b32 s18, v1")
    I("s_waitcnt lgkmcnt(0)")
    srd(24, 8, 9, 4194304)
    srd(28, 10, 11, 4194304)
    srd(32, 12, 13, 1409024)
    srd(40, 6, 7, WSSZ)
    I("v_lshrrev_b32 v4, 4, v2")
    I("v_and_b32 v5, 15, v2")
    c("stats: thread t -> (b,s)=t")
    I("v_lshlrev_b32 v3, 3, v0")
    I("s_lshl_b32 s44, s16, 11")
    I(f"s_add_u32 s44, s44, {STATS}")
    I("buffer_load_dwordx2 v[8:9], v3, s[40:43], s44 offen")
    c("partials: b=t>>5, c4=t&15, sh=(t>>4)&1 ; v[64:127]")
    I("v_lshrrev_b32 v6, 4, v0")
    I("v_lshlrev_b32 v6, 12, v6")
    I("v_and_b32 v7, 15, v0")
    I("v_lshl_add_u32 v6, v7, 4, v6")
    I("s_lshl_b32 s44, s16, 3")
    I("s_add_u32 s44, s44, s17")
    I("s_lshl_b32 s44, s44, 16")
    I(f"s_add_u32 s44, s44, {OPART}")
    for k in range(16):
        I(f"buffer_load_dwordx4 v[{64+4*k}:{67+4*k}], v6, s[40:43], s44 offen offset:{k*256}")
    c("w_uv DMA: rows 64j+16w.. (4 instrs per wave, 4 rows each)")
    I("v_lshlrev_b32 v10, 1, v4")
    I("v_xor_b32 v10, v10, v5")
    I("v_lshlrev_b32 v10, 4, v10")
    I("v_lshl_add_u32 v10, v4, 13, v10")
    I("v_xor_b32 v11, 0x80, v10")
    I("s_lshl_b32 s44, s17, 6")
    I("s_lshl_b32 s45, s18, 4")
    I("s_add_u32 s44, s44, s45")
    I("s_lshl_b32 s44, s44, 13")
    I("s_lshl_b32 s46, s16, 8")
    I("s_add_u32 s44, s44, s46")
    I("s_lshl_b32 s45, s45, 8")
    I(f"s_add_u32 s45, s45, {WUV}")
    I("s_mov_b32 m0, s45")
    for i in range(4):
        I(f"buffer_load_dwordx4 v{10 + (i & 1)}, s[24:27], s44 offen lds")
        if i != 3:
            I("s_add_u32 m0, m0, 1024")
            I("s_add_u32 s44, s44, 32768")
    c("w_o DMA: rows 32w..32w+31 of head h")
    I("v_lshlrev_b32 v12, 4, v2")
    I("s_lshl_b32 s44, s16, 17")
    I("s_lshl_b32 s45, s18, 15")
    I("s_add_u32 s44, s44, s45")
    I("s_mov_b32 m0, s45")
    for kk in range(32):
        I(f"v_xor_b32 v{13 + (kk & 3)}, {(kk & 7) * 32}, v12")
        I(f"buffer_load_dwordx4 v{13 + (kk & 3)}, s[28:31], s44 offen lds")
        if kk != 31:
            I("s_add_u32 m0, m0, 1024")
            I("s_add_u32 s44, s44, 1024")
    c("FFN down (wg<86): rows 16wg.. -> v[128:143]; hh frag v[144:145]")
    I("s_cmp_ge_u32 s2, 86")
    I("s_cbranch_scc1 K3_NOFFN0")
    I("v_lshlrev_b32 v17, 4, v0")
    I("s_lshl_b32 s44, s2, 14")
    for i in range(4):
        I(f"buffer_load_dwordx4 v[{128+4*i}:{131+4*i}], v17, s[32:35], s44 offen")
        if i != 3:
            I("s_add_u32 s44, s44, 4096")
    I("v_and_b32 v18, 7, v2")
    I("v_mul_u32_u24 v18, 2752, v18")
    I("v_lshl_add_u32 v18, v4, 3, v18")
    I("s_lshl_b32 s44, s2, 5")
    I(f"s_add_u32 s44, s44, {HH}")
    I("buffer_load_dwordx2 v[144:145], v18, s[40:43], s44 offen")
    e("K3_NOFFN0:")
    c("coef")
    I("s_waitcnt vmcnt(52)")
    I("v_mov_b32 v20, v8")
    swz_reduce32(20, 21, "v_max_f32")
    I("v_sub_f32 v20, v8, v20")
    I("v_exp_f32 v20, v20")
    I("s_nop 0")
    I("v_mul_f32 v22, v20, v9")
    swz_reduce32(22, 21, "v_add_f32")
    I("v_rcp_f32 v22, v22")
    I("s_nop 0")
    I("v_mul_f32 v20, v20, v22")
    I("v_lshlrev_b32 v21, 2, v0")
    I(f"v_add_u32 v21, {COEF}, v21")
    I("ds_write_b32 v21, v20")
    I("s_waitcnt lgkmcnt(0)")
    I("s_barrier")
    I("v_lshrrev_b32 v21, 4, v0")
    I("v_lshlrev_b32 v21, 6, v21")
    I(f"v_add_u32 v21, {COEF}, v21")
    for k in range(4):
        I(f"ds_read_b128 v[{24+4*k}:{27+4*k}], v21 offset:{k*16}")
    I("s_waitcnt vmcnt(36) lgkmcnt(0)")
    for q in range(4):
        I(f"v_mul_f32 v{40+q}, v24, v{64+q}")
    for k in range(1, 16):
        for q in range(4):
            I(f"v_fmac_f32 v{40+q}, v{24+k}, v{64+4*k+q}")
    for q in range(4):
        I(f"ds_swizzle_b32 v{44+q}, v{40+q} offset:0x401F")
    I("s_waitcnt lgkmcnt(0)")
    for q in range(4):
        I(f"v_add_f32 v{40+q}, v{40+q}, v{44+q}")
    I("v_cvt_pk_bf16_f32 v44, v40, v41")
    I("v_cvt_pk_bf16_f32 v45, v42, v43")
    I("v_lshrrev_b32 v46, 5, v0")
    I(f"v_mul_u32_u24 v46, {CLS}, v46")
    I("v_lshl_add_u32 v46, v7, 3, v46")
    I(f"v_add_u32 v46, {CL}, v46")
    I("ds_write_b64 v46, v[44:45]")
    c("addresses for uv")
    I("v_and_b32 v48, 7, v2")
    I(f"v_mul_u32_u24 v49, {CLS}, v48")
    I("v_lshl_add_u32 v49, v4, 3, v49")
    I(f"v_add_u32 v49, {CL}, v49")
    I("v_lshrrev_b32 v50, 2, v5")
    I("v_lshl_add_u32 v51, v4, 2, v50")
    I("v_and_b32 v52, 7, v51")
    I("s_lshl_b32 s44, s18, 1")
    I("v_xor_b32 v53, s44, v52")
    I("v_lshlrev_b32 v54, 8, v51")
    I("v_lshl_add_u32 v54, v53, 5, v54")
    I("v_and_b32 v55, 3, v5")
    I("v_lshl_add_u32 v54, v55, 3, v54")
    I(f"v_add_u32 v54, {WUV}, v54")
    I("v_xor_b32 v55, 32, v54")
    I("s_waitcnt vmcnt(0) lgkmcnt(0)")
    I("s_barrier")
    for ks in range(2):
        I(f"ds_read2_b64 v[{64+4*ks}:{67+4*ks}], v49 offset0:{ks*8} offset1:{ks*8+4}")
        for nt in range(2):
            d = 72 + (ks * 2 + nt) * 4
            I(f"ds_read_b64_tr_b16 v[{d}:{d+1}], v{54+nt} offset:{ks*8192}")
            I(f"ds_read_b64_tr_b16 v[{d+2}:{d+3}], v{54+nt} offset:{ks*8192+4096}")
    for r in range(8):
        I(f"v_mov_b32 v{88+r}, 0")
    I("s_waitcnt lgkmcnt(0)")
    for ks in range(2):
        for nt in range(2):
            d = 72 + (ks * 2 + nt) * 4
            I(f"v_mfma_f32_16x16x32_bf16 v[{88+4*nt}:{91+4*nt}], v[{64+4*ks}:{67+4*ks}], v[{d}:{d+3}], v[{88+4*nt}:{91+4*nt}]")
    I(f"v_mul_u32_u24 v56, {4*CXS}, v4")
    I("v_lshl_add_u32 v56, v5, 1, v56")
    I("s_lshl_b32 s44, s18, 6")
    I(f"s_add_u32 s44, s44, {CX}")
    I("v_add_u32 v56, s44, v56")
    I("s_nop 7")
    for nt in range(2):
        I(f"v_cvt_pk_bf16_f32 v{96+2*nt}, v{88+4*nt}, v{89+4*nt}")
        I(f"v_cvt_pk_bf16_f32 v{97+2*nt}, v{90+4*nt}, v{91+4*nt}")
    for nt in range(2):
        I(f"ds_write_b16 v56, v{96+2*nt} offset:{nt*32}")
        I(f"ds_write_b16_d16_hi v56, v{96+2*nt} offset:{nt*32+CXS}")
        I(f"ds_write_b16 v56, v{97+2*nt} offset:{nt*32+2*CXS}")
        I(f"ds_write_b16_d16_hi v56, v{97+2*nt} offset:{nt*32+3*CXS}")
    I("s_waitcnt lgkmcnt(0)")
    I("s_barrier")
    c("FFN rows -> LDS WUV region [16 rows][1024], swizzled: chunk ^ (2*(row&7))")
    I("s_cmp_ge_u32 s2, 86")
    I("s_cbranch_scc1 K3_NOFFN1")
    I("s_lshl_b32 s44, s18, 5")
    I("v_lshlrev_b32 v57, 4, v2")
    I("v_xor_b32 v57, s44, v57")
    I("s_lshl_b32 s44, s18, 10")
    I(f"s_add_u32 s44, s44, {WUV}")
    I("v_add_u32 v57, s44, v57")
    I("v_xor_b32 v58, 0x80, v57")
    for i in range(4):
        I(f"ds_write_b128 v{57+(i&1)}, v[{128+4*i}:{131+4*i}] offset:{i*4096}")
    e("K3_NOFFN1:")
    c("o-proj: A = CX[b=l&7][32ks + ...]")
    I(f"v_mul_u32_u24 v49, {CXS}, v48")
    I("v_lshl_add_u32 v49, v4, 3, v49")
    I(f"v_add_u32 v49, {CX}, v49")
    for ks in range(4):
        I(f"ds_read2_b64 v[{64+4*ks}:{67+4*ks}], v49 offset0:{ks*8} offset1:{ks*8+4}")
    c("tr base: row0*1024 + w*256 + ((nt ^ (row0&7))*32) + (i&3)*8")
    I("v_lshlrev_b32 v54, 10, v51")
    I("v_lshl_add_u32 v54, v52, 5, v54")
    I("v_and_b32 v55, 3, v5")
    I("v_lshl_add_u32 v54, v55, 3, v54")
    I("s_lshl_b32 s44, s18, 8")
    I("v_add_u32 v54, s44, v54")
    for nt in range(8):
        I(f"v_xor_b32 v{100+nt}, {nt*32}, v54")
        I(f"v_add_u32 v{108+nt}, 0x10000, v{100+nt}")
    for r in range(32):
        I(f"v_mov_b32 v{160+r}, 0")
    for ks in range(4):
        for nt in range(8):
            a = (100 if ks < 2 else 108) + nt
            d = 192 + nt * 4
            I(f"ds_read_b64_tr_b16 v[{d}:{d+1}], v{a} offset:{(ks&1)*32768}")
            I(f"ds_read_b64_tr_b16 v[{d+2}:{d+3}], v{a} offset:{(ks&1)*32768+16384}")
        I("s_waitcnt lgkmcnt(0)")
        for nt in range(8):
            d = 192 + nt * 4
            I(f"v_mfma_f32_16x16x32_bf16 v[{160+4*nt}:{163+4*nt}], v[{64+4*ks}:{67+4*ks}], v[{d}:{d+3}], v[{160+4*nt}:{163+4*nt}]")
    I("s_cmp_ge_u32 s2, 86")
    I("s_cbranch_scc1 K3_NOFFN2")
    I("s_waitcnt lgkmcnt(0)")
    I("s_barrier")
    for nt in range(8):
        I(f"v_add_u32 v{100+nt}, {WUV}, v{100+nt}")
    for nt in range(8):
        d = 192 + nt * 2
        I(f"ds_read_b64_tr_b16 v[{d}:{d+1}], v{100+nt}")
    I("s_waitcnt lgkmcnt(0)")
    for nt in range(8):
        d = 192 + nt * 2
        I(f"v_mfma_f32_16x16x16_bf16 v[{160+4*nt}:{163+4*nt}], v[144:145], v[{d}:{d+1}], v[{160+4*nt}:{163+4*nt}]")
    e("K3_NOFFN2:")
    c("store OUTP[wg][b=4g+r][128w+16nt+i]")
    I("v_lshlrev_b32 v60, 13, v4")
    I("v_lshl_add_u32 v60, v5, 2, v60")
    I("v_cmp_lt_u32 vcc, 1, v4")
    I("v_mov_b32 v61, 0x7f000000")
    I("s_lshl_b32 s44, s2, 14")
    I("s_lshl_b32 s45, s18, 9")
    I("v_cndmask_b32 v60, v60, v61, vcc")
    I("s_add_u32 s44, s44, s45")
    I(f"s_add_u32 s44, s44, {OUTP}")
    I("s_add_u32 s45, s44, 4096")
    I("s_nop 7")
    for nt in range(8):
        for r in range(4):
            I(f"buffer_store_dword v{160+4*nt+r}, v60, s[40:43], s{44 + (r >> 1)} offen offset:{(r&1)*2048+nt*64}")
    e("K3_END:")
    I("s_endpgm")

def k4():
    kstart("k4_kernel")
    I("s_cmp_ge_u32 s2, 64")
    I("s_cbranch_scc1 K4_END")
    I("s_load_dwordx2 s[4:5], s[0:1], 0")
    I("s_load_dwordx2 s[8:9], s[0:1], 80")
    I("s_load_dwordx2 s[6:7], s[0:1], 96")
    I("v_and_b32 v1, 15, v0")
    I("v_lshrrev_b32 v2, 4, v0")
    I("v_lshlrev_b32 v3, 18, v2")
    I("v_lshl_add_u32 v3, v1, 4, v3")
    I("s_lshl_b32 s16, s2, 8")
    I("s_waitcnt lgkmcnt(0)")
    srd(20, 4, 5, 8192)
    srd(24, 8, 9, 8192)
    srd(40, 6, 7, WSSZ)
    I(f"s_add_u32 s44, s16, {OUTP}")
    for k in range(16):
        I(f"buffer_load_dwordx4 v[{8+4*k}:{11+4*k}], v3, s[40:43], s44 offen")
        if k != 15:
            I("s_add_u32 s44, s44, 16384")
    I("v_lshlrev_b32 v4, 3, v1")
    I("s_lshl_b32 s17, s2, 7")
    I("buffer_load_dwordx2 v[72:73], v4, s[20:23], s17 offen")
    I("s_waitcnt vmcnt(1)")
    for k in range(1, 16):
        for q in range(4):
            I(f"v_add_f32 v{8+q}, v{8+q}, v{8+4*k+q}")
    for q in range(4):
        I(f"ds_swizzle_b32 v{12+q}, v{8+q} offset:0x401F")
    I("s_waitcnt lgkmcnt(0)")
    for q in range(4):
        I(f"v_add_f32 v{8+q}, v{8+q}, v{12+q}")
    for q in range(4):
        I(f"v_mov_b32 v{12+q}, v{8+q}")
    I("s_nop 1")
    for q in range(4):
        I(f"v_permlane32_swap_b32 v{8+q}, v{12+q}")
    I("s_nop 1")
    for q in range(4):
        I(f"v_add_f32 v{8+q}, v{8+q}, v{12+q}")
    I("v_lshlrev_b32 v5, 4, v0")
    I("ds_write_b128 v5, v[8:11]")
    I("s_waitcnt lgkmcnt(0)")
    I("s_barrier")
    I("v_lshlrev_b32 v5, 4, v1")
    for w in range(4):
        I(f"ds_read_b128 v[{16+4*w}:{19+4*w}], v5 offset:{w*1024}")
    I("s_waitcnt vmcnt(0) lgkmcnt(0)")
    for q in range(4):
        I(f"v_add_f32 v{16+q}, v{16+q}, v{20+q}")
        I(f"v_add_f32 v{24+q}, v{24+q}, v{28+q}")
        I(f"v_add_f32 v{16+q}, v{16+q}, v{24+q}")
    I("v_lshlrev_b32 v20, 16, v72")
    I("v_and_b32 v21, 0xffff0000, v72")
    I("v_lshlrev_b32 v22, 16, v73")
    I("v_and_b32 v23, 0xffff0000, v73")
    for q in range(4):
        I(f"v_add_f32 v{16+q}, v{16+q}, v{20+q}")
    I("v_cvt_pk_bf16_f32 v24, v16, v17")
    I("v_cvt_pk_bf16_f32 v25, v18, v19")
    I("v_cmp_lt_u32 vcc, 15, v0")
    I("v_mov_b32 v6, 0x7f000000")
    I("s_nop 1")
    I("v_cndmask_b32 v4, v4, v6, vcc")
    I("buffer_store_dwordx2 v[24:25], v4, s[24:27], s17 offen")
    e("K4_END:")
    I("s_endpgm")

header()
k1(); k2(); k3(); k4()
e('.section .rodata,"a"')
for n, v in (("k1_kernel", 160), ("k2_kernel", 256), ("k3_kernel", 256), ("k4_kernel", 80)):
    e(".p2align 6")
    kdesc(n, v)
open(sys.argv[1], "w").write("\n".join(x for x in L if x is not None) + "\n")
```

```python
import sys, os, struct
FL = os.environ.get("FL", "").split(",")
L = []
def e(s=""): L.append(s)
def c(s): L.append("    ; " + s)
def I(s): L.append("    " + s)
def f2u(x): return struct.unpack("<I", struct.pack("<f", x))[0]

QABS = 0x0
HH   = 0x40000
STATS= 0x50000
OPB  = 0x100000
OUTP = 0x1100000
TSOFF= 0x1500000
WSSZ = 0x1600000
SC = (128 ** -0.5) * 1.4426950408889634
TSX = 1 if "TS" in FL else 0
PST = os.environ.get("PST", " sc1")
PFN = int(os.environ.get("PFN", "32"))
PFT = int(os.environ.get("PFT", "12"))
K2NT = os.environ.get("K2NT", " nt")
WONT = os.environ.get("WONT", " nt")
OST = os.environ.get("OST", "")
PFD = int(os.environ.get("PFD", "1"))
PFX = int(os.environ.get("PFX", "0"))
PFNF = int(os.environ.get("PFNF", "8"))
FNT = os.environ.get("FNT", " nt")

def srd(d, lo, hi, nbytes):
    I(f"s_mov_b32 s{d}, s{lo}")
    I(f"s_and_b32 s{d+1}, s{hi}, 0xffff")
    I(f"s_mov_b32 s{d+2}, {nbytes}")
    I(f"s_mov_b32 s{d+3}, 0x00020000")

def kstart(name):
    e(f".globl {name}"); e(".p2align 8"); e(f".type {name},@function"); e(f"{name}:")

def kdesc(name, vgpr, sgpr=102):
    e(f".amdhsa_kernel {name}")
    e(f"  .amdhsa_next_free_vgpr {vgpr}")
    e(f"  .amdhsa_next_free_sgpr {sgpr}")
    e(f"  .amdhsa_accum_offset {(vgpr+3)//4*4}")
    e("  .amdhsa_group_segment_fixed_size 0")
    e("  .amdhsa_kernarg_size 104")
    e("  .amdhsa_user_sgpr_count 2")
    e("  .amdhsa_user_sgpr_kernarg_segment_ptr 1")
    e("  .amdhsa_system_sgpr_workgroup_id_x 1")
    e(".end_amdhsa_kernel")

def ts(kid, idx, r=250):
    if "TS" not in FL: return
    I("s_memrealtime s[90:91]")
    I("s_waitcnt lgkmcnt(0)")
    I(f"v_mov_b32 v{r}, s90")
    I("s_lshl_b32 s92, s2, 7")
    I("s_lshl_b32 s93, s18, 5")
    I("s_add_u32 s92, s92, s93")
    I(f"s_add_u32 s92, s92, {TSOFF + kid*65536 + idx*4}")
    I(f"v_and_b32 v{r+2}, 63, v0")
    I(f"v_cmp_eq_u32 vcc, 0, v{r+2}")
    I(f"v_mov_b32 v{r+1}, 0x7f000000")
    I("s_nop 1")
    I(f"v_cndmask_b32 v{r+1}, v{r+1}, 0, vcc")
    I(f"buffer_store_dword v{r}, v{r+1}, s[40:43], s92 offen")

def xor32(v, tmp, op):
    I(f"v_mov_b32 v{tmp}, v{v}")
    I("s_nop 1")
    I(f"v_permlane32_swap_b32 v{v}, v{tmp}")
    I("s_nop 1")
    I(f"{op} v{v}, v{v}, v{tmp}")

def dppred(v, tmp, op, width):
    for m in ("quad_perm:[1,0,3,2]", "quad_perm:[2,3,0,1]", "row_half_mirror", "row_mirror"):
        I("s_nop 1")
        I(f"{op}_dpp v{v}, v{v}, v{v} {m} row_mask:0xf bank_mask:0xf")
    if width >= 32:
        I(f"v_mov_b32 v{tmp}, v{v}")
        I("s_nop 1")
        I(f"v_permlane16_swap_b32 v{v}, v{tmp}")
        I("s_nop 1")
        I(f"{op} v{v}, v{v}, v{tmp}")
    if width >= 64:
        xor32(v, tmp, op)

def common_ids():
    I("s_and_b32 s16, s2, 31")
    I("s_lshr_b32 s17, s2, 5")
    I("v_lshrrev_b32 v2, 6, v0")
    I("v_and_b32 v1, 63, v0")
    I("s_nop 0")
    I("v_readfirstlane_b32 s18, v2")
    I("v_lshrrev_b32 v2, 4, v1")
    I("v_and_b32 v3, 15, v1")
    I("s_mov_b32 s19, s18")

def k1():
    XN = 131072; XNS = 1040; QB = XN + 8 * XNS; QS = 272; FST = QB + 16 * QS; FST = (FST + 255) // 256 * 256
    assert FST + 16384 <= 163840
    PF1 = int(os.environ.get("PF1", "0")); PF2 = int(os.environ.get("PF2", "0"))
    kstart("k1_kernel")
    I("s_cmp_ge_u32 s2, 256")
    I("s_cbranch_scc1 K1_END")
    I("s_load_dwordx4 s[4:7], s[0:1], 0")
    I("s_load_dwordx4 s[8:11], s[0:1], 16")
    I("s_load_dwordx4 s[68:71], s[0:1], 56")
    I("s_load_dwordx2 s[78:79], s[0:1], 96")
    common_ids()
    I("s_and_b32 s19, s18, 3")
    I("v_lshlrev_b32 v4, 4, v1")
    I("v_lshrrev_b32 v28, 2, v3")
    I("v_lshl_add_u32 v28, v2, 2, v28")
    I("v_and_b32 v29, 7, v28")
    I("v_and_b32 v30, 3, v3")
    I("v_and_b32 v31, 7, v1")
    I(f"v_mul_u32_u24 v31, {XNS}, v31")
    I("v_lshl_add_u32 v31, v2, 3, v31")
    I("s_lshl_b32 s64, s19, 8")
    I(f"s_add_u32 s64, s64, {XN}")
    I("v_add_u32 v31, s64, v31")
    I("s_waitcnt lgkmcnt(0)")
    srd(20, 4, 5, 8192)
    srd(24, 8, 9, 4194304)
    srd(28, 10, 11, 4194304)
    srd(32, 68, 69, 1409024)
    srd(36, 70, 71, 1409024)
    srd(40, 78, 79, WSSZ)
    srd(44, 6, 7, 33554432)
    I("s_cmp_ge_u32 s18, 4")
    I("s_cbranch_scc1 K1_B")
    c("==== A waves")
    ts(0, 0)
    I("v_lshlrev_b32 v6, 1, v2")
    I("v_xor_b32 v6, v6, v3")
    I("v_lshlrev_b32 v6, 4, v6")
    I("v_lshl_add_u32 v6, v2, 13, v6")
    I("v_xor_b32 v7, 0x80, v6")
    I("s_lshl_b32 s64, s19, 20")
    I("s_lshl_b32 s65, s16, 8")
    I("s_add_u32 s64, s64, s65")
    I("s_lshl_b32 s66, s19, 15")
    I("s_mov_b32 m0, s66")
    I("s_barrier")
    for i in range(32):
        I(f"buffer_load_dwordx4 v{6 + (i & 1)}, s[24:27], s64 offen nt lds")
        if i != 31:
            I("s_add_u32 m0, m0, 1024")
            I("s_add_u32 s64, s64, 32768")
    I("v_lshlrev_b32 v8, 13, v3")
    I("v_lshl_add_u32 v8, v2, 4, v8")
    I("s_lshl_b32 s64, s17, 6")
    I("s_lshl_b32 s66, s19, 4")
    I("s_add_u32 s64, s64, s66")
    I("s_lshl_b32 s64, s64, 13")
    I("s_add_u32 s64, s64, s65")
    for ks in range(4):
        I(f"buffer_load_dwordx4 v[{80+4*ks}:{83+4*ks}], v8, s[28:31], s64 offen offset:{ks*64} nt")
    c("addresses")
    I("v_and_b32 v70, 7, v1")
    I(f"v_mul_u32_u24 v70, {XNS}, v70")
    I("v_lshl_add_u32 v70, v2, 3, v70")
    I(f"v_add_u32 v70, {XN}, v70")
    I("s_lshl_b32 s64, s19, 1")
    I("v_xor_b32 v73, s64, v29")
    I("v_lshlrev_b32 v74, 8, v28")
    I("v_lshl_add_u32 v74, v73, 5, v74")
    I("v_lshl_add_u32 v74, v30, 3, v74")
    I("v_xor_b32 v75, 32, v74")
    I("v_add_u32 v76, 0x10000, v74")
    I("v_add_u32 v77, 0x10000, v75")
    I(f"v_mul_u32_u24 v24, {4*QS}, v2")
    I("v_lshl_add_u32 v24, v3, 1, v24")
    I("s_lshl_b32 s64, s19, 6")
    I(f"s_add_u32 s64, s64, {QB}")
    I("v_add_u32 v24, s64, v24")
    I(f"v_mul_u32_u24 v25, {QS}, v3")
    I("v_lshl_add_u32 v25, v2, 4, v25")
    I(f"v_add_u32 v25, {QB}, v25")
    I("v_lshlrev_b32 v26, 15, v3")
    I("v_lshl_add_u32 v26, v2, 3, v26")
    I("v_cmp_lt_u32 vcc, 7, v3")
    I("v_mov_b32 v27, 0x7f000000")
    I("s_lshl_b32 s70, s16, 10")
    I("s_lshl_b32 s65, s17, 7")
    I("v_cndmask_b32 v26, v26, v27, vcc")
    I("s_add_u32 s70, s70, s65")
    I("s_lshl_b32 s65, s19, 5")
    I("s_add_u32 s70, s70, s65")
    for r in range(12):
        I(f"v_mov_b32 v{8+r}, 0")
    I("s_waitcnt vmcnt(4)")
    I("s_barrier")
    ts(0, 1, r=120)
    for ch in range(4):
        for k4 in range(4):
            ks = ch * 4 + k4
            I(f"ds_read2_b64 v[{128+64*(ch&1)+4*k4}:{131+64*(ch&1)+4*k4}], v70 offset0:{ks*8} offset1:{ks*8+4}")
            for nt in range(2):
                base = (74 + nt) if ks < 8 else (76 + nt)
                off = (ks & 7) * 8192
                d = 144 + 64 * (ch & 1) + (k4 * 2 + nt) * 4
                I(f"ds_read_b64_tr_b16 v[{d}:{d+1}], v{base} offset:{off}")
                I(f"ds_read_b64_tr_b16 v[{d+2}:{d+3}], v{base} offset:{off+4096}")
            if k4 == 2: I("s_waitcnt lgkmcnt(10)")
        for k4 in range(4):
            I(f"s_waitcnt lgkmcnt({5*(3-k4)})")
            for nt in range(2):
                d = 144 + 64 * (ch & 1) + (k4 * 2 + nt) * 4
                a = 128 + 64 * (ch & 1) + 4 * k4
                I(f"v_mfma_f32_16x16x32_bf16 v[{8+4*nt}:{11+4*nt}], v[{a}:{a+3}], v[{d}:{d+3}], v[{8+4*nt}:{11+4*nt}]")
    ts(0, 5, r=120)
    I("s_nop 7")
    for nt in range(2):
        I(f"v_cvt_pk_bf16_f32 v{20+2*nt}, v{8+4*nt}, v{9+4*nt}")
        I(f"v_cvt_pk_bf16_f32 v{21+2*nt}, v{10+4*nt}, v{11+4*nt}")
    for nt in range(2):
        I(f"ds_write_b16 v24, v{20+2*nt} offset:{nt*32}")
        I(f"ds_write_b16_d16_hi v24, v{20+2*nt} offset:{nt*32+QS}")
        I(f"ds_write_b16 v24, v{21+2*nt} offset:{nt*32+2*QS}")
        I(f"ds_write_b16_d16_hi v24, v{21+2*nt} offset:{nt*32+3*QS}")
    I("s_waitcnt lgkmcnt(0)")
    I("s_barrier")
    for ks in range(4):
        I(f"ds_read_b128 v[{128+4*ks}:{131+4*ks}], v25 offset:{ks*64}")
    I("s_waitcnt vmcnt(0) lgkmcnt(0)")
    for ks in range(4):
        I(f"v_mfma_f32_16x16x32_bf16 v[16:19], v[{80+4*ks}:{83+4*ks}], v[{128+4*ks}:{131+4*ks}], v[16:19]")
    I("s_nop 7")
    I("v_cvt_pk_bf16_f32 v12, v16, v17")
    I("v_cvt_pk_bf16_f32 v13, v18, v19")
    I("buffer_store_dwordx2 v[12:13], v26, s[40:43], s70 offen")
    if "TS" in FL:
        I("s_waitcnt vmcnt(0)")
        ts(0, 2)
    I("s_branch K1_END")
    c("==== B waves: LN, FFN, prefetch")
    e("K1_B:")
    I("s_lshl_b32 s64, s19, 11")
    I("v_lshlrev_b32 v5, 5, v1")
    I("buffer_load_dwordx4 v[48:51], v5, s[20:23], s64 offen")
    I("buffer_load_dwordx4 v[52:55], v5, s[20:23], s64 offen offset:16")
    I("s_and_b32 s74, s2, 7")
    I("s_mul_i32 s74, s74, 11")
    I("s_lshr_b32 s75, s2, 3")
    I("s_add_u32 s74, s74, s75")
    I("s_cmp_ge_u32 s2, 88")
    I("s_cselect_b32 s74, 0x1000, s74")
    c("ffn loads: for non-ffn wgs use an out-of-range offset (returns 0 quickly)")
    I("v_lshrrev_b32 v24, 1, v1")
    I("v_mul_u32_u24 v24, 2752, v24")
    I("v_and_b32 v25, 1, v1")
    I("v_lshl_add_u32 v24, v25, 4, v24")
    I(f"s_mul_i32 s64, s19, {128*2752}")
    I("s_lshl_b32 s65, s74, 5")
    I("s_add_u32 s64, s64, s65")
    I("s_cmp_ge_u32 s74, 86")
    I("s_cselect_b32 s64, 0x40000000, s64")
    for n in range(4):
        I(f"buffer_load_dwordx4 v[{96+4*n}:{99+4*n}], v24, s[32:35], s64 offen{FNT}")
        I(f"buffer_load_dwordx4 v[{112+4*n}:{115+4*n}], v24, s[36:39], s64 offen{FNT}")
        if n != 3: I(f"s_add_u32 s64, s64, {32*2752}")
    I("s_barrier")
    I("s_waitcnt vmcnt(8)")
    for k in range(8):
        I(f"v_lshlrev_b32 v{56+2*k}, 16, v{48+k}")
        I(f"v_and_b32 v{57+2*k}, 0xffff0000, v{48+k}")
    I("v_add_f32 v8, v56, v57"); I("v_add_f32 v9, v58, v59"); I("v_add_f32 v10, v60, v61"); I("v_add_f32 v11, v62, v63")
    I("v_add_f32 v8, v8, v64"); I("v_add_f32 v9, v9, v65"); I("v_add_f32 v10, v10, v66"); I("v_add_f32 v11, v11, v67")
    I("v_add_f32 v8, v8, v68"); I("v_add_f32 v9, v9, v69"); I("v_add_f32 v10, v10, v70"); I("v_add_f32 v11, v11, v71")
    I("v_add_f32 v8, v8, v9"); I("v_add_f32 v10, v10, v11"); I("v_add_f32 v8, v8, v10")
    dppred(8, 9, "v_add_f32", 32)
    I("v_mul_f32 v8, 0x3b000000, v8")
    for k in range(16):
        I(f"v_sub_f32 v{72+k}, v{56+k}, v8")
    I("v_mul_f32 v9, v72, v72"); I("v_mul_f32 v10, v73, v73"); I("v_mul_f32 v11, v74, v74"); I("v_mul_f32 v12, v75, v75")
    for k in range(4, 16, 4):
        for q in range(4):
            I(f"v_fmac_f32 v{9+q}, v{72+k+q}, v{72+k+q}")
    I("v_add_f32 v9, v9, v10"); I("v_add_f32 v11, v11, v12"); I("v_add_f32 v12, v9, v11")
    dppred(12, 9, "v_add_f32", 32)
    I("v_mul_f32 v12, 0x3b000000, v12")
    I("v_cvt_pk_bf16_f32 v9, v8, v12")
    I("v_lshlrev_b32 v8, 16, v9")
    I("v_and_b32 v12, 0xffff0000, v9")
    I(f"v_add_f32 v12, {f2u(1e-5):#x}, v12")
    I("v_cvt_pk_bf16_f32 v12, v12, v12")
    I("v_lshlrev_b32 v12, 16, v12")
    I("v_sqrt_f32 v12, v12")
    I("s_nop 0")
    I("v_cvt_pk_bf16_f32 v12, v12, v12")
    I("v_lshlrev_b32 v12, 16, v12")
    I("v_rcp_f32 v9, v12")
    for k in range(16):
        I(f"v_sub_f32 v{56+k}, v{56+k}, v8")
    for k in range(8):
        I(f"v_cvt_pk_bf16_f32 v{72+k}, v{56+2*k}, v{57+2*k}")
    for k in range(8):
        I(f"v_lshlrev_b32 v{56+2*k}, 16, v{72+k}")
        I(f"v_and_b32 v{57+2*k}, 0xffff0000, v{72+k}")
    for k in range(16):
        I(f"v_mul_f32 v{56+k}, v{56+k}, v9")
    for k in range(8):
        I(f"v_cvt_pk_bf16_f32 v{72+k}, v{56+2*k}, v{57+2*k}")
    I("v_lshrrev_b32 v10, 5, v1")
    I("s_lshl_b32 s64, s19, 1")
    I("v_add_u32 v10, s64, v10")
    I(f"v_mul_u32_u24 v10, {XNS}, v10")
    I("v_and_b32 v11, 31, v1")
    I("v_lshl_add_u32 v10, v11, 5, v10")
    I(f"v_add_u32 v10, {XN}, v10")
    I("ds_write_b128 v10, v[72:75]")
    I("ds_write_b128 v10, v[76:79] offset:16")
    c("prefetch part 1 (no waits)")
    I("s_lshl_b32 s76, s2, 17")
    I("s_lshl_b32 s64, s19, 15")
    I("s_add_u32 s76, s76, s64")
    for n in range(PF1):
        I(f"buffer_load_dwordx4 v[{160+4*(n%16)}:{163+4*(n%16)}], v4, s[44:47], s76 offen nt")
        I("s_add_u32 s76, s76, 1024")
    I("s_waitcnt lgkmcnt(0)")
    I("s_barrier")
    I("s_cmp_ge_u32 s74, 86")
    I("s_cbranch_scc1 K1_BNOF")
    for ks in range(4):
        I(f"ds_read2_b64 v[{32+4*ks}:{35+4*ks}], v31 offset0:{ks*8} offset1:{ks*8+4}")
    I("s_lshl_b32 s66, s19, 12")
    I(f"s_add_u32 s66, s66, {FST}")
    I("v_add_u32 v25, s66, v4")
    I("v_lshlrev_b32 v26, 5, v28")
    I("v_lshl_add_u32 v26, v30, 3, v26")
    I("v_add_u32 v26, s66, v26")
    for r in range(8):
        I(f"v_mov_b32 v{8+r}, 0")
    I(f"s_waitcnt vmcnt({PF1})")
    for m in range(2):
        for n in range(4):
            I(f"ds_write_b128 v25, v[{96+16*m+4*n}:{99+16*m+4*n}] offset:{n*1024}")
        for ks in range(4):
            d = 128 + (m * 4 + ks) * 4
            I(f"ds_read_b64_tr_b16 v[{d}:{d+1}], v26 offset:{ks*1024}")
            I(f"ds_read_b64_tr_b16 v[{d+2}:{d+3}], v26 offset:{ks*1024+512}")
    I("s_waitcnt lgkmcnt(0)")
    for m in range(2):
        for ks in range(4):
            d = 128 + (m * 4 + ks) * 4
            I(f"v_mfma_f32_16x16x32_bf16 v[{8+4*m}:{11+4*m}], v[{32+4*ks}:{35+4*ks}], v[{d}:{d+3}], v[{8+4*m}:{11+4*m}]")
    I("v_lshlrev_b32 v17, 5, v1")
    I("v_add_u32 v18, s66, v17")
    I(f"v_add_u32 v17, {FST}, v17")
    I("s_nop 7")
    I("ds_write_b128 v18, v[8:11]")
    I("ds_write_b128 v18, v[12:15] offset:16")
    e("K1_BNOF:")
    for n in range(PF2):
        I(f"buffer_load_dwordx4 v[{160+4*(n%16)}:{163+4*(n%16)}], v4, s[44:47], s76 offen nt")
        I("s_add_u32 s76, s76, 1024")
    I("s_waitcnt lgkmcnt(0)")
    I("s_barrier")
    I("s_cmp_ge_u32 s74, 86")
    I("s_cbranch_scc1 K1_BEND")
    I("s_cmp_lg_u32 s18, 4")
    I("s_cbranch_scc1 K1_BEND")
    for w in range(1, 4):
        I(f"ds_read_b128 v[{96+8*w}:{99+8*w}], v17 offset:{w*4096}")
        I(f"ds_read_b128 v[{100+8*w}:{103+8*w}], v17 offset:{w*4096+16}")
    I("s_waitcnt lgkmcnt(0)")
    for w in range(1, 4):
        for r in range(8):
            I(f"v_add_f32 v{8+r}, v{8+r}, v{96+8*w+r}")
    for r in range(4):
        I(f"v_cvt_pk_bf16_f32 v{96+r}, v{8+r}, v{12+r}")
    for r in range(4):
        I(f"v_lshlrev_b32 v{8+r}, 16, v{96+r}")
        I(f"v_and_b32 v{12+r}, 0xffff0000, v{96+r}")
    I(f"s_mov_b32 s64, {f2u(0.044715):#x}")
    I(f"s_mov_b32 s65, {f2u(-2.0 * 0.7978845608028654 * 1.4426950408889634):#x}")
    for r in range(4):
        I(f"v_mul_f32 v{96+r}, v{8+r}, v{8+r}")
        I(f"v_mul_f32 v{96+r}, s64, v{96+r}")
        I(f"v_fma_f32 v{96+r}, v{96+r}, v{8+r}, v{8+r}")
        I(f"v_mul_f32 v{96+r}, s65, v{96+r}")
        I(f"v_exp_f32 v{96+r}, v{96+r}")
        I("s_nop 0")
        I(f"v_add_f32 v{96+r}, 1.0, v{96+r}")
        I(f"v_rcp_f32 v{96+r}, v{96+r}")
        I("s_nop 0")
        I(f"v_mul_f32 v{96+r}, v{96+r}, v{8+r}")
    for r in range(4):
        I(f"v_cvt_pk_bf16_f32 v{96+r}, v{96+r}, v{96+r}")
        I(f"v_lshlrev_b32 v{96+r}, 16, v{96+r}")
        I(f"v_mul_f32 v{96+r}, v{96+r}, v{12+r}")
        I(f"v_cvt_pk_bf16_f32 v{96+r}, v{96+r}, v{96+r}")
    I("v_mul_u32_u24 v100, 11008, v2")
    I("v_lshl_add_u32 v100, v3, 1, v100")
    I("v_cmp_lt_u32 vcc, 1, v2")
    I("v_mov_b32 v101, 0x7f000000")
    I("s_lshl_b32 s64, s74, 5")
    I(f"s_add_u32 s64, s64, {HH}")
    I("v_cndmask_b32 v100, v100, v101, vcc")
    I("v_add_u32 v101, 5504, v100")
    for r in range(4):
        I(f"buffer_store_short v{96+r}, v{100+(r>>1)}, s[40:43], s64 offen offset:{(r&1)*2752}")
    e("K1_BEND:")
    I("s_waitcnt vmcnt(0)")
    if "TS" in FL:
        I("s_sub_u32 s18, s18, 4")
        I("s_add_u32 s2, s2, 256")
        ts(0, 4, r=120)
    e("K1_END:")
    I("s_endpgm")

def k2():
    STG = 131072
    PB = STG; MX = STG + 8192; LB = MX + 512
    kstart("k2_kernel")
    I("s_cmp_ge_u32 s2, 256")
    I("s_cbranch_scc1 K2_END")
    I("s_load_dwordx2 s[4:5], s[0:1], 8")
    I("s_load_dwordx4 s[12:15], s[0:1], 32")
    I("s_load_dwordx2 s[72:73], s[0:1], 72")
    I("s_load_dwordx2 s[78:79], s[0:1], 96")
    common_ids()
    I("s_and_b32 s19, s18, 3")
    I("v_lshlrev_b32 v4, 4, v1")
    I("v_and_b32 v8, 31, v1")
    I("v_lshrrev_b32 v9, 5, v1")
    I("s_waitcnt lgkmcnt(0)")
    srd(40, 78, 79, WSSZ)
    srd(44, 4, 5, 33554432)
    srd(48, 12, 13, 4194304)
    srd(52, 14, 15, 4194304)
    srd(56, 72, 73, 1409024)
    I("s_cmp_ge_u32 s18, 4")
    I("s_cbranch_scc1 K2_B")
    c("==== A waves: c_kv DMA (window major), QK")
    ts(1, 0)
    I("v_lshlrev_b32 v5, 2, v2")
    I("v_xor_b32 v5, v5, v3")
    I("v_lshlrev_b32 v5, 4, v5")
    I("v_lshl_add_u32 v5, v2, 10, v5")
    for q in range(4):
        I(f"v_xor_b32 v{10+q}, {q*16}, v5")
    I("s_lshl_b32 s64, s2, 17")
    I("s_lshl_b32 s65, s19, 15")
    I("s_add_u32 s64, s64, s65")
    I("s_lshl_b32 s65, s19, 13")
    for win in range(4):
        I(f"s_add_u32 s66, s64, {win*256}")
        I(f"s_add_u32 s67, s65, {win*32768}")
        I("s_mov_b32 m0, s67")
        I("s_nop 0")
        for kk in range(8):
            I(f"buffer_load_dwordx4 v{10+(kk&3)}, s[44:47], s66 offen{K2NT} lds")
            if kk != 7:
                I("s_add_u32 m0, m0, 1024")
                I("s_add_u32 s66, s66, 4096")
    c("Q frag read addrs")
    I("v_and_b32 v27, 15, v8")
    I("v_xor_b32 v27, v27, v9")
    I("v_lshlrev_b32 v27, 4, v27")
    I("v_lshl_add_u32 v27, v8, 10, v27")
    I(f"v_add_u32 v27, {STG}, v27")
    for q in range(8):
        I(f"v_xor_b32 v{40+q}, {q*32}, v27")
    c("QK addrs v[12:19]/v[20..27]")
    I("v_and_b32 v11, 3, v8")
    I("v_lshlrev_b32 v11, 2, v11")
    I("v_bfe_u32 v12, v8, 2, 2")
    I("v_or_b32 v11, v11, v12")
    I("v_xor_b32 v11, v11, v9")
    I("v_lshlrev_b32 v11, 4, v11")
    I("v_lshl_add_u32 v11, v8, 8, v11")
    I("v_add_u32 v11, s65, v11")
    for q in range(8):
        I(f"v_xor_b32 v{48+q}, {q*32}, v11")
        I(f"v_add_u32 v{56+q}, 0x10000, v{48+q}")
    for r in range(16):
        I(f"v_mov_b32 v{20+r}, 0")
    I("s_barrier")
    for st in range(32):
        I(f"ds_read_b128 v[{64+4*st}:{67+4*st}], v{40+(st&7)} offset:{(st>>3)*256}")
        if st == 15: I("s_waitcnt lgkmcnt(0)")
    for win in range(4):
        I(f"s_waitcnt vmcnt({8*(3-win)}) lgkmcnt(0)")
        if win == 3: ts(1, 1)
        for q in range(8):
            a = (48 if win < 2 else 56) + q
            I(f"ds_read_b128 v[{192+4*q}:{195+4*q}], v{a} offset:{(win&1)*32768}")
        for q in range(8):
            st = win * 8 + q
            I(f"s_waitcnt lgkmcnt({7-q})")
            I(f"v_mfma_f32_32x32x16_bf16 v[20:35], v[{192+4*q}:{195+4*q}], v[{64+4*st}:{67+4*st}], v[20:35]")
    I("v_lshlrev_b32 v38, 4, v8")
    I("s_lshl_b32 s64, s19, 2")
    I(f"s_add_u32 s64, s64, {MX}")
    I("v_add_u32 v39, s64, v38")
    I("s_lshl_b32 s64, s19, 11")
    I(f"s_add_u32 s64, s64, {PB}")
    I("v_add_u32 v42, s64, v4")
    I("s_nop 7")
    I("v_max3_f32 v36, v20, v21, v22")
    for r in range(3, 15, 2):
        I(f"v_max3_f32 v36, v36, v{20+r}, v{21+r}")
    I("v_max_f32 v36, v36, v35")
    xor32(36, 37, "v_max_f32")
    I("s_barrier")
    I("ds_write_b32 v39, v36")
    I("s_waitcnt lgkmcnt(0)")
    I("s_barrier")
    I(f"v_add_u32 v40, {MX}, v38")
    I("ds_read_b128 v[44:47], v40")
    I(f"s_mov_b32 s64, {f2u(SC):#x}")
    I("s_waitcnt lgkmcnt(0)")
    I("v_max3_f32 v36, v44, v45, v46")
    I("v_max_f32 v36, v36, v47")
    I("v_mul_f32 v36, s64, v36")
    for r in range(16):
        I(f"v_fma_f32 v{20+r}, v{20+r}, s64, -v36")
    for r in range(16):
        I(f"v_exp_f32 v{20+r}, v{20+r}")
    I("s_nop 0")
    for r in range(8):
        I(f"v_cvt_pk_bf16_f32 v{48+r}, v{20+2*r}, v{21+2*r}")
    I("ds_write_b128 v42, v[48:51]")
    I("ds_write_b128 v42, v[52:55] offset:1024")
    I("v_add_f32 v37, v20, v21"); I("v_add_f32 v41, v22, v23"); I("v_add_f32 v43, v24, v25"); I("v_add_f32 v44, v26, v27")
    I("v_add_f32 v37, v37, v28"); I("v_add_f32 v41, v41, v29"); I("v_add_f32 v43, v43, v30"); I("v_add_f32 v44, v44, v31")
    I("v_add_f32 v37, v37, v32"); I("v_add_f32 v41, v41, v33"); I("v_add_f32 v43, v43, v34"); I("v_add_f32 v44, v44, v35")
    I("v_add_f32 v37, v37, v41"); I("v_add_f32 v43, v43, v44"); I("v_add_f32 v37, v37, v43")
    xor32(37, 41, "v_add_f32")
    I(f"v_add_u32 v39, {LB-MX}, v39")
    I("ds_write_b32 v39, v37")
    I("s_branch K2_PV")
    c("==== B waves: Q staging, K3 weight prefetch")
    e("K2_B:")
    I("s_lshl_b32 s64, s17, 15")
    I("s_lshl_b32 s65, s19, 13")
    I("s_add_u32 s64, s64, s65")
    for n in range(8):
        I(f"buffer_load_dwordx4 v[{192+4*n}:{195+4*n}], v4, s[40:43], s64 offen offset:{(n&3)*1024}")
        if n == 3: I("s_add_u32 s64, s64, 4096")
    I("s_and_b32 s64, s19, 1")
    I("s_lshl_b32 s64, s64, 7")
    I("v_xor_b32 v26, s64, v4")
    I(f"s_add_u32 s64, s65, {STG}")
    I("v_add_u32 v26, s64, v26")
    for n in range(8):
        I(f"v_xor_b32 v{16+n}, {n*16}, v26")
    I("v_lshlrev_b32 v38, 4, v8")
    I("s_waitcnt vmcnt(0)")
    for n in range(8):
        I(f"ds_write_b128 v{16+n}, v[{192+4*n}:{195+4*n}] offset:{n*1024}")
    I("s_waitcnt lgkmcnt(0)")
    I("s_barrier")
    I("s_barrier")
    if "NOPF3" not in FL:
        I("v_and_b32 v56, 255, v0")
        I("v_lshrrev_b32 v57, 4, v56")
        I("v_lshlrev_b32 v56, 4, v56")
        I("s_lshl_b32 s64, s16, 17")
        I("s_lshl_b32 s65, s17, 14")
        I("s_add_u32 s64, s64, s65")
        for n in range(4):
            I(f"buffer_load_dwordx4 v[{240+4*n}:{243+4*n}], v56, s[52:55], s64 offen nt")
            I("s_add_u32 s64, s64, 4096")
        I("v_lshlrev_b32 v57, 13, v57")
        I("v_lshl_add_u32 v57, v3, 4, v57")
        I("s_lshl_b32 s64, s17, 19")
        I("s_lshl_b32 s65, s16, 8")
        I("s_add_u32 s64, s64, s65")
        for n in range(4):
            I(f"buffer_load_dwordx4 v[{240+4*n}:{243+4*n}], v57, s[48:51], s64 offen nt")
            I("s_add_u32 s64, s64, 131072")
        I("s_lshl_b32 s64, s2, 14")
        for n in range(4):
            I(f"buffer_load_dwordx4 v[{240+4*n}:{243+4*n}], v56, s[56:59], s64 offen nt")
            I("s_add_u32 s64, s64, 4096")
    I("s_barrier")
    c("==== PV on 8 waves: window = w8>>1, half = w8&1")
    e("K2_PV:")
    I("v_lshrrev_b32 v44, 2, v3")
    I("v_bfe_u32 v45, v1, 4, 1")
    I("v_lshl_add_u32 v46, v9, 2, v44")
    I("v_bfe_u32 v47, v3, 1, 1")
    I("v_lshl_add_u32 v47, v45, 1, v47")
    I("v_lshl_add_u32 v56, v44, 2, v9")
    I("v_xor_b32 v47, v47, v56")
    I("v_lshlrev_b32 v47, 4, v47")
    I("v_and_b32 v56, 1, v3")
    I("v_lshl_add_u32 v47, v56, 3, v47")
    I("v_lshl_add_u32 v47, v46, 8, v47")
    I("s_lshr_b32 s64, s18, 1")
    I("s_lshl_b32 s64, s64, 15")
    I("v_add_u32 v47, s64, v47")
    I("s_and_b32 s64, s18, 1")
    I("s_lshl_b32 s64, s64, 7")
    I("v_xor_b32 v47, s64, v47")
    for nt in range(2):
        for sec in range(2):
            x = (nt << 6) ^ (sec * 32)
            I(f"v_xor_b32 v{224+nt*2+sec}, {x}, v47")
            if sec: I(f"v_add_u32 v{224+nt*2+sec}, 2048, v{224+nt*2+sec}")
    I(f"v_add_u32 v42, {PB}, v4")
    I(f"v_add_u32 v40, {LB}, v38")
    for r in range(32):
        I(f"v_mov_b32 v{128+r}, 0")
    c("O staging addrs")
    I("v_and_b32 v60, 7, v8")
    I("v_lshlrev_b32 v60, 4, v60")
    I("v_lshl_add_u32 v60, v9, 3, v60")
    I("v_lshl_add_u32 v60, v8, 7, v60")
    I("s_lshl_b32 s64, s18, 12")
    I("v_add_u32 v60, s64, v60")
    I("v_lshrrev_b32 v61, 3, v1")
    I("v_and_b32 v62, 7, v1")
    I("v_xor_b32 v63, v61, v62")
    I("v_lshlrev_b32 v63, 4, v63")
    I("v_lshl_add_u32 v63, v61, 7, v63")
    I("v_add_u32 v63, s64, v63")
    I("v_lshlrev_b32 v61, 18, v61")
    I("v_lshl_add_u32 v61, v62, 4, v61")
    I("s_lshl_b32 s68, s2, 7")
    I("s_lshl_b32 s65, s18, 15")
    I("s_add_u32 s68, s68, s65")
    I(f"s_add_u32 s68, s68, {OPB}")
    I("s_waitcnt lgkmcnt(0)")
    I("s_barrier")
    for t in range(8):
        I(f"ds_read_b128 v[{96+4*t}:{99+4*t}], v42 offset:{t*1024}")
    I("ds_read_b128 v[44:47], v40")
    for tp in range(4):
        for t2 in range(2):
            t = tp * 2 + t2
            for nt in range(2):
                for sec in range(2):
                    d = 192 + t2 * 8 + nt * 4 + sec * 2
                    I(f"ds_read_b64_tr_b16 v[{d}:{d+1}], v{224+nt*2+sec} offset:{t*4096}")
        for t2 in range(2):
            t = tp * 2 + t2
            for nt in range(2):
                d = 192 + t2 * 8 + nt * 4
                I(f"s_waitcnt lgkmcnt({6-4*t2-2*nt})")
                I(f"v_mfma_f32_32x32x16_bf16 v[{128+16*nt}:{143+16*nt}], v[{d}:{d+3}], v[{96+4*t}:{99+4*t}], v[{128+16*nt}:{143+16*nt}]")
    I("s_cmp_lg_u32 s18, 0")
    I("s_cbranch_scc1 K2_NOSTAT")
    ts(1, 2, r=250)
    I("v_add_f32 v37, v44, v45")
    I("v_add_f32 v46, v46, v47")
    I("v_add_f32 v37, v37, v46")
    I("v_lshlrev_b32 v40, 11, v8")
    I("v_cmp_lt_u32 vcc, 0, v9")
    I("v_mov_b32 v41, 0x7f000000")
    I("s_lshl_b32 s64, s2, 3")
    I(f"s_add_u32 s64, s64, {STATS}")
    I("v_cndmask_b32 v40, v40, v41, vcc")
    I("buffer_store_dwordx2 v[36:37], v40, s[40:43], s64 offen")
    e("K2_NOSTAT:")
    I("s_nop 7")
    I("s_nop 3")
    for nt in range(2):
        for q in range(4):
            b = 128 + 16 * nt + 4 * q
            k = nt * 4 + q
            I(f"v_cvt_pk_bf16_f32 v{160+2*k}, v{b}, v{b+1}")
            I(f"v_cvt_pk_bf16_f32 v{161+2*k}, v{b+2}, v{b+3}")
            I(f"v_xor_b32 v{176+k}, {k*16}, v60")
    I("s_barrier")
    for k in range(8):
        I(f"ds_write_b64 v{176+k}, v[{160+2*k}:{161+2*k}]")
    for n in range(4):
        I(f"ds_read_b128 v[{64+4*n}:{67+4*n}], v63 offset:{n*1024}")
    for n in range(4):
        I(f"s_waitcnt lgkmcnt({3-n})")
        I(f"buffer_store_dwordx4 v[{64+4*n}:{67+4*n}], v61, s[40:43], s68 offen{PST}")
        if n != 3: I(f"s_add_u32 s68, s68, {8*262144}")
    if "TS" in FL:
        I("s_waitcnt vmcnt(0)")
        I("s_cmp_ge_u32 s18, 4")
        I("s_cbranch_scc1 K2_END")
        ts(1, 3, r=250)
    e("K2_END:")
    I("s_endpgm")

def k3():
    WUV = 131072; COEF = WUV + 16384; CL = COEF + 1024; CLS = 144; CX = CL + 8 * CLS; CXS = 272
    kstart("k3_kernel")
    I("s_cmp_ge_u32 s2, 256")
    I("s_cbranch_scc1 K3_END")
    I("s_load_dwordx4 s[12:15], s[0:1], 32")
    I("s_load_dwordx2 s[72:73], s[0:1], 72")
    I("s_load_dwordx2 s[78:79], s[0:1], 96")
    common_ids()
    I("s_and_b32 s19, s18, 3")
    I("s_waitcnt lgkmcnt(0)")
    srd(40, 78, 79, WSSZ)
    srd(48, 12, 13, 4194304)
    srd(52, 14, 15, 4194304)
    srd(56, 72, 73, 1409024)
    I("v_lshlrev_b32 v4, 4, v1")
    I("v_and_b32 v48, 7, v1")
    c("hh frag (all waves)")
    I("v_mul_u32_u24 v18, 2752, v48")
    I("v_lshl_add_u32 v18, v2, 3, v18")
    I("s_lshl_b32 s64, s2, 5")
    I(f"s_add_u32 s64, s64, {HH}")
    I("s_cmp_ge_u32 s18, 4")
    I("s_cbranch_scc1 K3_B")
    c("==== group A: combine")
    if "TS" in FL: ts(2, 0)
    I("v_lshlrev_b32 v5, 3, v0")
    I("s_lshl_b32 s65, s16, 11")
    I(f"s_add_u32 s65, s65, {STATS}")
    I("buffer_load_dwordx2 v[8:9], v5, s[40:43], s65 offen")
    I("v_lshrrev_b32 v6, 3, v0")
    I("v_lshlrev_b32 v7, 5, v6")
    I("v_lshlrev_b32 v6, 10, v6")
    I("v_lshl_add_u32 v6, v48, 4, v6")
    I("s_lshl_b32 s65, s16, 3")
    I("s_add_u32 s65, s65, s17")
    I("s_lshl_b32 s65, s65, 15")
    I(f"s_add_u32 s65, s65, {OPB}")
    for k in range(8):
        I(f"buffer_load_dwordx4 v[{64+4*k}:{67+4*k}], v6, s[40:43], s65 offen offset:{k*128}")
    I("buffer_load_dwordx2 v[144:145], v18, s[40:43], s64 offen")
    I("s_waitcnt vmcnt(9)")
    I("v_mov_b32 v20, v8")
    dppred(20, 21, "v_max_f32", 32)
    I("v_sub_f32 v20, v8, v20")
    I("v_exp_f32 v20, v20")
    I("s_nop 0")
    I("v_mul_f32 v22, v20, v9")
    dppred(22, 21, "v_add_f32", 32)
    I("v_rcp_f32 v22, v22")
    I("s_nop 0")
    I("v_mul_f32 v20, v20, v22")
    I("v_lshlrev_b32 v21, 2, v0")
    I(f"v_add_u32 v21, {COEF}, v21")
    I("ds_write_b32 v21, v20")
    I(f"v_add_u32 v7, {COEF}, v7")
    I("ds_read_b128 v[24:27], v7")
    I("ds_read_b128 v[28:31], v7 offset:16")
    for q in range(8):
        I(f"v_mov_b32 v{32+q}, 0")
    I("s_waitcnt lgkmcnt(0)")
    for k in range(8):
        I(f"s_waitcnt vmcnt({8-k})")
        for q in range(4):
            I(f"v_lshlrev_b32 v40, 16, v{64+4*k+q}")
            I(f"v_and_b32 v41, 0xffff0000, v{64+4*k+q}")
            I(f"v_fmac_f32 v{32+2*q}, v{24+k}, v40")
            I(f"v_fmac_f32 v{33+2*q}, v{24+k}, v41")
    for q in range(8):
        I(f"v_add_f32_dpp v{32+q}, v{32+q}, v{32+q} row_ror:8 row_mask:0xf bank_mask:0xf")
    for q in range(8):
        I(f"v_mov_b32 v{40+q}, v{32+q}")
    I("s_nop 1")
    for q in range(8):
        I(f"v_permlane16_swap_b32 v{32+q}, v{40+q}")
    I("s_nop 1")
    for q in range(8):
        I(f"v_add_f32 v{32+q}, v{32+q}, v{40+q}")
    for q in range(4):
        I(f"v_cvt_pk_bf16_f32 v{44+q}, v{32+2*q}, v{33+2*q}")
    I("v_lshrrev_b32 v49, 5, v0")
    I(f"v_mul_u32_u24 v49, {CLS}, v49")
    I("v_lshl_add_u32 v49, v48, 4, v49")
    I(f"v_add_u32 v49, {CL}, v49")
    I("ds_write_b128 v49, v[44:47]")
    if "TS" in FL: ts(2, 1)
    I(f"v_mul_u32_u24 v49, {CLS}, v48")
    I("v_lshl_add_u32 v49, v2, 3, v49")
    I(f"v_add_u32 v49, {CL}, v49")
    I("v_lshrrev_b32 v50, 2, v3")
    I("v_lshl_add_u32 v51, v2, 2, v50")
    I("v_and_b32 v52, 7, v51")
    I("s_lshl_b32 s64, s19, 1")
    I("v_xor_b32 v53, s64, v52")
    I("v_lshlrev_b32 v54, 8, v51")
    I("v_lshl_add_u32 v54, v53, 5, v54")
    I("v_and_b32 v55, 3, v3")
    I("v_lshl_add_u32 v54, v55, 3, v54")
    I(f"v_add_u32 v54, {WUV}, v54")
    I("v_xor_b32 v55, 32, v54")
    for r in range(8):
        I(f"v_mov_b32 v{88+r}, 0")
    I("s_waitcnt lgkmcnt(0)")
    I("s_barrier")
    for ks in range(2):
        I(f"ds_read2_b64 v[{64+4*ks}:{67+4*ks}], v49 offset0:{ks*8} offset1:{ks*8+4}")
        for nt in range(2):
            d = 72 + (ks * 2 + nt) * 4
            I(f"ds_read_b64_tr_b16 v[{d}:{d+1}], v{54+nt} offset:{ks*8192}")
            I(f"ds_read_b64_tr_b16 v[{d+2}:{d+3}], v{54+nt} offset:{ks*8192+4096}")
    I("s_waitcnt lgkmcnt(0)")
    for ks in range(2):
        for nt in range(2):
            d = 72 + (ks * 2 + nt) * 4
            I(f"v_mfma_f32_16x16x32_bf16 v[{88+4*nt}:{91+4*nt}], v[{64+4*ks}:{67+4*ks}], v[{d}:{d+3}], v[{88+4*nt}:{91+4*nt}]")
    I(f"v_mul_u32_u24 v56, {4*CXS}, v2")
    I("v_lshl_add_u32 v56, v3, 1, v56")
    I("s_lshl_b32 s64, s19, 6")
    I(f"s_add_u32 s64, s64, {CX}")
    I("v_add_u32 v56, s64, v56")
    I("s_nop 7")
    for nt in range(2):
        I(f"v_cvt_pk_bf16_f32 v{96+2*nt}, v{88+4*nt}, v{89+4*nt}")
        I(f"v_cvt_pk_bf16_f32 v{97+2*nt}, v{90+4*nt}, v{91+4*nt}")
    for nt in range(2):
        I(f"ds_write_b16 v56, v{96+2*nt} offset:{nt*32}")
        I(f"ds_write_b16_d16_hi v56, v{96+2*nt} offset:{nt*32+CXS}")
        I(f"ds_write_b16 v56, v{97+2*nt} offset:{nt*32+2*CXS}")
        I(f"ds_write_b16_d16_hi v56, v{97+2*nt} offset:{nt*32+3*CXS}")
    I("s_waitcnt vmcnt(0) lgkmcnt(0)")
    I("s_barrier")
    I("s_branch K3_O")
    c("==== group B: weight loads")
    e("K3_B:")
    I("buffer_load_dwordx2 v[144:145], v18, s[40:43], s64 offen")
    I("v_lshlrev_b32 v10, 1, v2")
    I("v_xor_b32 v10, v10, v3")
    I("v_lshlrev_b32 v10, 4, v10")
    I("v_lshl_add_u32 v10, v2, 13, v10")
    I("v_xor_b32 v11, 0x80, v10")
    I("s_lshl_b32 s64, s17, 6")
    I("s_lshl_b32 s65, s19, 4")
    I("s_add_u32 s64, s64, s65")
    I("s_lshl_b32 s64, s64, 13")
    I("s_lshl_b32 s66, s16, 8")
    I("s_add_u32 s64, s64, s66")
    I("s_lshl_b32 s65, s65, 8")
    I(f"s_add_u32 s65, s65, {WUV}")
    I("s_mov_b32 m0, s65")
    for i in range(4):
        I(f"buffer_load_dwordx4 v{10 + (i & 1)}, s[48:51], s64 offen nt lds")
        if i != 3:
            I("s_add_u32 m0, m0, 1024")
            I("s_add_u32 s64, s64, 32768")
    I("s_lshl_b32 s64, s16, 17")
    I("s_lshl_b32 s65, s19, 15")
    I("s_add_u32 s64, s64, s65")
    I("s_mov_b32 m0, s65")
    for kk in range(32):
        I(f"v_xor_b32 v{12 + (kk & 3)}, {(kk & 7) * 32}, v4")
        I(f"buffer_load_dwordx4 v{12 + (kk & 3)}, s[52:55], s64 offen{WONT} lds")
        if kk != 31:
            I("s_add_u32 m0, m0, 1024")
            I("s_add_u32 s64, s64, 1024")
    I("s_lshl_b32 s64, s2, 14")
    I("s_lshl_b32 s65, s19, 10")
    I("s_add_u32 s64, s64, s65")
    for n in range(4):
        I(f"buffer_load_dwordx4 v[{128+4*n}:{131+4*n}], v4, s[56:59], s64 offen nt")
        if n != 3: I("s_add_u32 s64, s64, 4096")
    I("v_lshrrev_b32 v50, 2, v3")
    I("v_lshl_add_u32 v51, v2, 2, v50")
    I("v_and_b32 v52, 7, v51")
    I("s_lshl_b32 s64, s19, 5")
    I("v_xor_b32 v57, s64, v4")
    I("s_lshl_b32 s64, s19, 10")
    I(f"s_add_u32 s64, s64, {WUV}")
    I("v_add_u32 v57, s64, v57")
    I("v_xor_b32 v58, 0x80, v57")
    I("s_waitcnt vmcnt(36)")
    I("s_barrier")
    I("s_waitcnt vmcnt(0)")
    I("s_barrier")
    for n in range(4):
        I(f"ds_write_b128 v{57+(n&1)}, v[{128+4*n}:{131+4*n}] offset:{n*4096}")
    c("==== o-proj on 8 waves: wave w8 -> cols 64*w8..")
    e("K3_O:")
    I(f"v_mul_u32_u24 v49, {CXS}, v48")
    I("v_lshl_add_u32 v49, v2, 3, v49")
    I(f"v_add_u32 v49, {CX}, v49")
    for ks in range(4):
        I(f"ds_read2_b64 v[{64+4*ks}:{67+4*ks}], v49 offset0:{ks*8} offset1:{ks*8+4}")
    I("v_lshlrev_b32 v54, 10, v51")
    I("v_lshl_add_u32 v54, v52, 5, v54")
    I("v_and_b32 v55, 3, v3")
    I("v_lshl_add_u32 v54, v55, 3, v54")
    I("s_lshr_b32 s64, s18, 1")
    I("s_lshl_b32 s64, s64, 8")
    I("v_add_u32 v54, s64, v54")
    I("s_and_b32 s64, s18, 1")
    I("s_lshl_b32 s64, s64, 7")
    I("v_xor_b32 v54, s64, v54")
    for nt in range(4):
        I(f"v_xor_b32 v{100+nt}, {nt*32}, v54")
        I(f"v_add_u32 v{108+nt}, 0x10000, v{100+nt}")
    for r in range(16):
        I(f"v_mov_b32 v{160+r}, 0")
    for kp in range(2):
        for k2 in range(2):
            ks = kp * 2 + k2
            for nt in range(4):
                a = (100 if ks < 2 else 108) + nt
                d = 192 + (k2 * 4 + nt) * 4
                I(f"ds_read_b64_tr_b16 v[{d}:{d+1}], v{a} offset:{(ks&1)*32768}")
                I(f"ds_read_b64_tr_b16 v[{d+2}:{d+3}], v{a} offset:{(ks&1)*32768+16384}")
        for k2 in range(2):
            ks = kp * 2 + k2
            for nt in range(4):
                d = 192 + (k2 * 4 + nt) * 4
                I(f"s_waitcnt lgkmcnt({14-2*(k2*4+nt)})")
                I(f"v_mfma_f32_16x16x32_bf16 v[{160+4*nt}:{163+4*nt}], v[{64+4*ks}:{67+4*ks}], v[{d}:{d+3}], v[{160+4*nt}:{163+4*nt}]")
    I("s_cmp_ge_u32 s2, 86")
    I("s_cbranch_scc1 K3_NOFFN2")
    I("s_barrier")
    for nt in range(4):
        I(f"v_add_u32 v{100+nt}, {WUV}, v{100+nt}")
    for nt in range(4):
        d = 192 + nt * 2
        I(f"ds_read_b64_tr_b16 v[{d}:{d+1}], v{100+nt}")
    I("s_waitcnt lgkmcnt(0)")
    for nt in range(4):
        d = 192 + nt * 2
        I(f"v_mfma_f32_16x16x16_bf16 v[{160+4*nt}:{163+4*nt}], v[144:145], v[{d}:{d+1}], v[{160+4*nt}:{163+4*nt}]")
    e("K3_NOFFN2:")
    I("v_lshlrev_b32 v60, 13, v2")
    I("v_lshl_add_u32 v60, v3, 2, v60")
    I("v_cmp_lt_u32 vcc, 1, v2")
    I("v_mov_b32 v61, 0x7f000000")
    I("s_lshl_b32 s64, s2, 14")
    I("s_lshl_b32 s65, s18, 8")
    I("v_cndmask_b32 v60, v60, v61, vcc")
    I("s_add_u32 s64, s64, s65")
    I(f"s_add_u32 s64, s64, {OUTP}")
    I("s_add_u32 s65, s64, 4096")
    I("s_nop 7")
    for nt in range(4):
        for r in range(4):
            I(f"buffer_store_dword v{160+4*nt+r}, v60, s[40:43], s{64 + (r >> 1)} offen offset:{(r&1)*2048+nt*64}{OST}")
    if "TS" in FL:
        I("s_waitcnt vmcnt(0)")
        I("s_cmp_ge_u32 s18, 4")
        I("s_cbranch_scc1 K3_END")
        ts(2, 3)
    e("K3_END:")
    I("s_endpgm")

def k4():
    kstart("k4_kernel")
    I("s_cmp_ge_u32 s2, 64")
    I("s_cbranch_scc1 K4_END")
    I("s_load_dwordx2 s[4:5], s[0:1], 0")
    I("s_load_dwordx2 s[8:9], s[0:1], 80")
    I("s_load_dwordx2 s[6:7], s[0:1], 96")
    I("v_and_b32 v1, 15, v0")
    I("v_lshrrev_b32 v2, 4, v0")
    I("v_lshrrev_b32 v4, 6, v0")
    I("v_lshlrev_b32 v3, 18, v2")
    I("v_readfirstlane_b32 s18, v4")
    I("v_lshl_add_u32 v3, v1, 4, v3")
    I("s_lshl_b32 s16, s2, 8")
    I("s_waitcnt lgkmcnt(0)")
    srd(20, 4, 5, 8192)
    srd(24, 8, 9, 8192)
    srd(40, 6, 7, WSSZ)
    ts(3, 0, r=76)
    I(f"s_add_u32 s44, s16, {OUTP}")
    for k in range(16):
        I(f"buffer_load_dwordx4 v[{8+4*k}:{11+4*k}], v3, s[40:43], s44 offen")
        if k != 15: I("s_add_u32 s44, s44, 16384")
    I("v_lshlrev_b32 v4, 3, v1")
    I("s_lshl_b32 s17, s2, 7")
    I("buffer_load_dwordx2 v[72:73], v4, s[20:23], s17 offen")
    I("s_waitcnt vmcnt(1)")
    for k in range(1, 16):
        for q in range(4):
            I(f"v_add_f32 v{8+q}, v{8+q}, v{8+4*k+q}")
    for q in range(4):
        I(f"v_mov_b32 v{12+q}, v{8+q}")
    I("s_nop 1")
    for q in range(4):
        I(f"v_permlane16_swap_b32 v{8+q}, v{12+q}")
    I("s_nop 1")
    for q in range(4):
        I(f"v_add_f32 v{8+q}, v{8+q}, v{12+q}")
    for q in range(4):
        I(f"v_mov_b32 v{12+q}, v{8+q}")
    I("s_nop 1")
    for q in range(4):
        I(f"v_permlane32_swap_b32 v{8+q}, v{12+q}")
    I("s_nop 1")
    for q in range(4):
        I(f"v_add_f32 v{8+q}, v{8+q}, v{12+q}")
    I("v_lshlrev_b32 v5, 4, v0")
    I("ds_write_b128 v5, v[8:11]")
    I("s_waitcnt lgkmcnt(0)")
    I("s_barrier")
    I("v_lshlrev_b32 v5, 4, v1")
    for w in range(4):
        I(f"ds_read_b128 v[{16+4*w}:{19+4*w}], v5 offset:{w*1024}")
    I("s_waitcnt vmcnt(0) lgkmcnt(0)")
    for q in range(4):
        I(f"v_add_f32 v{16+q}, v{16+q}, v{20+q}")
        I(f"v_add_f32 v{24+q}, v{24+q}, v{28+q}")
        I(f"v_add_f32 v{16+q}, v{16+q}, v{24+q}")
    I("v_lshlrev_b32 v20, 16, v72")
    I("v_and_b32 v21, 0xffff0000, v72")
    I("v_lshlrev_b32 v22, 16, v73")
    I("v_and_b32 v23, 0xffff0000, v73")
    for q in range(4):
        I(f"v_add_f32 v{16+q}, v{16+q}, v{20+q}")
    I("v_cvt_pk_bf16_f32 v24, v16, v17")
    I("v_cvt_pk_bf16_f32 v25, v18, v19")
    I("v_cmp_lt_u32 vcc, 15, v0")
    I("v_mov_b32 v6, 0x7f000000")
    I("s_nop 1")
    I("v_cndmask_b32 v4, v4, v6, vcc")
    I("buffer_store_dwordx2 v[24:25], v4, s[24:27], s17 offen")
    if "TS" in FL:
        I("s_waitcnt vmcnt(0)")
        ts(3, 3, r=76)
    e("K4_END:")
    I("s_endpgm")

e("; @launch kernel=k1_kernel grid=(256,1,1) block=(512,1,1) lds=160256")
e("; @launch kernel=k2_kernel grid=(256,1,1) block=(512,1,1) lds=163840")
e("; @launch kernel=k3_kernel grid=(256,1,1) block=(512,1,1) lds=154112")
e("; @launch kernel=k4_kernel grid=(64,1,1) block=(256,1,1) lds=4096")
e('.amdgcn_target "amdgcn-amd-amdhsa--gfx950"')
e(".text")
k1(); k2(); k3(); k4()
e('.section .rodata,"a"')
for n, v in (("k1_kernel", 256), ("k2_kernel", 256), ("k3_kernel", 256), ("k4_kernel", 80)):
    e(".p2align 6")
    kdesc(n, v)
open(sys.argv[1], "w").write("\n".join(L) + "\n")
```

```python
import sys, os, struct
FL = os.environ.get("FL", "").split(",")
L = []
def e(s=""): L.append(s)
def c(s): L.append("    ; " + s)
def I(s): L.append("    " + s)
def f2u(x): return struct.unpack("<I", struct.pack("<f", x))[0]

QABS = 0x0
HH   = 0x40000
STATS= 0x50000
OPB  = 0x100000
OUTP = 0x1100000
TSOFF= 0x1500000
WSSZ = 0x1600000
SC = (128 ** -0.5) * 1.4426950408889634
TSX = 1 if "TS" in FL else 0
PST = os.environ.get("PST", " sc1")
PFN = int(os.environ.get("PFN", "32"))
PFT = int(os.environ.get("PFT", "12"))
K2NT = os.environ.get("K2NT", " nt")
WONT = os.environ.get("WONT", " nt")
OST = os.environ.get("OST", "")
PFD = int(os.environ.get("PFD", "1"))
PFX = int(os.environ.get("PFX", "0"))
PFNF = int(os.environ.get("PFNF", "8"))
FNT = os.environ.get("FNT", " nt")

def srd(d, lo, hi, nbytes):
    I(f"s_mov_b32 s{d}, s{lo}")
    I(f"s_and_b32 s{d+1}, s{hi}, 0xffff")
    I(f"s_mov_b32 s{d+2}, {nbytes}")
    I(f"s_mov_b32 s{d+3}, 0x00020000")

def kstart(name):
    e(f".globl {name}"); e(".p2align 8"); e(f".type {name},@function"); e(f"{name}:")

def kdesc(name, vgpr, sgpr=102):
    e(f".amdhsa_kernel {name}")
    e(f"  .amdhsa_next_free_vgpr {vgpr}")
    e(f"  .amdhsa_next_free_sgpr {sgpr}")
    e(f"  .amdhsa_accum_offset {(vgpr+3)//4*4}")
    e("  .amdhsa_group_segment_fixed_size 0")
    e("  .amdhsa_kernarg_size 104")
    e("  .amdhsa_user_sgpr_count 2")
    e("  .amdhsa_user_sgpr_kernarg_segment_ptr 1")
    e("  .amdhsa_system_sgpr_workgroup_id_x 1")
    e(".end_amdhsa_kernel")

def ts(kid, idx, r=250):
    if "TS" not in FL: return
    I("s_memrealtime s[90:91]")
    I("s_waitcnt lgkmcnt(0)")
    I(f"v_mov_b32 v{r}, s90")
    I("s_lshl_b32 s92, s2, 7")
    I("s_lshl_b32 s93, s18, 5")
    I("s_add_u32 s92, s92, s93")
    I(f"s_add_u32 s92, s92, {TSOFF + kid*65536 + idx*4}")
    I(f"v_and_b32 v{r+2}, 63, v0")
    I(f"v_cmp_eq_u32 vcc, 0, v{r+2}")
    I(f"v_mov_b32 v{r+1}, 0x7f000000")
    I("s_nop 1")
    I(f"v_cndmask_b32 v{r+1}, v{r+1}, 0, vcc")
    I(f"buffer_store_dword v{r}, v{r+1}, s[40:43], s92 offen")

def ht(kid, idx, lab):
    if "HT" not in FL: return
    I("s_cmp_lg_u32 s2, 5")
    I(f"s_cbranch_scc1 HT_{lab}")
    I("s_cmp_lg_u32 s18, 0")
    I(f"s_cbranch_scc1 HT_{lab}")
    I("s_memrealtime s[90:91]")
    I("s_waitcnt lgkmcnt(0)")
    I("v_mov_b32 v250, s90")
    I(f"v_mov_b32 v251, {TSOFF + 0x40000 + kid*8 + idx*4}")
    I("buffer_store_dword v250, v251, s[40:43], 0 offen sc1")
    I("s_waitcnt vmcnt(0)")
    e(f"HT_{lab}:")

def xor32(v, tmp, op):
    I(f"v_mov_b32 v{tmp}, v{v}")
    I("s_nop 1")
    I(f"v_permlane32_swap_b32 v{v}, v{tmp}")
    I("s_nop 1")
    I(f"{op} v{v}, v{v}, v{tmp}")

def dppred(v, tmp, op, width):
    for m in ("quad_perm:[1,0,3,2]", "quad_perm:[2,3,0,1]", "row_half_mirror", "row_mirror"):
        I("s_nop 1")
        I(f"{op}_dpp v{v}, v{v}, v{v} {m} row_mask:0xf bank_mask:0xf")
    if width >= 32:
        I(f"v_mov_b32 v{tmp}, v{v}")
        I("s_nop 1")
        I(f"v_permlane16_swap_b32 v{v}, v{tmp}")
        I("s_nop 1")
        I(f"{op} v{v}, v{v}, v{tmp}")
    if width >= 64:
        xor32(v, tmp, op)

def common_ids():
    I("s_and_b32 s16, s2, 31")
    I("s_lshr_b32 s17, s2, 5")
    I("v_lshrrev_b32 v2, 6, v0")
    I("v_and_b32 v1, 63, v0")
    I("s_nop 0")
    I("v_readfirstlane_b32 s18, v2")
    I("v_lshrrev_b32 v2, 4, v1")
    I("v_and_b32 v3, 15, v1")
    I("s_mov_b32 s19, s18")

def k1():
    XN = 131072; XNS = 1040; QB = XN + 8 * XNS; QS = 272; FST = QB + 16 * QS; FST = (FST + 255) // 256 * 256
    assert FST + 16384 <= 163840
    PF1 = int(os.environ.get("PF1", "0")); PF2 = int(os.environ.get("PF2", "0"))
    kstart("k1_kernel")
    I("s_cmp_ge_u32 s2, 256")
    I("s_cbranch_scc1 K1_END")
    I("s_load_dwordx4 s[4:7], s[0:1], 0")
    I("s_load_dwordx4 s[8:11], s[0:1], 16")
    I("s_load_dwordx4 s[68:71], s[0:1], 56")
    I("s_load_dwordx2 s[78:79], s[0:1], 96")
    common_ids()
    I("s_and_b32 s19, s18, 3")
    I("v_lshlrev_b32 v4, 4, v1")
    I("v_lshrrev_b32 v28, 2, v3")
    I("v_lshl_add_u32 v28, v2, 2, v28")
    I("v_and_b32 v29, 7, v28")
    I("v_and_b32 v30, 3, v3")
    I("v_and_b32 v31, 7, v1")
    I(f"v_mul_u32_u24 v31, {XNS}, v31")
    I("v_lshl_add_u32 v31, v2, 3, v31")
    I("s_lshl_b32 s64, s19, 8")
    I(f"s_add_u32 s64, s64, {XN}")
    I("v_add_u32 v31, s64, v31")
    I("s_waitcnt lgkmcnt(0)")
    srd(20, 4, 5, 8192)
    srd(24, 8, 9, 4194304)
    srd(28, 10, 11, 4194304)
    srd(32, 68, 69, 1409024)
    srd(36, 70, 71, 1409024)
    srd(40, 78, 79, WSSZ)
    srd(44, 6, 7, 33554432)
    I("s_cmp_ge_u32 s18, 4")
    I("s_cbranch_scc1 K1_B")
    c("==== A waves")
    ht(0, 0, "a")
    ts(0, 0)
    I("v_lshlrev_b32 v6, 1, v2")
    I("v_xor_b32 v6, v6, v3")
    I("v_lshlrev_b32 v6, 4, v6")
    I("v_lshl_add_u32 v6, v2, 13, v6")
    I("v_xor_b32 v7, 0x80, v6")
    I("s_lshl_b32 s64, s19, 20")
    I("s_lshl_b32 s65, s16, 8")
    I("s_add_u32 s64, s64, s65")
    I("s_lshl_b32 s66, s19, 15")
    I("s_mov_b32 m0, s66")
    I("s_barrier")
    for i in range(32):
        I(f"buffer_load_dwordx4 v{6 + (i & 1)}, s[24:27], s64 offen nt lds")
        if i != 31:
            I("s_add_u32 m0, m0, 1024")
            I("s_add_u32 s64, s64, 32768")
    I("v_lshlrev_b32 v8, 13, v3")
    I("v_lshl_add_u32 v8, v2, 4, v8")
    I("s_lshl_b32 s64, s17, 6")
    I("s_lshl_b32 s66, s19, 4")
    I("s_add_u32 s64, s64, s66")
    I("s_lshl_b32 s64, s64, 13")
    I("s_add_u32 s64, s64, s65")
    for ks in range(4):
        I(f"buffer_load_dwordx4 v[{80+4*ks}:{83+4*ks}], v8, s[28:31], s64 offen offset:{ks*64} nt")
    c("addresses")
    I("v_and_b32 v70, 7, v1")
    I(f"v_mul_u32_u24 v70, {XNS}, v70")
    I("v_lshl_add_u32 v70, v2, 3, v70")
    I(f"v_add_u32 v70, {XN}, v70")
    I("s_lshl_b32 s64, s19, 1")
    I("v_xor_b32 v73, s64, v29")
    I("v_lshlrev_b32 v74, 8, v28")
    I("v_lshl_add_u32 v74, v73, 5, v74")
    I("v_lshl_add_u32 v74, v30, 3, v74")
    I("v_xor_b32 v75, 32, v74")
    I("v_add_u32 v76, 0x10000, v74")
    I("v_add_u32 v77, 0x10000, v75")
    I(f"v_mul_u32_u24 v24, {4*QS}, v2")
    I("v_lshl_add_u32 v24, v3, 1, v24")
    I("s_lshl_b32 s64, s19, 6")
    I(f"s_add_u32 s64, s64, {QB}")
    I("v_add_u32 v24, s64, v24")
    I(f"v_mul_u32_u24 v25, {QS}, v3")
    I("v_lshl_add_u32 v25, v2, 4, v25")
    I(f"v_add_u32 v25, {QB}, v25")
    I("v_lshlrev_b32 v26, 15, v3")
    I("v_lshl_add_u32 v26, v2, 3, v26")
    I("v_cmp_lt_u32 vcc, 7, v3")
    I("v_mov_b32 v27, 0x7f000000")
    I("s_lshl_b32 s70, s16, 10")
    I("s_lshl_b32 s65, s17, 7")
    I("v_cndmask_b32 v26, v26, v27, vcc")
    I("s_add_u32 s70, s70, s65")
    I("s_lshl_b32 s65, s19, 5")
    I("s_add_u32 s70, s70, s65")
    for r in range(12):
        I(f"v_mov_b32 v{8+r}, 0")
    I("s_waitcnt vmcnt(4)")
    I("s_barrier")
    ts(0, 1, r=120)
    for ch in range(4):
        for k4 in range(4):
            ks = ch * 4 + k4
            I(f"ds_read2_b64 v[{128+64*(ch&1)+4*k4}:{131+64*(ch&1)+4*k4}], v70 offset0:{ks*8} offset1:{ks*8+4}")
            for nt in range(2):
                base = (74 + nt) if ks < 8 else (76 + nt)
                off = (ks & 7) * 8192
                d = 144 + 64 * (ch & 1) + (k4 * 2 + nt) * 4
                I(f"ds_read_b64_tr_b16 v[{d}:{d+1}], v{base} offset:{off}")
                I(f"ds_read_b64_tr_b16 v[{d+2}:{d+3}], v{base} offset:{off+4096}")
            if k4 == 2: I("s_waitcnt lgkmcnt(10)")
        for k4 in range(4):
            I(f"s_waitcnt lgkmcnt({5*(3-k4)})")
            for nt in range(2):
                d = 144 + 64 * (ch & 1) + (k4 * 2 + nt) * 4
                a = 128 + 64 * (ch & 1) + 4 * k4
                I(f"v_mfma_f32_16x16x32_bf16 v[{8+4*nt}:{11+4*nt}], v[{a}:{a+3}], v[{d}:{d+3}], v[{8+4*nt}:{11+4*nt}]")
    ts(0, 5, r=120)
    I("s_nop 7")
    for nt in range(2):
        I(f"v_cvt_pk_bf16_f32 v{20+2*nt}, v{8+4*nt}, v{9+4*nt}")
        I(f"v_cvt_pk_bf16_f32 v{21+2*nt}, v{10+4*nt}, v{11+4*nt}")
    for nt in range(2):
        I(f"ds_write_b16 v24, v{20+2*nt} offset:{nt*32}")
        I(f"ds_write_b16_d16_hi v24, v{20+2*nt} offset:{nt*32+QS}")
        I(f"ds_write_b16 v24, v{21+2*nt} offset:{nt*32+2*QS}")
        I(f"ds_write_b16_d16_hi v24, v{21+2*nt} offset:{nt*32+3*QS}")
    I("s_waitcnt lgkmcnt(0)")
    I("s_barrier")
    for ks in range(4):
        I(f"ds_read_b128 v[{128+4*ks}:{131+4*ks}], v25 offset:{ks*64}")
    I("s_waitcnt vmcnt(0) lgkmcnt(0)")
    for ks in range(4):
        I(f"v_mfma_f32_16x16x32_bf16 v[16:19], v[{80+4*ks}:{83+4*ks}], v[{128+4*ks}:{131+4*ks}], v[16:19]")
    I("s_nop 7")
    I("v_cvt_pk_bf16_f32 v12, v16, v17")
    I("v_cvt_pk_bf16_f32 v13, v18, v19")
    I("buffer_store_dwordx2 v[12:13], v26, s[40:43], s70 offen")
    ht(0, 1, "b")
    if "TS" in FL:
        I("s_waitcnt vmcnt(0)")
        ts(0, 2)
    I("s_branch K1_END")
    c("==== B waves: LN, FFN, prefetch")
    e("K1_B:")
    if "CPF" in FL:
        c("touch the code of the later kernels so that their instruction fetch hits L2")
        I("s_getpc_b64 s[84:85]")
        e("K1_PC:")
        I("s_add_u32 s84, s84, k2_kernel-K1_PC")
        I("s_addc_u32 s85, s85, 0")
        I("v_and_b32 v6, 255, v0")
        I("v_lshlrev_b32 v6, 6, v6")
        I("v_cmp_gt_u32 vcc, KALL_END-k2_kernel, v6")
        I("s_and_saveexec_b64 s[86:87], vcc")
        I("s_cbranch_execz K1_PCD")
        I("global_load_dword v7, v6, s[84:85]")
        e("K1_PCD:")
        I("s_mov_b64 exec, s[86:87]")
    I("s_lshl_b32 s64, s19, 11")
    I("v_lshlrev_b32 v5, 5, v1")
    I("buffer_load_dwordx4 v[48:51], v5, s[20:23], s64 offen")
    I("buffer_load_dwordx4 v[52:55], v5, s[20:23], s64 offen offset:16")
    I("s_and_b32 s74, s2, 7")
    I("s_mul_i32 s74, s74, 11")
    I("s_lshr_b32 s75, s2, 3")
    I("s_add_u32 s74, s74, s75")
    I("s_cmp_ge_u32 s2, 88")
    I("s_cselect_b32 s74, 0x1000, s74")
    c("ffn loads: for non-ffn wgs use an out-of-range offset (returns 0 quickly)")
    I("v_lshrrev_b32 v24, 1, v1")
    I("v_mul_u32_u24 v24, 2752, v24")
    I("v_and_b32 v25, 1, v1")
    I("v_lshl_add_u32 v24, v25, 4, v24")
    I(f"s_mul_i32 s64, s19, {128*2752}")
    I("s_lshl_b32 s65, s74, 5")
    I("s_add_u32 s64, s64, s65")
    I("s_cmp_ge_u32 s74, 86")
    I("s_cselect_b32 s64, 0x40000000, s64")
    for n in range(4):
        I(f"buffer_load_dwordx4 v[{96+4*n}:{99+4*n}], v24, s[32:35], s64 offen{FNT}")
        I(f"buffer_load_dwordx4 v[{112+4*n}:{115+4*n}], v24, s[36:39], s64 offen{FNT}")
        if n != 3: I(f"s_add_u32 s64, s64, {32*2752}")
    I("s_barrier")
    I("s_waitcnt vmcnt(8)")
    for k in range(8):
        I(f"v_lshlrev_b32 v{56+2*k}, 16, v{48+k}")
        I(f"v_and_b32 v{57+2*k}, 0xffff0000, v{48+k}")
    I("v_add_f32 v8, v56, v57"); I("v_add_f32 v9, v58, v59"); I("v_add_f32 v10, v60, v61"); I("v_add_f32 v11, v62, v63")
    I("v_add_f32 v8, v8, v64"); I("v_add_f32 v9, v9, v65"); I("v_add_f32 v10, v10, v66"); I("v_add_f32 v11, v11, v67")
    I("v_add_f32 v8, v8, v68"); I("v_add_f32 v9, v9, v69"); I("v_add_f32 v10, v10, v70"); I("v_add_f32 v11, v11, v71")
    I("v_add_f32 v8, v8, v9"); I("v_add_f32 v10, v10, v11"); I("v_add_f32 v8, v8, v10")
    dppred(8, 9, "v_add_f32", 32)
    I("v_mul_f32 v8, 0x3b000000, v8")
    for k in range(16):
        I(f"v_sub_f32 v{72+k}, v{56+k}, v8")
    I("v_mul_f32 v9, v72, v72"); I("v_mul_f32 v10, v73, v73"); I("v_mul_f32 v11, v74, v74"); I("v_mul_f32 v12, v75, v75")
    for k in range(4, 16, 4):
        for q in range(4):
            I(f"v_fmac_f32 v{9+q}, v{72+k+q}, v{72+k+q}")
    I("v_add_f32 v9, v9, v10"); I("v_add_f32 v11, v11, v12"); I("v_add_f32 v12, v9, v11")
    dppred(12, 9, "v_add_f32", 32)
    I("v_mul_f32 v12, 0x3b000000, v12")
    I("v_cvt_pk_bf16_f32 v9, v8, v12")
    I("v_lshlrev_b32 v8, 16, v9")
    I("v_and_b32 v12, 0xffff0000, v9")
    I(f"v_add_f32 v12, {f2u(1e-5):#x}, v12")
    I("v_cvt_pk_bf16_f32 v12, v12, v12")
    I("v_lshlrev_b32 v12, 16, v12")
    I("v_sqrt_f32 v12, v12")
    I("s_nop 0")
    I("v_cvt_pk_bf16_f32 v12, v12, v12")
    I("v_lshlrev_b32 v12, 16, v12")
    I("v_rcp_f32 v9, v12")
    for k in range(16):
        I(f"v_sub_f32 v{56+k}, v{56+k}, v8")
    for k in range(8):
        I(f"v_cvt_pk_bf16_f32 v{72+k}, v{56+2*k}, v{57+2*k}")
    for k in range(8):
        I(f"v_lshlrev_b32 v{56+2*k}, 16, v{72+k}")
        I(f"v_and_b32 v{57+2*k}, 0xffff0000, v{72+k}")
    for k in range(16):
        I(f"v_mul_f32 v{56+k}, v{56+k}, v9")
    for k in range(8):
        I(f"v_cvt_pk_bf16_f32 v{72+k}, v{56+2*k}, v{57+2*k}")
    I("v_lshrrev_b32 v10, 5, v1")
    I("s_lshl_b32 s64, s19, 1")
    I("v_add_u32 v10, s64, v10")
    I(f"v_mul_u32_u24 v10, {XNS}, v10")
    I("v_and_b32 v11, 31, v1")
    I("v_lshl_add_u32 v10, v11, 5, v10")
    I(f"v_add_u32 v10, {XN}, v10")
    I("ds_write_b128 v10, v[72:75]")
    I("ds_write_b128 v10, v[76:79] offset:16")
    c("prefetch part 1 (no waits)")
    I("s_lshl_b32 s76, s2, 17")
    I("s_lshl_b32 s64, s19, 15")
    I("s_add_u32 s76, s76, s64")
    for n in range(PF1):
        I(f"buffer_load_dwordx4 v[{160+4*(n%16)}:{163+4*(n%16)}], v4, s[44:47], s76 offen nt")
        I("s_add_u32 s76, s76, 1024")
    I("s_waitcnt lgkmcnt(0)")
    I("s_barrier")
    I("s_cmp_ge_u32 s74, 86")
    I("s_cbranch_scc1 K1_BNOF")
    for ks in range(4):
        I(f"ds_read2_b64 v[{32+4*ks}:{35+4*ks}], v31 offset0:{ks*8} offset1:{ks*8+4}")
    I("s_lshl_b32 s66, s19, 12")
    I(f"s_add_u32 s66, s66, {FST}")
    I("v_add_u32 v25, s66, v4")
    I("v_lshlrev_b32 v26, 5, v28")
    I("v_lshl_add_u32 v26, v30, 3, v26")
    I("v_add_u32 v26, s66, v26")
    for r in range(8):
        I(f"v_mov_b32 v{8+r}, 0")
    I(f"s_waitcnt vmcnt({PF1})")
    for m in range(2):
        for n in range(4):
            I(f"ds_write_b128 v25, v[{96+16*m+4*n}:{99+16*m+4*n}] offset:{n*1024}")
        for ks in range(4):
            d = 128 + (m * 4 + ks) * 4
            I(f"ds_read_b64_tr_b16 v[{d}:{d+1}], v26 offset:{ks*1024}")
            I(f"ds_read_b64_tr_b16 v[{d+2}:{d+3}], v26 offset:{ks*1024+512}")
    I("s_waitcnt lgkmcnt(0)")
    for m in range(2):
        for ks in range(4):
            d = 128 + (m * 4 + ks) * 4
            I(f"v_mfma_f32_16x16x32_bf16 v[{8+4*m}:{11+4*m}], v[{32+4*ks}:{35+4*ks}], v[{d}:{d+3}], v[{8+4*m}:{11+4*m}]")
    I("v_lshlrev_b32 v17, 5, v1")
    I("v_add_u32 v18, s66, v17")
    I(f"v_add_u32 v17, {FST}, v17")
    I("s_nop 7")
    I("ds_write_b128 v18, v[8:11]")
    I("ds_write_b128 v18, v[12:15] offset:16")
    e("K1_BNOF:")
    for n in range(PF2):
        I(f"buffer_load_dwordx4 v[{160+4*(n%16)}:{163+4*(n%16)}], v4, s[44:47], s76 offen nt")
        I("s_add_u32 s76, s76, 1024")
    I("s_waitcnt lgkmcnt(0)")
    I("s_barrier")
    I("s_cmp_ge_u32 s74, 86")
    I("s_cbranch_scc1 K1_BEND")
    I("s_cmp_lg_u32 s18, 4")
    I("s_cbranch_scc1 K1_BEND")
    for w in range(1, 4):
        I(f"ds_read_b128 v[{96+8*w}:{99+8*w}], v17 offset:{w*4096}")
        I(f"ds_read_b128 v[{100+8*w}:{103+8*w}], v17 offset:{w*4096+16}")
    I("s_waitcnt lgkmcnt(0)")
    for w in range(1, 4):
        for r in range(8):
            I(f"v_add_f32 v{8+r}, v{8+r}, v{96+8*w+r}")
    for r in range(4):
        I(f"v_cvt_pk_bf16_f32 v{96+r}, v{8+r}, v{12+r}")
    for r in range(4):
        I(f"v_lshlrev_b32 v{8+r}, 16, v{96+r}")
        I(f"v_and_b32 v{12+r}, 0xffff0000, v{96+r}")
    I(f"s_mov_b32 s64, {f2u(0.044715):#x}")
    I(f"s_mov_b32 s65, {f2u(-2.0 * 0.7978845608028654 * 1.4426950408889634):#x}")
    for r in range(4):
        I(f"v_mul_f32 v{96+r}, v{8+r}, v{8+r}")
        I(f"v_mul_f32 v{96+r}, s64, v{96+r}")
        I(f"v_fma_f32 v{96+r}, v{96+r}, v{8+r}, v{8+r}")
        I(f"v_mul_f32 v{96+r}, s65, v{96+r}")
        I(f"v_exp_f32 v{96+r}, v{96+r}")
        I("s_nop 0")
        I(f"v_add_f32 v{96+r}, 1.0, v{96+r}")
        I(f"v_rcp_f32 v{96+r}, v{96+r}")
        I("s_nop 0")
        I(f"v_mul_f32 v{96+r}, v{96+r}, v{8+r}")
    for r in range(4):
        I(f"v_cvt_pk_bf16_f32 v{96+r}, v{96+r}, v{96+r}")
        I(f"v_lshlrev_b32 v{96+r}, 16, v{96+r}")
        I(f"v_mul_f32 v{96+r}, v{96+r}, v{12+r}")
        I(f"v_cvt_pk_bf16_f32 v{96+r}, v{96+r}, v{96+r}")
    I("v_mul_u32_u24 v100, 11008, v2")
    I("v_lshl_add_u32 v100, v3, 1, v100")
    I("v_cmp_lt_u32 vcc, 1, v2")
    I("v_mov_b32 v101, 0x7f000000")
    I("s_lshl_b32 s64, s74, 5")
    I(f"s_add_u32 s64, s64, {HH}")
    I("v_cndmask_b32 v100, v100, v101, vcc")
    I("v_add_u32 v101, 5504, v100")
    for r in range(4):
        I(f"buffer_store_short v{96+r}, v{100+(r>>1)}, s[40:43], s64 offen offset:{(r&1)*2752}")
    e("K1_BEND:")
    I("s_waitcnt vmcnt(0)")
    if "TS" in FL:
        I("s_sub_u32 s18, s18, 4")
        I("s_add_u32 s2, s2, 256")
        ts(0, 4, r=120)
    e("K1_END:")
    I("s_endpgm")

def k2():
    STG = 131072
    PB = STG; MX = STG + 8192; LB = MX + 512
    kstart("k2_kernel")
    I("s_cmp_ge_u32 s2, 256")
    I("s_cbranch_scc1 K2_END")
    I("s_load_dwordx2 s[4:5], s[0:1], 8")
    I("s_load_dwordx4 s[12:15], s[0:1], 32")
    I("s_load_dwordx2 s[72:73], s[0:1], 72")
    I("s_load_dwordx2 s[78:79], s[0:1], 96")
    common_ids()
    I("s_and_b32 s19, s18, 3")
    I("v_lshlrev_b32 v4, 4, v1")
    I("v_and_b32 v8, 31, v1")
    I("v_lshrrev_b32 v9, 5, v1")
    I("s_waitcnt lgkmcnt(0)")
    srd(40, 78, 79, WSSZ)
    srd(44, 4, 5, 33554432)
    srd(48, 12, 13, 4194304)
    srd(52, 14, 15, 4194304)
    srd(56, 72, 73, 1409024)
    I("s_cmp_ge_u32 s18, 4")
    I("s_cbranch_scc1 K2_B")
    c("==== A waves: c_kv DMA (window major), QK")
    ht(1, 0, "c")
    ts(1, 0)
    I("v_lshlrev_b32 v5, 2, v2")
    I("v_xor_b32 v5, v5, v3")
    I("v_lshlrev_b32 v5, 4, v5")
    I("v_lshl_add_u32 v5, v2, 10, v5")
    for q in range(4):
        I(f"v_xor_b32 v{10+q}, {q*16}, v5")
    I("s_lshl_b32 s64, s2, 17")
    I("s_lshl_b32 s65, s19, 15")
    I("s_add_u32 s64, s64, s65")
    I("s_lshl_b32 s65, s19, 13")
    for win in range(4):
        I(f"s_add_u32 s66, s64, {win*256}")
        I(f"s_add_u32 s67, s65, {win*32768}")
        I("s_mov_b32 m0, s67")
        I("s_nop 0")
        for kk in range(8):
            I(f"buffer_load_dwordx4 v{10+(kk&3)}, s[44:47], s66 offen{K2NT} lds")
            if kk != 7:
                I("s_add_u32 m0, m0, 1024")
                I("s_add_u32 s66, s66, 4096")
    c("Q frag read addrs")
    I("v_and_b32 v27, 15, v8")
    I("v_xor_b32 v27, v27, v9")
    I("v_lshlrev_b32 v27, 4, v27")
    I("v_lshl_add_u32 v27, v8, 10, v27")
    I(f"v_add_u32 v27, {STG}, v27")
    for q in range(8):
        I(f"v_xor_b32 v{40+q}, {q*32}, v27")
    c("QK addrs v[12:19]/v[20..27]")
    I("v_and_b32 v11, 3, v8")
    I("v_lshlrev_b32 v11, 2, v11")
    I("v_bfe_u32 v12, v8, 2, 2")
    I("v_or_b32 v11, v11, v12")
    I("v_xor_b32 v11, v11, v9")
    I("v_lshlrev_b32 v11, 4, v11")
    I("v_lshl_add_u32 v11, v8, 8, v11")
    I("v_add_u32 v11, s65, v11")
    for q in range(8):
        I(f"v_xor_b32 v{48+q}, {q*32}, v11")
        I(f"v_add_u32 v{56+q}, 0x10000, v{48+q}")
    for r in range(16):
        I(f"v_mov_b32 v{20+r}, 0")
    I("s_barrier")
    for st in range(32):
        I(f"ds_read_b128 v[{64+4*st}:{67+4*st}], v{40+(st&7)} offset:{(st>>3)*256}")
        if st == 15: I("s_waitcnt lgkmcnt(0)")
    for win in range(4):
        I(f"s_waitcnt vmcnt({8*(3-win)}) lgkmcnt(0)")
        if win == 3: ts(1, 1)
        for q in range(8):
            a = (48 if win < 2 else 56) + q
            I(f"ds_read_b128 v[{192+4*q}:{195+4*q}], v{a} offset:{(win&1)*32768}")
        for q in range(8):
            st = win * 8 + q
            I(f"s_waitcnt lgkmcnt({7-q})")
            I(f"v_mfma_f32_32x32x16_bf16 v[20:35], v[{192+4*q}:{195+4*q}], v[{64+4*st}:{67+4*st}], v[20:35]")
    I("v_lshlrev_b32 v38, 4, v8")
    I("s_lshl_b32 s64, s19, 2")
    I(f"s_add_u32 s64, s64, {MX}")
    I("v_add_u32 v39, s64, v38")
    I("s_lshl_b32 s64, s19, 11")
    I(f"s_add_u32 s64, s64, {PB}")
    I("v_add_u32 v42, s64, v4")
    I("s_nop 7")
    I("v_max3_f32 v36, v20, v21, v22")
    for r in range(3, 15, 2):
        I(f"v_max3_f32 v36, v36, v{20+r}, v{21+r}")
    I("v_max_f32 v36, v36, v35")
    xor32(36, 37, "v_max_f32")
    I("s_barrier")
    I("ds_write_b32 v39, v36")
    I("s_waitcnt lgkmcnt(0)")
    I("s_barrier")
    I(f"v_add_u32 v40, {MX}, v38")
    I("ds_read_b128 v[44:47], v40")
    I(f"s_mov_b32 s64, {f2u(SC):#x}")
    I("s_waitcnt lgkmcnt(0)")
    I("v_max3_f32 v36, v44, v45, v46")
    I("v_max_f32 v36, v36, v47")
    I("v_mul_f32 v36, s64, v36")
    for r in range(16):
        I(f"v_fma_f32 v{20+r}, v{20+r}, s64, -v36")
    for r in range(16):
        I(f"v_exp_f32 v{20+r}, v{20+r}")
    I("s_nop 0")
    for r in range(8):
        I(f"v_cvt_pk_bf16_f32 v{48+r}, v{20+2*r}, v{21+2*r}")
    I("ds_write_b128 v42, v[48:51]")
    I("ds_write_b128 v42, v[52:55] offset:1024")
    I("v_add_f32 v37, v20, v21"); I("v_add_f32 v41, v22, v23"); I("v_add_f32 v43, v24, v25"); I("v_add_f32 v44, v26, v27")
    I("v_add_f32 v37, v37, v28"); I("v_add_f32 v41, v41, v29"); I("v_add_f32 v43, v43, v30"); I("v_add_f32 v44, v44, v31")
    I("v_add_f32 v37, v37, v32"); I("v_add_f32 v41, v41, v33"); I("v_add_f32 v43, v43, v34"); I("v_add_f32 v44, v44, v35")
    I("v_add_f32 v37, v37, v41"); I("v_add_f32 v43, v43, v44"); I("v_add_f32 v37, v37, v43")
    xor32(37, 41, "v_add_f32")
    I(f"v_add_u32 v39, {LB-MX}, v39")
    I("ds_write_b32 v39, v37")
    I("s_branch K2_PV")
    c("==== B waves: Q staging, K3 weight prefetch")
    e("K2_B:")
    I("s_lshl_b32 s64, s17, 15")
    I("s_lshl_b32 s65, s19, 13")
    I("s_add_u32 s64, s64, s65")
    for n in range(8):
        I(f"buffer_load_dwordx4 v[{192+4*n}:{195+4*n}], v4, s[40:43], s64 offen offset:{(n&3)*1024}")
        if n == 3: I("s_add_u32 s64, s64, 4096")
    I("s_and_b32 s64, s19, 1")
    I("s_lshl_b32 s64, s64, 7")
    I("v_xor_b32 v26, s64, v4")
    I(f"s_add_u32 s64, s65, {STG}")
    I("v_add_u32 v26, s64, v26")
    for n in range(8):
        I(f"v_xor_b32 v{16+n}, {n*16}, v26")
    I("v_lshlrev_b32 v38, 4, v8")
    I("s_waitcnt vmcnt(0)")
    for n in range(8):
        I(f"ds_write_b128 v{16+n}, v[{192+4*n}:{195+4*n}] offset:{n*1024}")
    I("s_waitcnt lgkmcnt(0)")
    I("s_barrier")
    I("s_barrier")
    if "NOPF3" not in FL:
        I("v_and_b32 v56, 255, v0")
        I("v_lshrrev_b32 v57, 4, v56")
        I("v_lshlrev_b32 v56, 4, v56")
        I("s_lshl_b32 s64, s16, 17")
        I("s_lshl_b32 s65, s17, 14")
        I("s_add_u32 s64, s64, s65")
        for n in range(4):
            I(f"buffer_load_dwordx4 v[{240+4*n}:{243+4*n}], v56, s[52:55], s64 offen nt")
            I("s_add_u32 s64, s64, 4096")
        I("v_lshlrev_b32 v57, 13, v57")
        I("v_lshl_add_u32 v57, v3, 4, v57")
        I("s_lshl_b32 s64, s17, 19")
        I("s_lshl_b32 s65, s16, 8")
        I("s_add_u32 s64, s64, s65")
        for n in range(4):
            I(f"buffer_load_dwordx4 v[{240+4*n}:{243+4*n}], v57, s[48:51], s64 offen nt")
            I("s_add_u32 s64, s64, 131072")
        I("s_lshl_b32 s64, s2, 14")
        for n in range(4):
            I(f"buffer_load_dwordx4 v[{240+4*n}:{243+4*n}], v56, s[56:59], s64 offen nt")
            I("s_add_u32 s64, s64, 4096")
    I("s_barrier")
    c("==== PV on 8 waves: window = w8>>1, half = w8&1")
    e("K2_PV:")
    I("v_lshrrev_b32 v44, 2, v3")
    I("v_bfe_u32 v45, v1, 4, 1")
    I("v_lshl_add_u32 v46, v9, 2, v44")
    I("v_bfe_u32 v47, v3, 1, 1")
    I("v_lshl_add_u32 v47, v45, 1, v47")
    I("v_lshl_add_u32 v56, v44, 2, v9")
    I("v_xor_b32 v47, v47, v56")
    I("v_lshlrev_b32 v47, 4, v47")
    I("v_and_b32 v56, 1, v3")
    I("v_lshl_add_u32 v47, v56, 3, v47")
    I("v_lshl_add_u32 v47, v46, 8, v47")
    I("s_lshr_b32 s64, s18, 1")
    I("s_lshl_b32 s64, s64, 15")
    I("v_add_u32 v47, s64, v47")
    I("s_and_b32 s64, s18, 1")
    I("s_lshl_b32 s64, s64, 7")
    I("v_xor_b32 v47, s64, v47")
    for nt in range(2):
        for sec in range(2):
            x = (nt << 6) ^ (sec * 32)
            I(f"v_xor_b32 v{224+nt*2+sec}, {x}, v47")
            if sec: I(f"v_add_u32 v{224+nt*2+sec}, 2048, v{224+nt*2+sec}")
    I(f"v_add_u32 v42, {PB}, v4")
    I(f"v_add_u32 v40, {LB}, v38")
    for r in range(32):
        I(f"v_mov_b32 v{128+r}, 0")
    c("O staging addrs")
    I("v_and_b32 v60, 7, v8")
    I("v_lshlrev_b32 v60, 4, v60")
    I("v_lshl_add_u32 v60, v9, 3, v60")
    I("v_lshl_add_u32 v60, v8, 7, v60")
    I("s_lshl_b32 s64, s18, 12")
    I("v_add_u32 v60, s64, v60")
    I("v_lshrrev_b32 v61, 3, v1")
    I("v_and_b32 v62, 7, v1")
    I("v_xor_b32 v63, v61, v62")
    I("v_lshlrev_b32 v63, 4, v63")
    I("v_lshl_add_u32 v63, v61, 7, v63")
    I("v_add_u32 v63, s64, v63")
    I("v_lshlrev_b32 v61, 18, v61")
    I("v_lshl_add_u32 v61, v62, 4, v61")
    I("s_lshl_b32 s68, s2, 7")
    I("s_lshl_b32 s65, s18, 15")
    I("s_add_u32 s68, s68, s65")
    I(f"s_add_u32 s68, s68, {OPB}")
    I("s_waitcnt lgkmcnt(0)")
    I("s_barrier")
    for t in range(8):
        I(f"ds_read_b128 v[{96+4*t}:{99+4*t}], v42 offset:{t*1024}")
    I("ds_read_b128 v[44:47], v40")
    for tp in range(4):
        for t2 in range(2):
            t = tp * 2 + t2
            for nt in range(2):
                for sec in range(2):
                    d = 192 + t2 * 8 + nt * 4 + sec * 2
                    I(f"ds_read_b64_tr_b16 v[{d}:{d+1}], v{224+nt*2+sec} offset:{t*4096}")
        for t2 in range(2):
            t = tp * 2 + t2
            for nt in range(2):
                d = 192 + t2 * 8 + nt * 4
                I(f"s_waitcnt lgkmcnt({6-4*t2-2*nt})")
                I(f"v_mfma_f32_32x32x16_bf16 v[{128+16*nt}:{143+16*nt}], v[{d}:{d+3}], v[{96+4*t}:{99+4*t}], v[{128+16*nt}:{143+16*nt}]")
    I("s_cmp_lg_u32 s18, 0")
    I("s_cbranch_scc1 K2_NOSTAT")
    ts(1, 2, r=250)
    I("v_add_f32 v37, v44, v45")
    I("v_add_f32 v46, v46, v47")
    I("v_add_f32 v37, v37, v46")
    I("v_lshlrev_b32 v40, 11, v8")
    I("v_cmp_lt_u32 vcc, 0, v9")
    I("v_mov_b32 v41, 0x7f000000")
    I("s_lshl_b32 s64, s2, 3")
    I(f"s_add_u32 s64, s64, {STATS}")
    I("v_cndmask_b32 v40, v40, v41, vcc")
    I("buffer_store_dwordx2 v[36:37], v40, s[40:43], s64 offen")
    e("K2_NOSTAT:")
    I("s_nop 7")
    I("s_nop 3")
    for nt in range(2):
        for q in range(4):
            b = 128 + 16 * nt + 4 * q
            k = nt * 4 + q
            I(f"v_cvt_pk_bf16_f32 v{160+2*k}, v{b}, v{b+1}")
            I(f"v_cvt_pk_bf16_f32 v{161+2*k}, v{b+2}, v{b+3}")
            I(f"v_xor_b32 v{176+k}, {k*16}, v60")
    I("s_barrier")
    for k in range(8):
        I(f"ds_write_b64 v{176+k}, v[{160+2*k}:{161+2*k}]")
    for n in range(4):
        I(f"ds_read_b128 v[{64+4*n}:{67+4*n}], v63 offset:{n*1024}")
    for n in range(4):
        I(f"s_waitcnt lgkmcnt({3-n})")
        I(f"buffer_store_dwordx4 v[{64+4*n}:{67+4*n}], v61, s[40:43], s68 offen{PST}")
        if n != 3: I(f"s_add_u32 s68, s68, {8*262144}")
    ht(1, 1, "d")
    if "TS" in FL:
        I("s_waitcnt vmcnt(0)")
        I("s_cmp_ge_u32 s18, 4")
        I("s_cbranch_scc1 K2_END")
        ts(1, 3, r=250)
    e("K2_END:")
    I("s_endpgm")

def k3():
    WUV = 131072; COEF = WUV + 16384; CL = COEF + 1024; CLS = 144; CX = CL + 8 * CLS; CXS = 272
    kstart("k3_kernel")
    I("s_cmp_ge_u32 s2, 256")
    I("s_cbranch_scc1 K3_END")
    I("s_load_dwordx4 s[12:15], s[0:1], 32")
    I("s_load_dwordx2 s[72:73], s[0:1], 72")
    I("s_load_dwordx2 s[78:79], s[0:1], 96")
    common_ids()
    I("s_and_b32 s19, s18, 3")
    I("s_waitcnt lgkmcnt(0)")
    srd(40, 78, 79, WSSZ)
    srd(48, 12, 13, 4194304)
    srd(52, 14, 15, 4194304)
    srd(56, 72, 73, 1409024)
    I("v_lshlrev_b32 v4, 4, v1")
    I("v_and_b32 v48, 7, v1")
    c("hh frag (all waves)")
    I("v_mul_u32_u24 v18, 2752, v48")
    I("v_lshl_add_u32 v18, v2, 3, v18")
    I("s_lshl_b32 s64, s2, 5")
    I(f"s_add_u32 s64, s64, {HH}")
    I("s_cmp_ge_u32 s18, 4")
    I("s_cbranch_scc1 K3_B")
    c("==== group A: combine")
    ht(2, 0, "e")
    if "TS" in FL: ts(2, 0)
    I("v_lshlrev_b32 v5, 3, v0")
    I("s_lshl_b32 s65, s16, 11")
    I(f"s_add_u32 s65, s65, {STATS}")
    I("buffer_load_dwordx2 v[8:9], v5, s[40:43], s65 offen")
    I("v_lshrrev_b32 v6, 3, v0")
    I("v_lshlrev_b32 v7, 5, v6")
    I("v_lshlrev_b32 v6, 10, v6")
    I("v_lshl_add_u32 v6, v48, 4, v6")
    I("s_lshl_b32 s65, s16, 3")
    I("s_add_u32 s65, s65, s17")
    I("s_lshl_b32 s65, s65, 15")
    I(f"s_add_u32 s65, s65, {OPB}")
    for k in range(8):
        I(f"buffer_load_dwordx4 v[{64+4*k}:{67+4*k}], v6, s[40:43], s65 offen offset:{k*128}")
    I("buffer_load_dwordx2 v[144:145], v18, s[40:43], s64 offen")
    I("s_waitcnt vmcnt(9)")
    I("v_mov_b32 v20, v8")
    dppred(20, 21, "v_max_f32", 32)
    I("v_sub_f32 v20, v8, v20")
    I("v_exp_f32 v20, v20")
    I("s_nop 0")
    I("v_mul_f32 v22, v20, v9")
    dppred(22, 21, "v_add_f32", 32)
    I("v_rcp_f32 v22, v22")
    I("s_nop 0")
    I("v_mul_f32 v20, v20, v22")
    I("v_lshlrev_b32 v21, 2, v0")
    I(f"v_add_u32 v21, {COEF}, v21")
    I("ds_write_b32 v21, v20")
    I(f"v_add_u32 v7, {COEF}, v7")
    I("ds_read_b128 v[24:27], v7")
    I("ds_read_b128 v[28:31], v7 offset:16")
    for q in range(8):
        I(f"v_mov_b32 v{32+q}, 0")
    I("s_waitcnt lgkmcnt(0)")
    for k in range(8):
        I(f"s_waitcnt vmcnt({8-k})")
        for q in range(4):
            I(f"v_lshlrev_b32 v40, 16, v{64+4*k+q}")
            I(f"v_and_b32 v41, 0xffff0000, v{64+4*k+q}")
            I(f"v_fmac_f32 v{32+2*q}, v{24+k}, v40")
            I(f"v_fmac_f32 v{33+2*q}, v{24+k}, v41")
    for q in range(8):
        I(f"v_add_f32_dpp v{32+q}, v{32+q}, v{32+q} row_ror:8 row_mask:0xf bank_mask:0xf")
    for q in range(8):
        I(f"v_mov_b32 v{40+q}, v{32+q}")
    I("s_nop 1")
    for q in range(8):
        I(f"v_permlane16_swap_b32 v{32+q}, v{40+q}")
    I("s_nop 1")
    for q in range(8):
        I(f"v_add_f32 v{32+q}, v{32+q}, v{40+q}")
    for q in range(4):
        I(f"v_cvt_pk_bf16_f32 v{44+q}, v{32+2*q}, v{33+2*q}")
    I("v_lshrrev_b32 v49, 5, v0")
    I(f"v_mul_u32_u24 v49, {CLS}, v49")
    I("v_lshl_add_u32 v49, v48, 4, v49")
    I(f"v_add_u32 v49, {CL}, v49")
    I("ds_write_b128 v49, v[44:47]")
    if "TS" in FL: ts(2, 1)
    I(f"v_mul_u32_u24 v49, {CLS}, v48")
    I("v_lshl_add_u32 v49, v2, 3, v49")
    I(f"v_add_u32 v49, {CL}, v49")
    I("v_lshrrev_b32 v50, 2, v3")
    I("v_lshl_add_u32 v51, v2, 2, v50")
    I("v_and_b32 v52, 7, v51")
    I("s_lshl_b32 s64, s19, 1")
    I("v_xor_b32 v53, s64, v52")
    I("v_lshlrev_b32 v54, 8, v51")
    I("v_lshl_add_u32 v54, v53, 5, v54")
    I("v_and_b32 v55, 3, v3")
    I("v_lshl_add_u32 v54, v55, 3, v54")
    I(f"v_add_u32 v54, {WUV}, v54")
    I("v_xor_b32 v55, 32, v54")
    for r in range(8):
        I(f"v_mov_b32 v{88+r}, 0")
    I("s_waitcnt lgkmcnt(0)")
    I("s_barrier")
    for ks in range(2):
        I(f"ds_read2_b64 v[{64+4*ks}:{67+4*ks}], v49 offset0:{ks*8} offset1:{ks*8+4}")
        for nt in range(2):
            d = 72 + (ks * 2 + nt) * 4
            I(f"ds_read_b64_tr_b16 v[{d}:{d+1}], v{54+nt} offset:{ks*8192}")
            I(f"ds_read_b64_tr_b16 v[{d+2}:{d+3}], v{54+nt} offset:{ks*8192+4096}")
    I("s_waitcnt lgkmcnt(0)")
    for ks in range(2):
        for nt in range(2):
            d = 72 + (ks * 2 + nt) * 4
            I(f"v_mfma_f32_16x16x32_bf16 v[{88+4*nt}:{91+4*nt}], v[{64+4*ks}:{67+4*ks}], v[{d}:{d+3}], v[{88+4*nt}:{91+4*nt}]")
    I(f"v_mul_u32_u24 v56, {4*CXS}, v2")
    I("v_lshl_add_u32 v56, v3, 1, v56")
    I("s_lshl_b32 s64, s19, 6")
    I(f"s_add_u32 s64, s64, {CX}")
    I("v_add_u32 v56, s64, v56")
    I("s_nop 7")
    for nt in range(2):
        I(f"v_cvt_pk_bf16_f32 v{96+2*nt}, v{88+4*nt}, v{89+4*nt}")
        I(f"v_cvt_pk_bf16_f32 v{97+2*nt}, v{90+4*nt}, v{91+4*nt}")
    for nt in range(2):
        I(f"ds_write_b16 v56, v{96+2*nt} offset:{nt*32}")
        I(f"ds_write_b16_d16_hi v56, v{96+2*nt} offset:{nt*32+CXS}")
        I(f"ds_write_b16 v56, v{97+2*nt} offset:{nt*32+2*CXS}")
        I(f"ds_write_b16_d16_hi v56, v{97+2*nt} offset:{nt*32+3*CXS}")
    I("s_waitcnt vmcnt(0) lgkmcnt(0)")
    I("s_barrier")
    I("s_branch K3_O")
    c("==== group B: weight loads")
    e("K3_B:")
    I("buffer_load_dwordx2 v[144:145], v18, s[40:43], s64 offen")
    I("v_lshlrev_b32 v10, 1, v2")
    I("v_xor_b32 v10, v10, v3")
    I("v_lshlrev_b32 v10, 4, v10")
    I("v_lshl_add_u32 v10, v2, 13, v10")
    I("v_xor_b32 v11, 0x80, v10")
    I("s_lshl_b32 s64, s17, 6")
    I("s_lshl_b32 s65, s19, 4")
    I("s_add_u32 s64, s64, s65")
    I("s_lshl_b32 s64, s64, 13")
    I("s_lshl_b32 s66, s16, 8")
    I("s_add_u32 s64, s64, s66")
    I("s_lshl_b32 s65, s65, 8")
    I(f"s_add_u32 s65, s65, {WUV}")
    I("s_mov_b32 m0, s65")
    for i in range(4):
        I(f"buffer_load_dwordx4 v{10 + (i & 1)}, s[48:51], s64 offen nt lds")
        if i != 3:
            I("s_add_u32 m0, m0, 1024")
            I("s_add_u32 s64, s64, 32768")
    I("s_lshl_b32 s64, s16, 17")
    I("s_lshl_b32 s65, s19, 15")
    I("s_add_u32 s64, s64, s65")
    I("s_mov_b32 m0, s65")
    for kk in range(32):
        I(f"v_xor_b32 v{12 + (kk & 3)}, {(kk & 7) * 32}, v4")
        I(f"buffer_load_dwordx4 v{12 + (kk & 3)}, s[52:55], s64 offen{WONT} lds")
        if kk != 31:
            I("s_add_u32 m0, m0, 1024")
            I("s_add_u32 s64, s64, 1024")
    I("s_lshl_b32 s64, s2, 14")
    I("s_lshl_b32 s65, s19, 10")
    I("s_add_u32 s64, s64, s65")
    for n in range(4):
        I(f"buffer_load_dwordx4 v[{128+4*n}:{131+4*n}], v4, s[56:59], s64 offen nt")
        if n != 3: I("s_add_u32 s64, s64, 4096")
    I("v_lshrrev_b32 v50, 2, v3")
    I("v_lshl_add_u32 v51, v2, 2, v50")
    I("v_and_b32 v52, 7, v51")
    I("s_lshl_b32 s64, s19, 5")
    I("v_xor_b32 v57, s64, v4")
    I("s_lshl_b32 s64, s19, 10")
    I(f"s_add_u32 s64, s64, {WUV}")
    I("v_add_u32 v57, s64, v57")
    I("v_xor_b32 v58, 0x80, v57")
    I("s_waitcnt vmcnt(36)")
    I("s_barrier")
    I("s_waitcnt vmcnt(0)")
    I("s_barrier")
    for n in range(4):
        I(f"ds_write_b128 v{57+(n&1)}, v[{128+4*n}:{131+4*n}] offset:{n*4096}")
    c("==== o-proj on 8 waves: wave w8 -> cols 64*w8..")
    e("K3_O:")
    I(f"v_mul_u32_u24 v49, {CXS}, v48")
    I("v_lshl_add_u32 v49, v2, 3, v49")
    I(f"v_add_u32 v49, {CX}, v49")
    for ks in range(4):
        I(f"ds_read2_b64 v[{64+4*ks}:{67+4*ks}], v49 offset0:{ks*8} offset1:{ks*8+4}")
    I("v_lshlrev_b32 v54, 10, v51")
    I("v_lshl_add_u32 v54, v52, 5, v54")
    I("v_and_b32 v55, 3, v3")
    I("v_lshl_add_u32 v54, v55, 3, v54")
    I("s_lshr_b32 s64, s18, 1")
    I("s_lshl_b32 s64, s64, 8")
    I("v_add_u32 v54, s64, v54")
    I("s_and_b32 s64, s18, 1")
    I("s_lshl_b32 s64, s64, 7")
    I("v_xor_b32 v54, s64, v54")
    for nt in range(4):
        I(f"v_xor_b32 v{100+nt}, {nt*32}, v54")
        I(f"v_add_u32 v{108+nt}, 0x10000, v{100+nt}")
    for r in range(16):
        I(f"v_mov_b32 v{160+r}, 0")
    for kp in range(2):
        for k2 in range(2):
            ks = kp * 2 + k2
            for nt in range(4):
                a = (100 if ks < 2 else 108) + nt
                d = 192 + (k2 * 4 + nt) * 4
                I(f"ds_read_b64_tr_b16 v[{d}:{d+1}], v{a} offset:{(ks&1)*32768}")
                I(f"ds_read_b64_tr_b16 v[{d+2}:{d+3}], v{a} offset:{(ks&1)*32768+16384}")
        for k2 in range(2):
            ks = kp * 2 + k2
            for nt in range(4):
                d = 192 + (k2 * 4 + nt) * 4
                I(f"s_waitcnt lgkmcnt({14-2*(k2*4+nt)})")
                I(f"v_mfma_f32_16x16x32_bf16 v[{160+4*nt}:{163+4*nt}], v[{64+4*ks}:{67+4*ks}], v[{d}:{d+3}], v[{160+4*nt}:{163+4*nt}]")
    I("s_cmp_ge_u32 s2, 86")
    I("s_cbranch_scc1 K3_NOFFN2")
    I("s_barrier")
    for nt in range(4):
        I(f"v_add_u32 v{100+nt}, {WUV}, v{100+nt}")
    for nt in range(4):
        d = 192 + nt * 2
        I(f"ds_read_b64_tr_b16 v[{d}:{d+1}], v{100+nt}")
    I("s_waitcnt lgkmcnt(0)")
    for nt in range(4):
        d = 192 + nt * 2
        I(f"v_mfma_f32_16x16x16_bf16 v[{160+4*nt}:{163+4*nt}], v[144:145], v[{d}:{d+1}], v[{160+4*nt}:{163+4*nt}]")
    e("K3_NOFFN2:")
    I("v_lshlrev_b32 v60, 13, v2")
    I("v_lshl_add_u32 v60, v3, 2, v60")
    I("v_cmp_lt_u32 vcc, 1, v2")
    I("v_mov_b32 v61, 0x7f000000")
    I("s_lshl_b32 s64, s2, 14")
    I("s_lshl_b32 s65, s18, 8")
    I("v_cndmask_b32 v60, v60, v61, vcc")
    I("s_add_u32 s64, s64, s65")
    I(f"s_add_u32 s64, s64, {OUTP}")
    I("s_add_u32 s65, s64, 4096")
    I("s_nop 7")
    for nt in range(4):
        for r in range(4):
            I(f"buffer_store_dword v{160+4*nt+r}, v60, s[40:43], s{64 + (r >> 1)} offen offset:{(r&1)*2048+nt*64}{OST}")
    ht(2, 1, "f")
    if "TS" in FL:
        I("s_waitcnt vmcnt(0)")
        I("s_cmp_ge_u32 s18, 4")
        I("s_cbranch_scc1 K3_END")
        ts(2, 3)
    e("K3_END:")
    I("s_endpgm")

def k4():
    kstart("k4_kernel")
    I("s_cmp_ge_u32 s2, 64")
    I("s_cbranch_scc1 K4_END")
    I("s_load_dwordx2 s[4:5], s[0:1], 0")
    I("s_load_dwordx2 s[8:9], s[0:1], 80")
    I("s_load_dwordx2 s[6:7], s[0:1], 96")
    I("v_and_b32 v1, 15, v0")
    I("v_lshrrev_b32 v2, 4, v0")
    I("v_lshrrev_b32 v4, 6, v0")
    I("v_lshlrev_b32 v3, 18, v2")
    I("v_readfirstlane_b32 s18, v4")
    I("v_lshl_add_u32 v3, v1, 4, v3")
    I("s_lshl_b32 s16, s2, 8")
    I("s_waitcnt lgkmcnt(0)")
    srd(20, 4, 5, 8192)
    srd(24, 8, 9, 8192)
    srd(40, 6, 7, WSSZ)
    ts(3, 0, r=76)
    if "HT" in FL:
        I("s_memrealtime s[92:93]")
    I(f"s_add_u32 s44, s16, {OUTP}")
    for k in range(16):
        I(f"buffer_load_dwordx4 v[{8+4*k}:{11+4*k}], v3, s[40:43], s44 offen")
        if k != 15: I("s_add_u32 s44, s44, 16384")
    I("v_lshlrev_b32 v4, 3, v1")
    I("s_lshl_b32 s17, s2, 7")
    I("buffer_load_dwordx2 v[72:73], v4, s[20:23], s17 offen")
    I("s_waitcnt vmcnt(1)")
    for k in range(1, 16):
        for q in range(4):
            I(f"v_add_f32 v{8+q}, v{8+q}, v{8+4*k+q}")
    for q in range(4):
        I(f"v_mov_b32 v{12+q}, v{8+q}")
    I("s_nop 1")
    for q in range(4):
        I(f"v_permlane16_swap_b32 v{8+q}, v{12+q}")
    I("s_nop 1")
    for q in range(4):
        I(f"v_add_f32 v{8+q}, v{8+q}, v{12+q}")
    for q in range(4):
        I(f"v_mov_b32 v{12+q}, v{8+q}")
    I("s_nop 1")
    for q in range(4):
        I(f"v_permlane32_swap_b32 v{8+q}, v{12+q}")
    I("s_nop 1")
    for q in range(4):
        I(f"v_add_f32 v{8+q}, v{8+q}, v{12+q}")
    I("v_lshlrev_b32 v5, 4, v0")
    I("ds_write_b128 v5, v[8:11]")
    I("s_waitcnt lgkmcnt(0)")
    I("s_barrier")
    I("v_lshlrev_b32 v5, 4, v1")
    for w in range(4):
        I(f"ds_read_b128 v[{16+4*w}:{19+4*w}], v5 offset:{w*1024}")
    I("s_waitcnt vmcnt(0) lgkmcnt(0)")
    for q in range(4):
        I(f"v_add_f32 v{16+q}, v{16+q}, v{20+q}")
        I(f"v_add_f32 v{24+q}, v{24+q}, v{28+q}")
        I(f"v_add_f32 v{16+q}, v{16+q}, v{24+q}")
    I("v_lshlrev_b32 v20, 16, v72")
    I("v_and_b32 v21, 0xffff0000, v72")
    I("v_lshlrev_b32 v22, 16, v73")
    I("v_and_b32 v23, 0xffff0000, v73")
    for q in range(4):
        I(f"v_add_f32 v{16+q}, v{16+q}, v{20+q}")
    I("v_cvt_pk_bf16_f32 v24, v16, v17")
    I("v_cvt_pk_bf16_f32 v25, v18, v19")
    I("v_cmp_lt_u32 vcc, 15, v0")
    I("v_mov_b32 v6, 0x7f000000")
    I("s_nop 1")
    I("v_cndmask_b32 v4, v4, v6, vcc")
    I("buffer_store_dwordx2 v[24:25], v4, s[24:27], s17 offen")
    if "HT" in FL:
        I("s_cmp_lg_u32 s2, 5")
        I("s_cbranch_scc1 K4_END")
        I("s_load_dwordx2 s[10:11], s[0:1], 88")
        I("s_memrealtime s[90:91]")
        I("s_waitcnt lgkmcnt(0)")
        I("s_sub_u32 s10, s10, 0")
        I("s_subb_u32 s11, s11, 0")
        srd(28, 10, 11, 256)
        I("v_lshlrev_b32 v30, 2, v0")
        I(f"v_add_u32 v31, {TSOFF + 0x40000}, v30")
        I("buffer_load_dword v32, v31, s[40:43], 0 offen sc1")
        I("s_waitcnt vmcnt(0)")
        I("v_mov_b32 v33, s92")
        I("v_cmp_eq_u32 vcc, 6, v0")
        I("s_nop 1")
        I("v_cndmask_b32 v32, v32, v33, vcc")
        I("v_mov_b32 v33, s90")
        I("v_cmp_eq_u32 vcc, 7, v0")
        I("s_nop 1")
        I("v_cndmask_b32 v32, v32, v33, vcc")
        I("v_cmp_gt_u32 vcc, 8, v0")
        I("s_and_saveexec_b64 s[86:87], vcc")
        I("buffer_store_dword v32, v30, s[28:31], 0 offen")
    if "TS" in FL:
        I("s_waitcnt vmcnt(0)")
        ts(3, 3, r=76)
    e("K4_END:")
    I("s_endpgm")
    e("KALL_END:")

e("; @launch kernel=k1_kernel grid=(256,1,1) block=(512,1,1) lds=160256")
e("; @launch kernel=k2_kernel grid=(256,1,1) block=(512,1,1) lds=163840")
e("; @launch kernel=k3_kernel grid=(256,1,1) block=(512,1,1) lds=154112")
e("; @launch kernel=k4_kernel grid=(64,1,1) block=(256,1,1) lds=4096")
e('.amdgcn_target "amdgcn-amd-amdhsa--gfx950"')
e(".text")
k1(); k2(); k3(); k4()
e('.section .rodata,"a"')
for n, v in (("k1_kernel", 256), ("k2_kernel", 256), ("k3_kernel", 256), ("k4_kernel", 80)):
    e(".p2align 6")
    kdesc(n, v)
if "NONT" in FL:
    L = [x.replace(" nt lds", " lds") if x.endswith(" nt lds") else (x[:-3] if x.endswith(" nt") else x) for x in L]
open(sys.argv[1], "w").write("\n".join(L) + "\n")
```

```python
import sys, os, struct
FL = os.environ.get("FL", "").split(",")
L = []
def e(s=""): L.append(s)
def c(s): L.append("    ; " + s)
def I(s): L.append("    " + s)
def f2u(x): return struct.unpack("<I", struct.pack("<f", x))[0]

QABS = 0x0
HH   = 0x40000
STATS= 0x50000
OPB  = 0x100000
OUTP = 0x1100000
TSOFF= 0x1500000
WSSZ = 0x1600000
SC = (128 ** -0.5) * 1.4426950408889634
TSX = 1 if "TS" in FL else 0
PST = os.environ.get("PST", " sc1")
PFN = int(os.environ.get("PFN", "32"))
PFT = int(os.environ.get("PFT", "12"))
K2NT = os.environ.get("K2NT", " nt")
WONT = os.environ.get("WONT", " nt")
OST = os.environ.get("OST", "")
PFD = int(os.environ.get("PFD", "1"))
PFX = int(os.environ.get("PFX", "0"))
PFNF = int(os.environ.get("PFNF", "8"))
FNT = os.environ.get("FNT", " nt")

def srd(d, lo, hi, nbytes):
    I(f"s_mov_b32 s{d}, s{lo}")
    I(f"s_and_b32 s{d+1}, s{hi}, 0xffff")
    I(f"s_mov_b32 s{d+2}, {nbytes}")
    I(f"s_mov_b32 s{d+3}, 0x00020000")

def kstart(name):
    e(f".globl {name}"); e(".p2align 8"); e(f".type {name},@function"); e(f"{name}:")

def kdesc(name, vgpr, sgpr=102):
    e(f".amdhsa_kernel {name}")
    e(f"  .amdhsa_next_free_vgpr {vgpr}")
    e(f"  .amdhsa_next_free_sgpr {sgpr}")
    e(f"  .amdhsa_accum_offset {(vgpr+3)//4*4}")
    e("  .amdhsa_group_segment_fixed_size 0")
    e("  .amdhsa_kernarg_size 104")
    e("  .amdhsa_user_sgpr_count 2")
    e("  .amdhsa_user_sgpr_kernarg_segment_ptr 1")
    e("  .amdhsa_system_sgpr_workgroup_id_x 1")
    e(".end_amdhsa_kernel")

def ts(kid, idx, r=250):
    if "TS" not in FL: return
    I("s_memrealtime s[90:91]")
    I("s_waitcnt lgkmcnt(0)")
    I(f"v_mov_b32 v{r}, s90")
    I("s_lshl_b32 s92, s2, 7")
    I("s_lshl_b32 s93, s18, 5")
    I("s_add_u32 s92, s92, s93")
    I(f"s_add_u32 s92, s92, {TSOFF + kid*65536 + idx*4}")
    I(f"v_and_b32 v{r+2}, 63, v0")
    I(f"v_cmp_eq_u32 vcc, 0, v{r+2}")
    I(f"v_mov_b32 v{r+1}, 0x7f000000")
    I("s_nop 1")
    I(f"v_cndmask_b32 v{r+1}, v{r+1}, 0, vcc")
    I(f"buffer_store_dword v{r}, v{r+1}, s[40:43], s92 offen")

def ht(kid, idx, lab):
    if "HT" not in FL: return
    I("s_cmp_lg_u32 s2, 5")
    I(f"s_cbranch_scc1 HT_{lab}")
    I("s_cmp_lg_u32 s18, 0")
    I(f"s_cbranch_scc1 HT_{lab}")
    I("s_memrealtime s[90:91]")
    I("s_waitcnt lgkmcnt(0)")
    I("v_mov_b32 v250, s90")
    I(f"v_mov_b32 v251, {TSOFF + 0x40000 + kid*8 + idx*4}")
    I("buffer_store_dword v250, v251, s[40:43], 0 offen sc1")
    I("s_waitcnt vmcnt(0)")
    e(f"HT_{lab}:")

def xor32(v, tmp, op):
    I(f"v_mov_b32 v{tmp}, v{v}")
    I("s_nop 1")
    I(f"v_permlane32_swap_b32 v{v}, v{tmp}")
    I("s_nop 1")
    I(f"{op} v{v}, v{v}, v{tmp}")

def dppred(v, tmp, op, width):
    for m in ("quad_perm:[1,0,3,2]", "quad_perm:[2,3,0,1]", "row_half_mirror", "row_mirror"):
        I("s_nop 1")
        I(f"{op}_dpp v{v}, v{v}, v{v} {m} row_mask:0xf bank_mask:0xf")
    if width >= 32:
        I(f"v_mov_b32 v{tmp}, v{v}")
        I("s_nop 1")
        I(f"v_permlane16_swap_b32 v{v}, v{tmp}")
        I("s_nop 1")
        I(f"{op} v{v}, v{v}, v{tmp}")
    if width >= 64:
        xor32(v, tmp, op)

def common_ids():
    I("s_and_b32 s16, s2, 31")
    I("s_lshr_b32 s17, s2, 5")
    I("v_lshrrev_b32 v2, 6, v0")
    I("v_and_b32 v1, 63, v0")
    I("s_nop 0")
    I("v_readfirstlane_b32 s18, v2")
    I("v_lshrrev_b32 v2, 4, v1")
    I("v_and_b32 v3, 15, v1")
    I("s_mov_b32 s19, s18")

def k1():
    XN = 131072; XNS = 1040; QB = XN + 8 * XNS; QS = 272; FST = QB + 16 * QS; FST = (FST + 255) // 256 * 256
    assert FST + 16384 <= 163840
    PF1 = int(os.environ.get("PF1", "0")); PF2 = int(os.environ.get("PF2", "0"))
    kstart("k1_kernel")
    I("s_cmp_ge_u32 s2, 256")
    I("s_cbranch_scc1 K1_END")
    I("s_load_dwordx4 s[4:7], s[0:1], 0")
    I("s_load_dwordx4 s[8:11], s[0:1], 16")
    I("s_load_dwordx4 s[68:71], s[0:1], 56")
    I("s_load_dwordx2 s[78:79], s[0:1], 96")
    if "TLB" in FL:
        I("s_load_dwordx4 s[12:15], s[0:1], 32")
        I("s_load_dwordx4 s[80:83], s[0:1], 72")
    common_ids()
    I("s_and_b32 s19, s18, 3")
    I("v_lshlrev_b32 v4, 4, v1")
    I("v_lshrrev_b32 v28, 2, v3")
    I("v_lshl_add_u32 v28, v2, 2, v28")
    I("v_and_b32 v29, 7, v28")
    I("v_and_b32 v30, 3, v3")
    I("v_and_b32 v31, 7, v1")
    I(f"v_mul_u32_u24 v31, {XNS}, v31")
    I("v_lshl_add_u32 v31, v2, 3, v31")
    I("s_lshl_b32 s64, s19, 8")
    I(f"s_add_u32 s64, s64, {XN}")
    I("v_add_u32 v31, s64, v31")
    I("s_waitcnt lgkmcnt(0)")
    srd(20, 4, 5, 8192)
    srd(24, 8, 9, 4194304)
    srd(28, 10, 11, 4194304)
    srd(32, 68, 69, 1409024)
    srd(36, 70, 71, 1409024)
    srd(40, 78, 79, WSSZ)
    srd(44, 6, 7, 33554432)
    I("s_cmp_ge_u32 s18, 4")
    I("s_cbranch_scc1 K1_B")
    c("==== A waves")
    ht(0, 0, "a")
    ts(0, 0)
    I("v_lshlrev_b32 v6, 1, v2")
    I("v_xor_b32 v6, v6, v3")
    I("v_lshlrev_b32 v6, 4, v6")
    I("v_lshl_add_u32 v6, v2, 13, v6")
    I("v_xor_b32 v7, 0x80, v6")
    I("s_lshl_b32 s64, s19, 20")
    I("s_lshl_b32 s65, s16, 8")
    I("s_add_u32 s64, s64, s65")
    I("s_lshl_b32 s66, s19, 15")
    I("s_mov_b32 m0, s66")
    I("s_barrier")
    for i in range(32):
        I(f"buffer_load_dwordx4 v{6 + (i & 1)}, s[24:27], s64 offen nt lds")
        if i != 31:
            I("s_add_u32 m0, m0, 1024")
            I("s_add_u32 s64, s64, 32768")
    I("v_lshlrev_b32 v8, 13, v3")
    I("v_lshl_add_u32 v8, v2, 4, v8")
    I("s_lshl_b32 s64, s17, 6")
    I("s_lshl_b32 s66, s19, 4")
    I("s_add_u32 s64, s64, s66")
    I("s_lshl_b32 s64, s64, 13")
    I("s_add_u32 s64, s64, s65")
    for ks in range(4):
        I(f"buffer_load_dwordx4 v[{80+4*ks}:{83+4*ks}], v8, s[28:31], s64 offen offset:{ks*64} nt")
    c("addresses")
    I("v_and_b32 v70, 7, v1")
    I(f"v_mul_u32_u24 v70, {XNS}, v70")
    I("v_lshl_add_u32 v70, v2, 3, v70")
    I(f"v_add_u32 v70, {XN}, v70")
    I("s_lshl_b32 s64, s19, 1")
    I("v_xor_b32 v73, s64, v29")
    I("v_lshlrev_b32 v74, 8, v28")
    I("v_lshl_add_u32 v74, v73, 5, v74")
    I("v_lshl_add_u32 v74, v30, 3, v74")
    I("v_xor_b32 v75, 32, v74")
    I("v_add_u32 v76, 0x10000, v74")
    I("v_add_u32 v77, 0x10000, v75")
    I(f"v_mul_u32_u24 v24, {4*QS}, v2")
    I("v_lshl_add_u32 v24, v3, 1, v24")
    I("s_lshl_b32 s64, s19, 6")
    I(f"s_add_u32 s64, s64, {QB}")
    I("v_add_u32 v24, s64, v24")
    I(f"v_mul_u32_u24 v25, {QS}, v3")
    I("v_lshl_add_u32 v25, v2, 4, v25")
    I(f"v_add_u32 v25, {QB}, v25")
    I("v_lshlrev_b32 v26, 15, v3")
    I("v_lshl_add_u32 v26, v2, 3, v26")
    I("v_cmp_lt_u32 vcc, 7, v3")
    I("v_mov_b32 v27, 0x7f000000")
    I("s_lshl_b32 s70, s16, 10")
    I("s_lshl_b32 s65, s17, 7")
    I("v_cndmask_b32 v26, v26, v27, vcc")
    I("s_add_u32 s70, s70, s65")
    I("s_lshl_b32 s65, s19, 5")
    I("s_add_u32 s70, s70, s65")
    for r in range(12):
        I(f"v_mov_b32 v{8+r}, 0")
    I("s_waitcnt vmcnt(4)")
    I("s_barrier")
    ts(0, 1, r=120)
    for ch in range(4):
        for k4 in range(4):
            ks = ch * 4 + k4
            I(f"ds_read2_b64 v[{128+64*(ch&1)+4*k4}:{131+64*(ch&1)+4*k4}], v70 offset0:{ks*8} offset1:{ks*8+4}")
            for nt in range(2):
                base = (74 + nt) if ks < 8 else (76 + nt)
                off = (ks & 7) * 8192
                d = 144 + 64 * (ch & 1) + (k4 * 2 + nt) * 4
                I(f"ds_read_b64_tr_b16 v[{d}:{d+1}], v{base} offset:{off}")
                I(f"ds_read_b64_tr_b16 v[{d+2}:{d+3}], v{base} offset:{off+4096}")
            if k4 == 2: I("s_waitcnt lgkmcnt(10)")
        for k4 in range(4):
            I(f"s_waitcnt lgkmcnt({5*(3-k4)})")
            for nt in range(2):
                d = 144 + 64 * (ch & 1) + (k4 * 2 + nt) * 4
                a = 128 + 64 * (ch & 1) + 4 * k4
                I(f"v_mfma_f32_16x16x32_bf16 v[{8+4*nt}:{11+4*nt}], v[{a}:{a+3}], v[{d}:{d+3}], v[{8+4*nt}:{11+4*nt}]")
    ts(0, 5, r=120)
    I("s_nop 7")
    for nt in range(2):
        I(f"v_cvt_pk_bf16_f32 v{20+2*nt}, v{8+4*nt}, v{9+4*nt}")
        I(f"v_cvt_pk_bf16_f32 v{21+2*nt}, v{10+4*nt}, v{11+4*nt}")
    for nt in range(2):
        I(f"ds_write_b16 v24, v{20+2*nt} offset:{nt*32}")
        I(f"ds_write_b16_d16_hi v24, v{20+2*nt} offset:{nt*32+QS}")
        I(f"ds_write_b16 v24, v{21+2*nt} offset:{nt*32+2*QS}")
        I(f"ds_write_b16_d16_hi v24, v{21+2*nt} offset:{nt*32+3*QS}")
    I("s_waitcnt lgkmcnt(0)")
    I("s_barrier")
    for ks in range(4):
        I(f"ds_read_b128 v[{128+4*ks}:{131+4*ks}], v25 offset:{ks*64}")
    I("s_waitcnt vmcnt(0) lgkmcnt(0)")
    for ks in range(4):
        I(f"v_mfma_f32_16x16x32_bf16 v[16:19], v[{80+4*ks}:{83+4*ks}], v[{128+4*ks}:{131+4*ks}], v[16:19]")
    I("s_nop 7")
    I("v_cvt_pk_bf16_f32 v12, v16, v17")
    I("v_cvt_pk_bf16_f32 v13, v18, v19")
    I("buffer_store_dwordx2 v[12:13], v26, s[40:43], s70 offen")
    ht(0, 1, "b")
    if "TS" in FL:
        I("s_waitcnt vmcnt(0)")
        ts(0, 2)
    I("s_branch K1_END")
    c("==== B waves: LN, FFN, prefetch")
    e("K1_B:")
    if "CPF" in FL:
        c("touch the code of the later kernels so that their instruction fetch hits L2")
        I("s_getpc_b64 s[84:85]")
        e("K1_PC:")
        I("s_add_u32 s84, s84, k2_kernel-K1_PC")
        I("s_addc_u32 s85, s85, 0")
        I("v_and_b32 v6, 255, v0")
        I("v_lshlrev_b32 v6, 6, v6")
        I("v_cmp_gt_u32 vcc, KALL_END-k2_kernel, v6")
        I("s_and_saveexec_b64 s[86:87], vcc")
        I("s_cbranch_execz K1_PCD")
        I("global_load_dword v7, v6, s[84:85]")
        e("K1_PCD:")
        I("s_mov_b64 exec, s[86:87]")
    I("s_lshl_b32 s64, s19, 11")
    I("v_lshlrev_b32 v5, 5, v1")
    I("buffer_load_dwordx4 v[48:51], v5, s[20:23], s64 offen")
    I("buffer_load_dwordx4 v[52:55], v5, s[20:23], s64 offen offset:16")
    I("s_and_b32 s74, s2, 7")
    I("s_mul_i32 s74, s74, 11")
    I("s_lshr_b32 s75, s2, 3")
    I("s_add_u32 s74, s74, s75")
    I("s_cmp_ge_u32 s2, 88")
    I("s_cselect_b32 s74, 0x1000, s74")
    c("ffn loads: for non-ffn wgs use an out-of-range offset (returns 0 quickly)")
    I("v_lshrrev_b32 v24, 1, v1")
    I("v_mul_u32_u24 v24, 2752, v24")
    I("v_and_b32 v25, 1, v1")
    I("v_lshl_add_u32 v24, v25, 4, v24")
    I(f"s_mul_i32 s64, s19, {128*2752}")
    I("s_lshl_b32 s65, s74, 5")
    I("s_add_u32 s64, s64, s65")
    I("s_cmp_ge_u32 s74, 86")
    I("s_cselect_b32 s64, 0x40000000, s64")
    for n in range(4):
        I(f"buffer_load_dwordx4 v[{96+4*n}:{99+4*n}], v24, s[32:35], s64 offen{FNT}")
        I(f"buffer_load_dwordx4 v[{112+4*n}:{115+4*n}], v24, s[36:39], s64 offen{FNT}")
        if n != 3: I(f"s_add_u32 s64, s64, {32*2752}")
    I("s_barrier")
    I("s_waitcnt vmcnt(8)")
    for k in range(8):
        I(f"v_lshlrev_b32 v{56+2*k}, 16, v{48+k}")
        I(f"v_and_b32 v{57+2*k}, 0xffff0000, v{48+k}")
    I("v_add_f32 v8, v56, v57"); I("v_add_f32 v9, v58, v59"); I("v_add_f32 v10, v60, v61"); I("v_add_f32 v11, v62, v63")
    I("v_add_f32 v8, v8, v64"); I("v_add_f32 v9, v9, v65"); I("v_add_f32 v10, v10, v66"); I("v_add_f32 v11, v11, v67")
    I("v_add_f32 v8, v8, v68"); I("v_add_f32 v9, v9, v69"); I("v_add_f32 v10, v10, v70"); I("v_add_f32 v11, v11, v71")
    I("v_add_f32 v8, v8, v9"); I("v_add_f32 v10, v10, v11"); I("v_add_f32 v8, v8, v10")
    dppred(8, 9, "v_add_f32", 32)
    I("v_mul_f32 v8, 0x3b000000, v8")
    for k in range(16):
        I(f"v_sub_f32 v{72+k}, v{56+k}, v8")
    I("v_mul_f32 v9, v72, v72"); I("v_mul_f32 v10, v73, v73"); I("v_mul_f32 v11, v74, v74"); I("v_mul_f32 v12, v75, v75")
    for k in range(4, 16, 4):
        for q in range(4):
            I(f"v_fmac_f32 v{9+q}, v{72+k+q}, v{72+k+q}")
    I("v_add_f32 v9, v9, v10"); I("v_add_f32 v11, v11, v12"); I("v_add_f32 v12, v9, v11")
    dppred(12, 9, "v_add_f32", 32)
    I("v_mul_f32 v12, 0x3b000000, v12")
    I("v_cvt_pk_bf16_f32 v9, v8, v12")
    I("v_lshlrev_b32 v8, 16, v9")
    I("v_and_b32 v12, 0xffff0000, v9")
    I(f"v_add_f32 v12, {f2u(1e-5):#x}, v12")
    I("v_cvt_pk_bf16_f32 v12, v12, v12")
    I("v_lshlrev_b32 v12, 16, v12")
    I("v_sqrt_f32 v12, v12")
    I("s_nop 0")
    I("v_cvt_pk_bf16_f32 v12, v12, v12")
    I("v_lshlrev_b32 v12, 16, v12")
    I("v_rcp_f32 v9, v12")
    for k in range(16):
        I(f"v_sub_f32 v{56+k}, v{56+k}, v8")
    for k in range(8):
        I(f"v_cvt_pk_bf16_f32 v{72+k}, v{56+2*k}, v{57+2*k}")
    for k in range(8):
        I(f"v_lshlrev_b32 v{56+2*k}, 16, v{72+k}")
        I(f"v_and_b32 v{57+2*k}, 0xffff0000, v{72+k}")
    for k in range(16):
        I(f"v_mul_f32 v{56+k}, v{56+k}, v9")
    for k in range(8):
        I(f"v_cvt_pk_bf16_f32 v{72+k}, v{56+2*k}, v{57+2*k}")
    I("v_lshrrev_b32 v10, 5, v1")
    I("s_lshl_b32 s64, s19, 1")
    I("v_add_u32 v10, s64, v10")
    I(f"v_mul_u32_u24 v10, {XNS}, v10")
    I("v_and_b32 v11, 31, v1")
    I("v_lshl_add_u32 v10, v11, 5, v10")
    I(f"v_add_u32 v10, {XN}, v10")
    I("ds_write_b128 v10, v[72:75]")
    I("ds_write_b128 v10, v[76:79] offset:16")
    if "TLB" in FL:
        c("touch pages of buffers used by later kernels (TLB / cache warm-up), wave 7 only")
        I("s_cmp_lg_u32 s18, 7")
        I("s_cbranch_scc1 K1_NOTLB")
        srd(48, 12, 13, 4194304)
        srd(52, 14, 15, 4194304)
        srd(56, 80, 81, 1409024)
        srd(60, 82, 83, 8192)
        I("v_lshlrev_b32 v20, 16, v1")
        I("buffer_load_dword v21, v20, s[48:51], 0 offen")
        I("buffer_load_dword v21, v20, s[52:55], 0 offen")
        I("buffer_load_dword v21, v20, s[56:59], 0 offen")
        I("buffer_load_dword v21, v20, s[60:63], 0 offen")
        I("v_mul_u32_u24 v20, 0x58000, v1")
        I("buffer_load_dword v21, v20, s[40:43], 0 offen")
        I("s_waitcnt vmcnt(0)")
        e("K1_NOTLB:")
    c("prefetch part 1 (no waits)")
    I("s_lshl_b32 s76, s2, 17")
    I("s_lshl_b32 s64, s19, 15")
    I("s_add_u32 s76, s76, s64")
    for n in range(PF1):
        I(f"buffer_load_dwordx4 v[{160+4*(n%16)}:{163+4*(n%16)}], v4, s[44:47], s76 offen nt")
        I("s_add_u32 s76, s76, 1024")
    I("s_waitcnt lgkmcnt(0)")
    I("s_barrier")
    I("s_cmp_ge_u32 s74, 86")
    I("s_cbranch_scc1 K1_BNOF")
    for ks in range(4):
        I(f"ds_read2_b64 v[{32+4*ks}:{35+4*ks}], v31 offset0:{ks*8} offset1:{ks*8+4}")
    I("s_lshl_b32 s66, s19, 12")
    I(f"s_add_u32 s66, s66, {FST}")
    I("v_add_u32 v25, s66, v4")
    I("v_lshlrev_b32 v26, 5, v28")
    I("v_lshl_add_u32 v26, v30, 3, v26")
    I("v_add_u32 v26, s66, v26")
    for r in range(8):
        I(f"v_mov_b32 v{8+r}, 0")
    I(f"s_waitcnt vmcnt({PF1})")
    for m in range(2):
        for n in range(4):
            I(f"ds_write_b128 v25, v[{96+16*m+4*n}:{99+16*m+4*n}] offset:{n*1024}")
        for ks in range(4):
            d = 128 + (m * 4 + ks) * 4
            I(f"ds_read_b64_tr_b16 v[{d}:{d+1}], v26 offset:{ks*1024}")
            I(f"ds_read_b64_tr_b16 v[{d+2}:{d+3}], v26 offset:{ks*1024+512}")
    I("s_waitcnt lgkmcnt(0)")
    for m in range(2):
        for ks in range(4):
            d = 128 + (m * 4 + ks) * 4
            I(f"v_mfma_f32_16x16x32_bf16 v[{8+4*m}:{11+4*m}], v[{32+4*ks}:{35+4*ks}], v[{d}:{d+3}], v[{8+4*m}:{11+4*m}]")
    I("v_lshlrev_b32 v17, 5, v1")
    I("v_add_u32 v18, s66, v17")
    I(f"v_add_u32 v17, {FST}, v17")
    I("s_nop 7")
    I("ds_write_b128 v18, v[8:11]")
    I("ds_write_b128 v18, v[12:15] offset:16")
    e("K1_BNOF:")
    for n in range(PF2):
        I(f"buffer_load_dwordx4 v[{160+4*(n%16)}:{163+4*(n%16)}], v4, s[44:47], s76 offen nt")
        I("s_add_u32 s76, s76, 1024")
    I("s_waitcnt lgkmcnt(0)")
    I("s_barrier")
    I("s_cmp_ge_u32 s74, 86")
    I("s_cbranch_scc1 K1_BEND")
    I("s_cmp_lg_u32 s18, 4")
    I("s_cbranch_scc1 K1_BEND")
    for w in range(1, 4):
        I(f"ds_read_b128 v[{96+8*w}:{99+8*w}], v17 offset:{w*4096}")
        I(f"ds_read_b128 v[{100+8*w}:{103+8*w}], v17 offset:{w*4096+16}")
    I("s_waitcnt lgkmcnt(0)")
    for w in range(1, 4):
        for r in range(8):
            I(f"v_add_f32 v{8+r}, v{8+r}, v{96+8*w+r}")
    for r in range(4):
        I(f"v_cvt_pk_bf16_f32 v{96+r}, v{8+r}, v{12+r}")
    for r in range(4):
        I(f"v_lshlrev_b32 v{8+r}, 16, v{96+r}")
        I(f"v_and_b32 v{12+r}, 0xffff0000, v{96+r}")
    I(f"s_mov_b32 s64, {f2u(0.044715):#x}")
    I(f"s_mov_b32 s65, {f2u(-2.0 * 0.7978845608028654 * 1.4426950408889634):#x}")
    for r in range(4):
        I(f"v_mul_f32 v{96+r}, v{8+r}, v{8+r}")
        I(f"v_mul_f32 v{96+r}, s64, v{96+r}")
        I(f"v_fma_f32 v{96+r}, v{96+r}, v{8+r}, v{8+r}")
        I(f"v_mul_f32 v{96+r}, s65, v{96+r}")
        I(f"v_exp_f32 v{96+r}, v{96+r}")
        I("s_nop 0")
        I(f"v_add_f32 v{96+r}, 1.0, v{96+r}")
        I(f"v_rcp_f32 v{96+r}, v{96+r}")
        I("s_nop 0")
        I(f"v_mul_f32 v{96+r}, v{96+r}, v{8+r}")
    for r in range(4):
        I(f"v_cvt_pk_bf16_f32 v{96+r}, v{96+r}, v{96+r}")
        I(f"v_lshlrev_b32 v{96+r}, 16, v{96+r}")
        I(f"v_mul_f32 v{96+r}, v{96+r}, v{12+r}")
        I(f"v_cvt_pk_bf16_f32 v{96+r}, v{96+r}, v{96+r}")
    I("v_mul_u32_u24 v100, 11008, v2")
    I("v_lshl_add_u32 v100, v3, 1, v100")
    I("v_cmp_lt_u32 vcc, 1, v2")
    I("v_mov_b32 v101, 0x7f000000")
    I("s_lshl_b32 s64, s74, 5")
    I(f"s_add_u32 s64, s64, {HH}")
    I("v_cndmask_b32 v100, v100, v101, vcc")
    I("v_add_u32 v101, 5504, v100")
    for r in range(4):
        I(f"buffer_store_short v{96+r}, v{100+(r>>1)}, s[40:43], s64 offen offset:{(r&1)*2752}")
    e("K1_BEND:")
    I("s_waitcnt vmcnt(0)")
    if "TS" in FL:
        I("s_sub_u32 s18, s18, 4")
        I("s_add_u32 s2, s2, 256")
        ts(0, 4, r=120)
    e("K1_END:")
    I("s_endpgm")

def k2():
    STG = 131072
    PB = STG; MX = STG + 8192; LB = MX + 512
    kstart("k2_kernel")
    I("s_cmp_ge_u32 s2, 256")
    I("s_cbranch_scc1 K2_END")
    I("s_load_dwordx2 s[4:5], s[0:1], 8")
    I("s_load_dwordx4 s[12:15], s[0:1], 32")
    I("s_load_dwordx2 s[72:73], s[0:1], 72")
    I("s_load_dwordx2 s[78:79], s[0:1], 96")
    common_ids()
    I("s_and_b32 s19, s18, 3")
    I("v_lshlrev_b32 v4, 4, v1")
    I("v_and_b32 v8, 31, v1")
    I("v_lshrrev_b32 v9, 5, v1")
    I("s_waitcnt lgkmcnt(0)")
    srd(40, 78, 79, WSSZ)
    srd(44, 4, 5, 33554432)
    srd(48, 12, 13, 4194304)
    srd(52, 14, 15, 4194304)
    srd(56, 72, 73, 1409024)
    I("s_cmp_ge_u32 s18, 4")
    I("s_cbranch_scc1 K2_B")
    c("==== A waves: c_kv DMA (window major), QK")
    ht(1, 0, "c")
    ts(1, 0)
    I("v_lshlrev_b32 v5, 2, v2")
    I("v_xor_b32 v5, v5, v3")
    I("v_lshlrev_b32 v5, 4, v5")
    I("v_lshl_add_u32 v5, v2, 10, v5")
    for q in range(4):
        I(f"v_xor_b32 v{10+q}, {q*16}, v5")
    I("s_lshl_b32 s64, s2, 17")
    I("s_lshl_b32 s65, s19, 15")
    I("s_add_u32 s64, s64, s65")
    I("s_lshl_b32 s65, s19, 13")
    for win in range(4):
        I(f"s_add_u32 s66, s64, {win*256}")
        I(f"s_add_u32 s67, s65, {win*32768}")
        I("s_mov_b32 m0, s67")
        I("s_nop 0")
        for kk in range(8):
            I(f"buffer_load_dwordx4 v{10+(kk&3)}, s[44:47], s66 offen{K2NT} lds")
            if kk != 7:
                I("s_add_u32 m0, m0, 1024")
                I("s_add_u32 s66, s66, 4096")
    c("Q frag read addrs")
    I("v_and_b32 v27, 15, v8")
    I("v_xor_b32 v27, v27, v9")
    I("v_lshlrev_b32 v27, 4, v27")
    I("v_lshl_add_u32 v27, v8, 10, v27")
    I(f"v_add_u32 v27, {STG}, v27")
    for q in range(8):
        I(f"v_xor_b32 v{40+q}, {q*32}, v27")
    c("QK addrs v[12:19]/v[20..27]")
    I("v_and_b32 v11, 3, v8")
    I("v_lshlrev_b32 v11, 2, v11")
    I("v_bfe_u32 v12, v8, 2, 2")
    I("v_or_b32 v11, v11, v12")
    I("v_xor_b32 v11, v11, v9")
    I("v_lshlrev_b32 v11, 4, v11")
    I("v_lshl_add_u32 v11, v8, 8, v11")
    I("v_add_u32 v11, s65, v11")
    for q in range(8):
        I(f"v_xor_b32 v{48+q}, {q*32}, v11")
        I(f"v_add_u32 v{56+q}, 0x10000, v{48+q}")
    for r in range(16):
        I(f"v_mov_b32 v{20+r}, 0")
    I("s_barrier")
    for st in range(32):
        I(f"ds_read_b128 v[{64+4*st}:{67+4*st}], v{40+(st&7)} offset:{(st>>3)*256}")
        if st == 15: I("s_waitcnt lgkmcnt(0)")
    for win in range(4):
        I(f"s_waitcnt vmcnt({8*(3-win)}) lgkmcnt(0)")
        if win == 3: ts(1, 1)
        for q in range(8):
            a = (48 if win < 2 else 56) + q
            I(f"ds_read_b128 v[{192+4*q}:{195+4*q}], v{a} offset:{(win&1)*32768}")
        for q in range(8):
            st = win * 8 + q
            I(f"s_waitcnt lgkmcnt({7-q})")
            I(f"v_mfma_f32_32x32x16_bf16 v[20:35], v[{192+4*q}:{195+4*q}], v[{64+4*st}:{67+4*st}], v[20:35]")
    I("v_lshlrev_b32 v38, 4, v8")
    I("s_lshl_b32 s64, s19, 2")
    I(f"s_add_u32 s64, s64, {MX}")
    I("v_add_u32 v39, s64, v38")
    I("s_lshl_b32 s64, s19, 11")
    I(f"s_add_u32 s64, s64, {PB}")
    I("v_add_u32 v42, s64, v4")
    I("s_nop 7")
    I("v_max3_f32 v36, v20, v21, v22")
    for r in range(3, 15, 2):
        I(f"v_max3_f32 v36, v36, v{20+r}, v{21+r}")
    I("v_max_f32 v36, v36, v35")
    xor32(36, 37, "v_max_f32")
    I("s_barrier")
    I("ds_write_b32 v39, v36")
    I("s_waitcnt lgkmcnt(0)")
    I("s_barrier")
    I(f"v_add_u32 v40, {MX}, v38")
    I("ds_read_b128 v[44:47], v40")
    I(f"s_mov_b32 s64, {f2u(SC):#x}")
    I("s_waitcnt lgkmcnt(0)")
    I("v_max3_f32 v36, v44, v45, v46")
    I("v_max_f32 v36, v36, v47")
    I("v_mul_f32 v36, s64, v36")
    for r in range(16):
        I(f"v_fma_f32 v{20+r}, v{20+r}, s64, -v36")
    for r in range(16):
        I(f"v_exp_f32 v{20+r}, v{20+r}")
    I("s_nop 0")
    for r in range(8):
        I(f"v_cvt_pk_bf16_f32 v{48+r}, v{20+2*r}, v{21+2*r}")
    I("ds_write_b128 v42, v[48:51]")
    I("ds_write_b128 v42, v[52:55] offset:1024")
    I("v_add_f32 v37, v20, v21"); I("v_add_f32 v41, v22, v23"); I("v_add_f32 v43, v24, v25"); I("v_add_f32 v44, v26, v27")
    I("v_add_f32 v37, v37, v28"); I("v_add_f32 v41, v41, v29"); I("v_add_f32 v43, v43, v30"); I("v_add_f32 v44, v44, v31")
    I("v_add_f32 v37, v37, v32"); I("v_add_f32 v41, v41, v33"); I("v_add_f32 v43, v43, v34"); I("v_add_f32 v44, v44, v35")
    I("v_add_f32 v37, v37, v41"); I("v_add_f32 v43, v43, v44"); I("v_add_f32 v37, v37, v43")
    xor32(37, 41, "v_add_f32")
    I(f"v_add_u32 v39, {LB-MX}, v39")
    I("ds_write_b32 v39, v37")
    I("s_branch K2_PV")
    c("==== B waves: Q staging, K3 weight prefetch")
    e("K2_B:")
    I("s_lshl_b32 s64, s17, 15")
    I("s_lshl_b32 s65, s19, 13")
    I("s_add_u32 s64, s64, s65")
    for n in range(8):
        I(f"buffer_load_dwordx4 v[{192+4*n}:{195+4*n}], v4, s[40:43], s64 offen offset:{(n&3)*1024}")
        if n == 3: I("s_add_u32 s64, s64, 4096")
    I("s_and_b32 s64, s19, 1")
    I("s_lshl_b32 s64, s64, 7")
    I("v_xor_b32 v26, s64, v4")
    I(f"s_add_u32 s64, s65, {STG}")
    I("v_add_u32 v26, s64, v26")
    for n in range(8):
        I(f"v_xor_b32 v{16+n}, {n*16}, v26")
    I("v_lshlrev_b32 v38, 4, v8")
    I("s_waitcnt vmcnt(0)")
    for n in range(8):
        I(f"ds_write_b128 v{16+n}, v[{192+4*n}:{195+4*n}] offset:{n*1024}")
    I("s_waitcnt lgkmcnt(0)")
    I("s_barrier")
    I("s_barrier")
    if "NOPF3" not in FL:
        I("v_and_b32 v56, 255, v0")
        I("v_lshrrev_b32 v57, 4, v56")
        I("v_lshlrev_b32 v56, 4, v56")
        I("s_lshl_b32 s64, s16, 17")
        I("s_lshl_b32 s65, s17, 14")
        I("s_add_u32 s64, s64, s65")
        for n in range(4):
            I(f"buffer_load_dwordx4 v[{240+4*n}:{243+4*n}], v56, s[52:55], s64 offen nt")
            I("s_add_u32 s64, s64, 4096")
        I("v_lshlrev_b32 v57, 13, v57")
        I("v_lshl_add_u32 v57, v3, 4, v57")
        I("s_lshl_b32 s64, s17, 19")
        I("s_lshl_b32 s65, s16, 8")
        I("s_add_u32 s64, s64, s65")
        for n in range(4):
            I(f"buffer_load_dwordx4 v[{240+4*n}:{243+4*n}], v57, s[48:51], s64 offen nt")
            I("s_add_u32 s64, s64, 131072")
        I("s_lshl_b32 s64, s2, 14")
        for n in range(4):
            I(f"buffer_load_dwordx4 v[{240+4*n}:{243+4*n}], v56, s[56:59], s64 offen nt")
            I("s_add_u32 s64, s64, 4096")
    I("s_barrier")
    c("==== PV on 8 waves: window = w8>>1, half = w8&1")
    e("K2_PV:")
    I("v_lshrrev_b32 v44, 2, v3")
    I("v_bfe_u32 v45, v1, 4, 1")
    I("v_lshl_add_u32 v46, v9, 2, v44")
    I("v_bfe_u32 v47, v3, 1, 1")
    I("v_lshl_add_u32 v47, v45, 1, v47")
    I("v_lshl_add_u32 v56, v44, 2, v9")
    I("v_xor_b32 v47, v47, v56")
    I("v_lshlrev_b32 v47, 4, v47")
    I("v_and_b32 v56, 1, v3")
    I("v_lshl_add_u32 v47, v56, 3, v47")
    I("v_lshl_add_u32 v47, v46, 8, v47")
    I("s_lshr_b32 s64, s18, 1")
    I("s_lshl_b32 s64, s64, 15")
    I("v_add_u32 v47, s64, v47")
    I("s_and_b32 s64, s18, 1")
    I("s_lshl_b32 s64, s64, 7")
    I("v_xor_b32 v47, s64, v47")
    for nt in range(2):
        for sec in range(2):
            x = (nt << 6) ^ (sec * 32)
            I(f"v_xor_b32 v{224+nt*2+sec}, {x}, v47")
            if sec: I(f"v_add_u32 v{224+nt*2+sec}, 2048, v{224+nt*2+sec}")
    I(f"v_add_u32 v42, {PB}, v4")
    I(f"v_add_u32 v40, {LB}, v38")
    for r in range(32):
        I(f"v_mov_b32 v{128+r}, 0")
    c("O staging addrs")
    I("v_and_b32 v60, 7, v8")
    I("v_lshlrev_b32 v60, 4, v60")
    I("v_lshl_add_u32 v60, v9, 3, v60")
    I("v_lshl_add_u32 v60, v8, 7, v60")
    I("s_lshl_b32 s64, s18, 12")
    I("v_add_u32 v60, s64, v60")
    I("v_lshrrev_b32 v61, 3, v1")
    I("v_and_b32 v62, 7, v1")
    I("v_xor_b32 v63, v61, v62")
    I("v_lshlrev_b32 v63, 4, v63")
    I("v_lshl_add_u32 v63, v61, 7, v63")
    I("v_add_u32 v63, s64, v63")
    I("v_lshlrev_b32 v61, 18, v61")
    I("v_lshl_add_u32 v61, v62, 4, v61")
    I("s_lshl_b32 s68, s2, 7")
    I("s_lshl_b32 s65, s18, 15")
    I("s_add_u32 s68, s68, s65")
    I(f"s_add_u32 s68, s68, {OPB}")
    I("s_waitcnt lgkmcnt(0)")
    I("s_barrier")
    for t in range(8):
        I(f"ds_read_b128 v[{96+4*t}:{99+4*t}], v42 offset:{t*1024}")
    I("ds_read_b128 v[44:47], v40")
    for tp in range(4):
        for t2 in range(2):
            t = tp * 2 + t2
            for nt in range(2):
                for sec in range(2):
                    d = 192 + t2 * 8 + nt * 4 + sec * 2
                    I(f"ds_read_b64_tr_b16 v[{d}:{d+1}], v{224+nt*2+sec} offset:{t*4096}")
        for t2 in range(2):
            t = tp * 2 + t2
            for nt in range(2):
                d = 192 + t2 * 8 + nt * 4
                I(f"s_waitcnt lgkmcnt({6-4*t2-2*nt})")
                I(f"v_mfma_f32_32x32x16_bf16 v[{128+16*nt}:{143+16*nt}], v[{d}:{d+3}], v[{96+4*t}:{99+4*t}], v[{128+16*nt}:{143+16*nt}]")
    I("s_cmp_lg_u32 s18, 0")
    I("s_cbranch_scc1 K2_NOSTAT")
    ts(1, 2, r=250)
    I("v_add_f32 v37, v44, v45")
    I("v_add_f32 v46, v46, v47")
    I("v_add_f32 v37, v37, v46")
    I("v_lshlrev_b32 v40, 11, v8")
    I("v_cmp_lt_u32 vcc, 0, v9")
    I("v_mov_b32 v41, 0x7f000000")
    I("s_lshl_b32 s64, s2, 3")
    I(f"s_add_u32 s64, s64, {STATS}")
    I("v_cndmask_b32 v40, v40, v41, vcc")
    I("buffer_store_dwordx2 v[36:37], v40, s[40:43], s64 offen")
    e("K2_NOSTAT:")
    I("s_nop 7")
    I("s_nop 3")
    for nt in range(2):
        for q in range(4):
            b = 128 + 16 * nt + 4 * q
            k = nt * 4 + q
            I(f"v_cvt_pk_bf16_f32 v{160+2*k}, v{b}, v{b+1}")
            I(f"v_cvt_pk_bf16_f32 v{161+2*k}, v{b+2}, v{b+3}")
            I(f"v_xor_b32 v{176+k}, {k*16}, v60")
    I("s_barrier")
    for k in range(8):
        I(f"ds_write_b64 v{176+k}, v[{160+2*k}:{161+2*k}]")
    for n in range(4):
        I(f"ds_read_b128 v[{64+4*n}:{67+4*n}], v63 offset:{n*1024}")
    for n in range(4):
        I(f"s_waitcnt lgkmcnt({3-n})")
        I(f"buffer_store_dwordx4 v[{64+4*n}:{67+4*n}], v61, s[40:43], s68 offen{PST}")
        if n != 3: I(f"s_add_u32 s68, s68, {8*262144}")
    ht(1, 1, "d")
    if "TS" in FL:
        I("s_waitcnt vmcnt(0)")
        I("s_cmp_ge_u32 s18, 4")
        I("s_cbranch_scc1 K2_END")
        ts(1, 3, r=250)
    e("K2_END:")
    I("s_endpgm")

def k3():
    WUV = 131072; COEF = WUV + 16384; CL = COEF + 1024; CLS = 144; CX = CL + 8 * CLS; CXS = 272
    kstart("k3_kernel")
    I("s_cmp_ge_u32 s2, 256")
    I("s_cbranch_scc1 K3_END")
    I("s_load_dwordx4 s[12:15], s[0:1], 32")
    I("s_load_dwordx2 s[72:73], s[0:1], 72")
    I("s_load_dwordx2 s[78:79], s[0:1], 96")
    common_ids()
    I("s_and_b32 s19, s18, 3")
    I("s_waitcnt lgkmcnt(0)")
    srd(40, 78, 79, WSSZ)
    srd(48, 12, 13, 4194304)
    srd(52, 14, 15, 4194304)
    srd(56, 72, 73, 1409024)
    I("v_lshlrev_b32 v4, 4, v1")
    I("v_and_b32 v48, 7, v1")
    c("hh frag (all waves)")
    I("v_mul_u32_u24 v18, 2752, v48")
    I("v_lshl_add_u32 v18, v2, 3, v18")
    I("s_lshl_b32 s64, s2, 5")
    I(f"s_add_u32 s64, s64, {HH}")
    I("s_cmp_ge_u32 s18, 4")
    I("s_cbranch_scc1 K3_B")
    c("==== group A: combine")
    ht(2, 0, "e")
    if "TS" in FL: ts(2, 0)
    I("v_lshlrev_b32 v5, 3, v0")
    I("s_lshl_b32 s65, s16, 11")
    I(f"s_add_u32 s65, s65, {STATS}")
    I("buffer_load_dwordx2 v[8:9], v5, s[40:43], s65 offen")
    I("v_lshrrev_b32 v6, 3, v0")
    I("v_lshlrev_b32 v7, 5, v6")
    I("v_lshlrev_b32 v6, 10, v6")
    I("v_lshl_add_u32 v6, v48, 4, v6")
    I("s_lshl_b32 s65, s16, 3")
    I("s_add_u32 s65, s65, s17")
    I("s_lshl_b32 s65, s65, 15")
    I(f"s_add_u32 s65, s65, {OPB}")
    for k in range(8):
        I(f"buffer_load_dwordx4 v[{64+4*k}:{67+4*k}], v6, s[40:43], s65 offen offset:{k*128}")
    I("buffer_load_dwordx2 v[144:145], v18, s[40:43], s64 offen")
    I("s_waitcnt vmcnt(9)")
    I("v_mov_b32 v20, v8")
    dppred(20, 21, "v_max_f32", 32)
    I("v_sub_f32 v20, v8, v20")
    I("v_exp_f32 v20, v20")
    I("s_nop 0")
    I("v_mul_f32 v22, v20, v9")
    dppred(22, 21, "v_add_f32", 32)
    I("v_rcp_f32 v22, v22")
    I("s_nop 0")
    I("v_mul_f32 v20, v20, v22")
    I("v_lshlrev_b32 v21, 2, v0")
    I(f"v_add_u32 v21, {COEF}, v21")
    I("ds_write_b32 v21, v20")
    I(f"v_add_u32 v7, {COEF}, v7")
    I("ds_read_b128 v[24:27], v7")
    I("ds_read_b128 v[28:31], v7 offset:16")
    for q in range(8):
        I(f"v_mov_b32 v{32+q}, 0")
    I("s_waitcnt lgkmcnt(0)")
    for k in range(8):
        I(f"s_waitcnt vmcnt({8-k})")
        for q in range(4):
            I(f"v_lshlrev_b32 v40, 16, v{64+4*k+q}")
            I(f"v_and_b32 v41, 0xffff0000, v{64+4*k+q}")
            I(f"v_fmac_f32 v{32+2*q}, v{24+k}, v40")
            I(f"v_fmac_f32 v{33+2*q}, v{24+k}, v41")
    for q in range(8):
        I(f"v_add_f32_dpp v{32+q}, v{32+q}, v{32+q} row_ror:8 row_mask:0xf bank_mask:0xf")
    for q in range(8):
        I(f"v_mov_b32 v{40+q}, v{32+q}")
    I("s_nop 1")
    for q in range(8):
        I(f"v_permlane16_swap_b32 v{32+q}, v{40+q}")
    I("s_nop 1")
    for q in range(8):
        I(f"v_add_f32 v{32+q}, v{32+q}, v{40+q}")
    for q in range(4):
        I(f"v_cvt_pk_bf16_f32 v{44+q}, v{32+2*q}, v{33+2*q}")
    I("v_lshrrev_b32 v49, 5, v0")
    I(f"v_mul_u32_u24 v49, {CLS}, v49")
    I("v_lshl_add_u32 v49, v48, 4, v49")
    I(f"v_add_u32 v49, {CL}, v49")
    I("ds_write_b128 v49, v[44:47]")
    if "TS" in FL: ts(2, 1)
    I(f"v_mul_u32_u24 v49, {CLS}, v48")
    I("v_lshl_add_u32 v49, v2, 3, v49")
    I(f"v_add_u32 v49, {CL}, v49")
    I("v_lshrrev_b32 v50, 2, v3")
    I("v_lshl_add_u32 v51, v2, 2, v50")
    I("v_and_b32 v52, 7, v51")
    I("s_lshl_b32 s64, s19, 1")
    I("v_xor_b32 v53, s64, v52")
    I("v_lshlrev_b32 v54, 8, v51")
    I("v_lshl_add_u32 v54, v53, 5, v54")
    I("v_and_b32 v55, 3, v3")
    I("v_lshl_add_u32 v54, v55, 3, v54")
    I(f"v_add_u32 v54, {WUV}, v54")
    I("v_xor_b32 v55, 32, v54")
    for r in range(8):
        I(f"v_mov_b32 v{88+r}, 0")
    I("s_waitcnt lgkmcnt(0)")
    I("s_barrier")
    for ks in range(2):
        I(f"ds_read2_b64 v[{64+4*ks}:{67+4*ks}], v49 offset0:{ks*8} offset1:{ks*8+4}")
        for nt in range(2):
            d = 72 + (ks * 2 + nt) * 4
            I(f"ds_read_b64_tr_b16 v[{d}:{d+1}], v{54+nt} offset:{ks*8192}")
            I(f"ds_read_b64_tr_b16 v[{d+2}:{d+3}], v{54+nt} offset:{ks*8192+4096}")
    I("s_waitcnt lgkmcnt(0)")
    for ks in range(2):
        for nt in range(2):
            d = 72 + (ks * 2 + nt) * 4
            I(f"v_mfma_f32_16x16x32_bf16 v[{88+4*nt}:{91+4*nt}], v[{64+4*ks}:{67+4*ks}], v[{d}:{d+3}], v[{88+4*nt}:{91+4*nt}]")
    I(f"v_mul_u32_u24 v56, {4*CXS}, v2")
    I("v_lshl_add_u32 v56, v3, 1, v56")
    I("s_lshl_b32 s64, s19, 6")
    I(f"s_add_u32 s64, s64, {CX}")
    I("v_add_u32 v56, s64, v56")
    I("s_nop 7")
    for nt in range(2):
        I(f"v_cvt_pk_bf16_f32 v{96+2*nt}, v{88+4*nt}, v{89+4*nt}")
        I(f"v_cvt_pk_bf16_f32 v{97+2*nt}, v{90+4*nt}, v{91+4*nt}")
    for nt in range(2):
        I(f"ds_write_b16 v56, v{96+2*nt} offset:{nt*32}")
        I(f"ds_write_b16_d16_hi v56, v{96+2*nt} offset:{nt*32+CXS}")
        I(f"ds_write_b16 v56, v{97+2*nt} offset:{nt*32+2*CXS}")
        I(f"ds_write_b16_d16_hi v56, v{97+2*nt} offset:{nt*32+3*CXS}")
    I("s_waitcnt vmcnt(0) lgkmcnt(0)")
    I("s_barrier")
    I("s_branch K3_O")
    c("==== group B: weight loads")
    e("K3_B:")
    I("buffer_load_dwordx2 v[144:145], v18, s[40:43], s64 offen")
    I("v_lshlrev_b32 v10, 1, v2")
    I("v_xor_b32 v10, v10, v3")
    I("v_lshlrev_b32 v10, 4, v10")
    I("v_lshl_add_u32 v10, v2, 13, v10")
    I("v_xor_b32 v11, 0x80, v10")
    I("s_lshl_b32 s64, s17, 6")
    I("s_lshl_b32 s65, s19, 4")
    I("s_add_u32 s64, s64, s65")
    I("s_lshl_b32 s64, s64, 13")
    I("s_lshl_b32 s66, s16, 8")
    I("s_add_u32 s64, s64, s66")
    I("s_lshl_b32 s65, s65, 8")
    I(f"s_add_u32 s65, s65, {WUV}")
    I("s_mov_b32 m0, s65")
    for i in range(4):
        I(f"buffer_load_dwordx4 v{10 + (i & 1)}, s[48:51], s64 offen nt lds")
        if i != 3:
            I("s_add_u32 m0, m0, 1024")
            I("s_add_u32 s64, s64, 32768")
    I("s_lshl_b32 s64, s16, 17")
    I("s_lshl_b32 s65, s19, 15")
    I("s_add_u32 s64, s64, s65")
    I("s_mov_b32 m0, s65")
    for kk in range(32):
        I(f"v_xor_b32 v{12 + (kk & 3)}, {(kk & 7) * 32}, v4")
        I(f"buffer_load_dwordx4 v{12 + (kk & 3)}, s[52:55], s64 offen{WONT} lds")
        if kk != 31:
            I("s_add_u32 m0, m0, 1024")
            I("s_add_u32 s64, s64, 1024")
    I("s_lshl_b32 s64, s2, 14")
    I("s_lshl_b32 s65, s19, 10")
    I("s_add_u32 s64, s64, s65")
    for n in range(4):
        I(f"buffer_load_dwordx4 v[{128+4*n}:{131+4*n}], v4, s[56:59], s64 offen nt")
        if n != 3: I("s_add_u32 s64, s64, 4096")
    I("v_lshrrev_b32 v50, 2, v3")
    I("v_lshl_add_u32 v51, v2, 2, v50")
    I("v_and_b32 v52, 7, v51")
    I("s_lshl_b32 s64, s19, 5")
    I("v_xor_b32 v57, s64, v4")
    I("s_lshl_b32 s64, s19, 10")
    I(f"s_add_u32 s64, s64, {WUV}")
    I("v_add_u32 v57, s64, v57")
    I("v_xor_b32 v58, 0x80, v57")
    I("s_waitcnt vmcnt(36)")
    I("s_barrier")
    I("s_waitcnt vmcnt(0)")
    I("s_barrier")
    for n in range(4):
        I(f"ds_write_b128 v{57+(n&1)}, v[{128+4*n}:{131+4*n}] offset:{n*4096}")
    c("==== o-proj on 8 waves: wave w8 -> cols 64*w8..")
    e("K3_O:")
    I(f"v_mul_u32_u24 v49, {CXS}, v48")
    I("v_lshl_add_u32 v49, v2, 3, v49")
    I(f"v_add_u32 v49, {CX}, v49")
    for ks in range(4):
        I(f"ds_read2_b64 v[{64+4*ks}:{67+4*ks}], v49 offset0:{ks*8} offset1:{ks*8+4}")
    I("v_lshlrev_b32 v54, 10, v51")
    I("v_lshl_add_u32 v54, v52, 5, v54")
    I("v_and_b32 v55, 3, v3")
    I("v_lshl_add_u32 v54, v55, 3, v54")
    I("s_lshr_b32 s64, s18, 1")
    I("s_lshl_b32 s64, s64, 8")
    I("v_add_u32 v54, s64, v54")
    I("s_and_b32 s64, s18, 1")
    I("s_lshl_b32 s64, s64, 7")
    I("v_xor_b32 v54, s64, v54")
    for nt in range(4):
        I(f"v_xor_b32 v{100+nt}, {nt*32}, v54")
        I(f"v_add_u32 v{108+nt}, 0x10000, v{100+nt}")
    for r in range(16):
        I(f"v_mov_b32 v{160+r}, 0")
    for kp in range(2):
        for k2 in range(2):
            ks = kp * 2 + k2
            for nt in range(4):
                a = (100 if ks < 2 else 108) + nt
                d = 192 + (k2 * 4 + nt) * 4
                I(f"ds_read_b64_tr_b16 v[{d}:{d+1}], v{a} offset:{(ks&1)*32768}")
                I(f"ds_read_b64_tr_b16 v[{d+2}:{d+3}], v{a} offset:{(ks&1)*32768+16384}")
        for k2 in range(2):
            ks = kp * 2 + k2
            for nt in range(4):
                d = 192 + (k2 * 4 + nt) * 4
                I(f"s_waitcnt lgkmcnt({14-2*(k2*4+nt)})")
                I(f"v_mfma_f32_16x16x32_bf16 v[{160+4*nt}:{163+4*nt}], v[{64+4*ks}:{67+4*ks}], v[{d}:{d+3}], v[{160+4*nt}:{163+4*nt}]")
    I("s_cmp_ge_u32 s2, 86")
    I("s_cbranch_scc1 K3_NOFFN2")
    I("s_barrier")
    for nt in range(4):
        I(f"v_add_u32 v{100+nt}, {WUV}, v{100+nt}")
    for nt in range(4):
        d = 192 + nt * 2
        I(f"ds_read_b64_tr_b16 v[{d}:{d+1}], v{100+nt}")
    I("s_waitcnt lgkmcnt(0)")
    for nt in range(4):
        d = 192 + nt * 2
        I(f"v_mfma_f32_16x16x16_bf16 v[{160+4*nt}:{163+4*nt}], v[144:145], v[{d}:{d+1}], v[{160+4*nt}:{163+4*nt}]")
    e("K3_NOFFN2:")
    I("v_lshlrev_b32 v60, 13, v2")
    I("v_lshl_add_u32 v60, v3, 2, v60")
    I("v_cmp_lt_u32 vcc, 1, v2")
    I("v_mov_b32 v61, 0x7f000000")
    I("s_lshl_b32 s64, s2, 14")
    I("s_lshl_b32 s65, s18, 8")
    I("v_cndmask_b32 v60, v60, v61, vcc")
    I("s_add_u32 s64, s64, s65")
    I(f"s_add_u32 s64, s64, {OUTP}")
    I("s_add_u32 s65, s64, 4096")
    I("s_nop 7")
    for nt in range(4):
        for r in range(4):
            I(f"buffer_store_dword v{160+4*nt+r}, v60, s[40:43], s{64 + (r >> 1)} offen offset:{(r&1)*2048+nt*64}{OST}")
    ht(2, 1, "f")
    if "TS" in FL:
        I("s_waitcnt vmcnt(0)")
        I("s_cmp_ge_u32 s18, 4")
        I("s_cbranch_scc1 K3_END")
        ts(2, 3)
    e("K3_END:")
    I("s_endpgm")

def k4():
    kstart("k4_kernel")
    I("s_cmp_ge_u32 s2, 64")
    I("s_cbranch_scc1 K4_END")
    I("s_load_dwordx2 s[4:5], s[0:1], 0")
    I("s_load_dwordx2 s[8:9], s[0:1], 80")
    I("s_load_dwordx2 s[6:7], s[0:1], 96")
    I("v_and_b32 v1, 15, v0")
    I("v_lshrrev_b32 v2, 4, v0")
    I("v_lshrrev_b32 v4, 6, v0")
    I("v_lshlrev_b32 v3, 18, v2")
    I("v_readfirstlane_b32 s18, v4")
    I("v_lshl_add_u32 v3, v1, 4, v3")
    I("s_lshl_b32 s16, s2, 8")
    I("s_waitcnt lgkmcnt(0)")
    srd(20, 4, 5, 8192)
    srd(24, 8, 9, 8192)
    srd(40, 6, 7, WSSZ)
    ts(3, 0, r=76)
    if "HT" in FL:
        I("s_memrealtime s[92:93]")
    I(f"s_add_u32 s44, s16, {OUTP}")
    for k in range(16):
        I(f"buffer_load_dwordx4 v[{8+4*k}:{11+4*k}], v3, s[40:43], s44 offen")
        if k != 15: I("s_add_u32 s44, s44, 16384")
    I("v_lshlrev_b32 v4, 3, v1")
    I("s_lshl_b32 s17, s2, 7")
    I("buffer_load_dwordx2 v[72:73], v4, s[20:23], s17 offen")
    I("s_waitcnt vmcnt(1)")
    for k in range(1, 16):
        for q in range(4):
            I(f"v_add_f32 v{8+q}, v{8+q}, v{8+4*k+q}")
    for q in range(4):
        I(f"v_mov_b32 v{12+q}, v{8+q}")
    I("s_nop 1")
    for q in range(4):
        I(f"v_permlane16_swap_b32 v{8+q}, v{12+q}")
    I("s_nop 1")
    for q in range(4):
        I(f"v_add_f32 v{8+q}, v{8+q}, v{12+q}")
    for q in range(4):
        I(f"v_mov_b32 v{12+q}, v{8+q}")
    I("s_nop 1")
    for q in range(4):
        I(f"v_permlane32_swap_b32 v{8+q}, v{12+q}")
    I("s_nop 1")
    for q in range(4):
        I(f"v_add_f32 v{8+q}, v{8+q}, v{12+q}")
    I("v_lshlrev_b32 v5, 4, v0")
    I("ds_write_b128 v5, v[8:11]")
    I("s_waitcnt lgkmcnt(0)")
    I("s_barrier")
    I("v_lshlrev_b32 v5, 4, v1")
    for w in range(4):
        I(f"ds_read_b128 v[{16+4*w}:{19+4*w}], v5 offset:{w*1024}")
    I("s_waitcnt vmcnt(0) lgkmcnt(0)")
    for q in range(4):
        I(f"v_add_f32 v{16+q}, v{16+q}, v{20+q}")
        I(f"v_add_f32 v{24+q}, v{24+q}, v{28+q}")
        I(f"v_add_f32 v{16+q}, v{16+q}, v{24+q}")
    I("v_lshlrev_b32 v20, 16, v72")
    I("v_and_b32 v21, 0xffff0000, v72")
    I("v_lshlrev_b32 v22, 16, v73")
    I("v_and_b32 v23, 0xffff0000, v73")
    for q in range(4):
        I(f"v_add_f32 v{16+q}, v{16+q}, v{20+q}")
    I("v_cvt_pk_bf16_f32 v24, v16, v17")
    I("v_cvt_pk_bf16_f32 v25, v18, v19")
    I("v_cmp_lt_u32 vcc, 15, v0")
    I("v_mov_b32 v6, 0x7f000000")
    I("s_nop 1")
    I("v_cndmask_b32 v4, v4, v6, vcc")
    I("buffer_store_dwordx2 v[24:25], v4, s[24:27], s17 offen")
    if "HT" in FL:
        I("s_cmp_lg_u32 s2, 5")
        I("s_cbranch_scc1 K4_END")
        I("s_load_dwordx2 s[10:11], s[0:1], 88")
        I("s_memrealtime s[90:91]")
        I("s_waitcnt lgkmcnt(0)")
        I("s_sub_u32 s10, s10, 0")
        I("s_subb_u32 s11, s11, 0")
        srd(28, 10, 11, 256)
        I("v_lshlrev_b32 v30, 2, v0")
        I(f"v_add_u32 v31, {TSOFF + 0x40000}, v30")
        I("buffer_load_dword v32, v31, s[40:43], 0 offen sc1")
        I("s_waitcnt vmcnt(0)")
        I("v_mov_b32 v33, s92")
        I("v_cmp_eq_u32 vcc, 6, v0")
        I("s_nop 1")
        I("v_cndmask_b32 v32, v32, v33, vcc")
        I("v_mov_b32 v33, s90")
        I("v_cmp_eq_u32 vcc, 7, v0")
        I("s_nop 1")
        I("v_cndmask_b32 v32, v32, v33, vcc")
        I("v_cmp_gt_u32 vcc, 8, v0")
        I("s_and_saveexec_b64 s[86:87], vcc")
        I("buffer_store_dword v32, v30, s[28:31], 0 offen")
    if "TS" in FL:
        I("s_waitcnt vmcnt(0)")
        ts(3, 3, r=76)
    e("K4_END:")
    I("s_endpgm")
    e("KALL_END:")

e("; @launch kernel=k1_kernel grid=(256,1,1) block=(512,1,1) lds=160256")
e("; @launch kernel=k2_kernel grid=(256,1,1) block=(512,1,1) lds=163840")
e("; @launch kernel=k3_kernel grid=(256,1,1) block=(512,1,1) lds=154112")
e("; @launch kernel=k4_kernel grid=(64,1,1) block=(256,1,1) lds=4096")
e('.amdgcn_target "amdgcn-amd-amdhsa--gfx950"')
e(".text")
k1(); k2(); k3(); k4()
e('.section .rodata,"a"')
for n, v in (("k1_kernel", 256), ("k2_kernel", 256), ("k3_kernel", 256), ("k4_kernel", 80)):
    e(".p2align 6")
    kdesc(n, v)
if "NONT" in FL:
    L = [x.replace(" nt lds", " lds") if x.endswith(" nt lds") else (x[:-3] if x.endswith(" nt") else x) for x in L]
open(sys.argv[1], "w").write("\n".join(L) + "\n")
```

```python
import sys, os, struct
FL = os.environ.get("FL", "").split(",")
L = []
def e(s=""): L.append(s)
def c(s): L.append("    ; " + s)
def I(s): L.append("    " + s)
def f2u(x): return struct.unpack("<I", struct.pack("<f", x))[0]

QABS = 0x0
HH   = 0x40000
STATS= 0x50000
OPB  = 0x100000
OUTP = 0x1100000
TSOFF= 0x1500000
WSSZ = 0x1600000
SC = (128 ** -0.5) * 1.4426950408889634
TSX = 1 if "TS" in FL else 0
PST = os.environ.get("PST", " sc1")
PFN = int(os.environ.get("PFN", "32"))
PFT = int(os.environ.get("PFT", "12"))
K2NT = os.environ.get("K2NT", " nt")
WONT = os.environ.get("WONT", " nt")
OST = os.environ.get("OST", "")
PFD = int(os.environ.get("PFD", "1"))
PFX = int(os.environ.get("PFX", "0"))
PFNF = int(os.environ.get("PFNF", "8"))
FNT = os.environ.get("FNT", " nt")

def srd(d, lo, hi, nbytes):
    I(f"s_mov_b32 s{d}, s{lo}")
    I(f"s_and_b32 s{d+1}, s{hi}, 0xffff")
    I(f"s_mov_b32 s{d+2}, {nbytes}")
    I(f"s_mov_b32 s{d+3}, 0x00020000")

def kstart(name):
    e(f".globl {name}"); e(".p2align 8"); e(f".type {name},@function"); e(f"{name}:")

def kdesc(name, vgpr, sgpr=102):
    e(f".amdhsa_kernel {name}")
    e(f"  .amdhsa_next_free_vgpr {vgpr}")
    e(f"  .amdhsa_next_free_sgpr {sgpr}")
    e(f"  .amdhsa_accum_offset {(vgpr+3)//4*4}")
    e("  .amdhsa_group_segment_fixed_size 0")
    e("  .amdhsa_kernarg_size 104")
    e("  .amdhsa_user_sgpr_count 2")
    e("  .amdhsa_user_sgpr_kernarg_segment_ptr 1")
    e("  .amdhsa_system_sgpr_workgroup_id_x 1")
    e(".end_amdhsa_kernel")

def ts(kid, idx, r=250):
    if "TS" not in FL: return
    I("s_memrealtime s[90:91]")
    I("s_waitcnt lgkmcnt(0)")
    I(f"v_mov_b32 v{r}, s90")
    I("s_lshl_b32 s92, s2, 7")
    I("s_lshl_b32 s93, s18, 5")
    I("s_add_u32 s92, s92, s93")
    I(f"s_add_u32 s92, s92, {TSOFF + kid*65536 + idx*4}")
    I(f"v_and_b32 v{r+2}, 63, v0")
    I(f"v_cmp_eq_u32 vcc, 0, v{r+2}")
    I(f"v_mov_b32 v{r+1}, 0x7f000000")
    I("s_nop 1")
    I(f"v_cndmask_b32 v{r+1}, v{r+1}, 0, vcc")
    I(f"buffer_store_dword v{r}, v{r+1}, s[40:43], s92 offen")

def ht(kid, idx, lab):
    if "HT" not in FL: return
    I("s_cmp_lg_u32 s2, 5")
    I(f"s_cbranch_scc1 HT_{lab}")
    I("s_cmp_lg_u32 s18, 0")
    I(f"s_cbranch_scc1 HT_{lab}")
    I("s_memrealtime s[90:91]")
    I("s_waitcnt lgkmcnt(0)")
    I("v_mov_b32 v250, s90")
    I(f"v_mov_b32 v251, {TSOFF + 0x40000 + kid*8 + idx*4}")
    I("buffer_store_dword v250, v251, s[40:43], 0 offen sc1")
    I("s_waitcnt vmcnt(0)")
    e(f"HT_{lab}:")

def xor32(v, tmp, op):
    I(f"v_mov_b32 v{tmp}, v{v}")
    I("s_nop 1")
    I(f"v_permlane32_swap_b32 v{v}, v{tmp}")
    I("s_nop 1")
    I(f"{op} v{v}, v{v}, v{tmp}")

def dppred(v, tmp, op, width):
    for m in ("quad_perm:[1,0,3,2]", "quad_perm:[2,3,0,1]", "row_half_mirror", "row_mirror"):
        I("s_nop 1")
        I(f"{op}_dpp v{v}, v{v}, v{v} {m} row_mask:0xf bank_mask:0xf")
    if width >= 32:
        I(f"v_mov_b32 v{tmp}, v{v}")
        I("s_nop 1")
        I(f"v_permlane16_swap_b32 v{v}, v{tmp}")
        I("s_nop 1")
        I(f"{op} v{v}, v{v}, v{tmp}")
    if width >= 64:
        xor32(v, tmp, op)

def common_ids():
    I("s_and_b32 s16, s2, 31")
    I("s_lshr_b32 s17, s2, 5")
    I("v_lshrrev_b32 v2, 6, v0")
    I("v_and_b32 v1, 63, v0")
    I("s_nop 0")
    I("v_readfirstlane_b32 s18, v2")
    I("v_lshrrev_b32 v2, 4, v1")
    I("v_and_b32 v3, 15, v1")
    I("s_mov_b32 s19, s18")

def k1():
    XN = 131072; XNS = 1040; QB = XN + 8 * XNS; QS = 272; FST = QB + 16 * QS; FST = (FST + 255) // 256 * 256
    assert FST + 16384 <= 163840
    PF0 = int(os.environ.get("PF0", "0")); PF1 = int(os.environ.get("PF1", "0")); PF2 = int(os.environ.get("PF2", "0"))
    kstart("k1_kernel")
    I("s_cmp_ge_u32 s2, 256")
    I("s_cbranch_scc1 K1_END")
    I("s_load_dwordx4 s[4:7], s[0:1], 0")
    I("s_load_dwordx4 s[8:11], s[0:1], 16")
    I("s_load_dwordx4 s[68:71], s[0:1], 56")
    I("s_load_dwordx2 s[78:79], s[0:1], 96")
    if "TLB" in FL:
        I("s_load_dwordx4 s[12:15], s[0:1], 32")
        I("s_load_dwordx4 s[80:83], s[0:1], 72")
    common_ids()
    I("s_and_b32 s19, s18, 3")
    I("v_lshlrev_b32 v4, 4, v1")
    I("v_lshrrev_b32 v28, 2, v3")
    I("v_lshl_add_u32 v28, v2, 2, v28")
    I("v_and_b32 v29, 7, v28")
    I("v_and_b32 v30, 3, v3")
    I("v_and_b32 v31, 7, v1")
    I(f"v_mul_u32_u24 v31, {XNS}, v31")
    I("v_lshl_add_u32 v31, v2, 3, v31")
    I("s_lshl_b32 s64, s19, 8")
    I(f"s_add_u32 s64, s64, {XN}")
    I("v_add_u32 v31, s64, v31")
    I("s_waitcnt lgkmcnt(0)")
    srd(20, 4, 5, 8192)
    srd(24, 8, 9, 4194304)
    srd(28, 10, 11, 4194304)
    srd(32, 68, 69, 1409024)
    srd(36, 70, 71, 1409024)
    srd(40, 78, 79, WSSZ)
    srd(44, 6, 7, 33554432)
    I("s_cmp_ge_u32 s18, 4")
    I("s_cbranch_scc1 K1_B")
    c("==== A waves")
    ht(0, 0, "a")
    ts(0, 0)
    I("v_lshlrev_b32 v6, 1, v2")
    I("v_xor_b32 v6, v6, v3")
    I("v_lshlrev_b32 v6, 4, v6")
    I("v_lshl_add_u32 v6, v2, 13, v6")
    I("v_xor_b32 v7, 0x80, v6")
    I("s_lshl_b32 s64, s19, 20")
    I("s_lshl_b32 s65, s16, 8")
    I("s_add_u32 s64, s64, s65")
    I("s_lshl_b32 s66, s19, 15")
    I("s_mov_b32 m0, s66")
    I("s_barrier")
    for i in range(32):
        I(f"buffer_load_dwordx4 v{6 + (i & 1)}, s[24:27], s64 offen nt lds")
        if i != 31:
            I("s_add_u32 m0, m0, 1024")
            I("s_add_u32 s64, s64, 32768")
    I("v_lshlrev_b32 v8, 13, v3")
    I("v_lshl_add_u32 v8, v2, 4, v8")
    I("s_lshl_b32 s64, s17, 6")
    I("s_lshl_b32 s66, s19, 4")
    I("s_add_u32 s64, s64, s66")
    I("s_lshl_b32 s64, s64, 13")
    I("s_add_u32 s64, s64, s65")
    for ks in range(4):
        I(f"buffer_load_dwordx4 v[{80+4*ks}:{83+4*ks}], v8, s[28:31], s64 offen offset:{ks*64} nt")
    c("addresses")
    I("v_and_b32 v70, 7, v1")
    I(f"v_mul_u32_u24 v70, {XNS}, v70")
    I("v_lshl_add_u32 v70, v2, 3, v70")
    I(f"v_add_u32 v70, {XN}, v70")
    I("s_lshl_b32 s64, s19, 1")
    I("v_xor_b32 v73, s64, v29")
    I("v_lshlrev_b32 v74, 8, v28")
    I("v_lshl_add_u32 v74, v73, 5, v74")
    I("v_lshl_add_u32 v74, v30, 3, v74")
    I("v_xor_b32 v75, 32, v74")
    I("v_add_u32 v76, 0x10000, v74")
    I("v_add_u32 v77, 0x10000, v75")
    I(f"v_mul_u32_u24 v24, {4*QS}, v2")
    I("v_lshl_add_u32 v24, v3, 1, v24")
    I("s_lshl_b32 s64, s19, 6")
    I(f"s_add_u32 s64, s64, {QB}")
    I("v_add_u32 v24, s64, v24")
    I(f"v_mul_u32_u24 v25, {QS}, v3")
    I("v_lshl_add_u32 v25, v2, 4, v25")
    I(f"v_add_u32 v25, {QB}, v25")
    I("v_lshlrev_b32 v26, 15, v3")
    I("v_lshl_add_u32 v26, v2, 3, v26")
    I("v_cmp_lt_u32 vcc, 7, v3")
    I("v_mov_b32 v27, 0x7f000000")
    I("s_lshl_b32 s70, s16, 10")
    I("s_lshl_b32 s65, s17, 7")
    I("v_cndmask_b32 v26, v26, v27, vcc")
    I("s_add_u32 s70, s70, s65")
    I("s_lshl_b32 s65, s19, 5")
    I("s_add_u32 s70, s70, s65")
    for r in range(12):
        I(f"v_mov_b32 v{8+r}, 0")
    I("s_waitcnt vmcnt(4)")
    I("s_barrier")
    ts(0, 1, r=120)
    for ch in range(4):
        for k4 in range(4):
            ks = ch * 4 + k4
            I(f"ds_read2_b64 v[{128+64*(ch&1)+4*k4}:{131+64*(ch&1)+4*k4}], v70 offset0:{ks*8} offset1:{ks*8+4}")
            for nt in range(2):
                base = (74 + nt) if ks < 8 else (76 + nt)
                off = (ks & 7) * 8192
                d = 144 + 64 * (ch & 1) + (k4 * 2 + nt) * 4
                I(f"ds_read_b64_tr_b16 v[{d}:{d+1}], v{base} offset:{off}")
                I(f"ds_read_b64_tr_b16 v[{d+2}:{d+3}], v{base} offset:{off+4096}")
            if k4 == 2: I("s_waitcnt lgkmcnt(10)")
        for k4 in range(4):
            I(f"s_waitcnt lgkmcnt({5*(3-k4)})")
            for nt in range(2):
                d = 144 + 64 * (ch & 1) + (k4 * 2 + nt) * 4
                a = 128 + 64 * (ch & 1) + 4 * k4
                I(f"v_mfma_f32_16x16x32_bf16 v[{8+4*nt}:{11+4*nt}], v[{a}:{a+3}], v[{d}:{d+3}], v[{8+4*nt}:{11+4*nt}]")
    ts(0, 5, r=120)
    I("s_nop 7")
    for nt in range(2):
        I(f"v_cvt_pk_bf16_f32 v{20+2*nt}, v{8+4*nt}, v{9+4*nt}")
        I(f"v_cvt_pk_bf16_f32 v{21+2*nt}, v{10+4*nt}, v{11+4*nt}")
    for nt in range(2):
        I(f"ds_write_b16 v24, v{20+2*nt} offset:{nt*32}")
        I(f"ds_write_b16_d16_hi v24, v{20+2*nt} offset:{nt*32+QS}")
        I(f"ds_write_b16 v24, v{21+2*nt} offset:{nt*32+2*QS}")
        I(f"ds_write_b16_d16_hi v24, v{21+2*nt} offset:{nt*32+3*QS}")
    I("s_waitcnt lgkmcnt(0)")
    I("s_barrier")
    for ks in range(4):
        I(f"ds_read_b128 v[{128+4*ks}:{131+4*ks}], v25 offset:{ks*64}")
    I("s_waitcnt vmcnt(0) lgkmcnt(0)")
    for ks in range(4):
        I(f"v_mfma_f32_16x16x32_bf16 v[16:19], v[{80+4*ks}:{83+4*ks}], v[{128+4*ks}:{131+4*ks}], v[16:19]")
    I("s_nop 7")
    I("v_cvt_pk_bf16_f32 v12, v16, v17")
    I("v_cvt_pk_bf16_f32 v13, v18, v19")
    I("buffer_store_dwordx2 v[12:13], v26, s[40:43], s70 offen")
    ht(0, 1, "b")
    if "TS" in FL:
        I("s_waitcnt vmcnt(0)")
        ts(0, 2)
    I("s_branch K1_END")
    c("==== B waves: LN, FFN, prefetch")
    e("K1_B:")
    if "CPF" in FL:
        c("touch the code of the later kernels so that their instruction fetch hits L2")
        I("s_getpc_b64 s[84:85]")
        e("K1_PC:")
        I("s_add_u32 s84, s84, k2_kernel-K1_PC")
        I("s_addc_u32 s85, s85, 0")
        I("v_and_b32 v6, 255, v0")
        I("v_lshlrev_b32 v6, 6, v6")
        I("v_cmp_gt_u32 vcc, KALL_END-k2_kernel, v6")
        I("s_and_saveexec_b64 s[86:87], vcc")
        I("s_cbranch_execz K1_PCD")
        I("global_load_dword v7, v6, s[84:85]")
        e("K1_PCD:")
        I("s_mov_b64 exec, s[86:87]")
    I("s_lshl_b32 s64, s19, 11")
    I("v_lshlrev_b32 v5, 5, v1")
    I("buffer_load_dwordx4 v[48:51], v5, s[20:23], s64 offen")
    I("buffer_load_dwordx4 v[52:55], v5, s[20:23], s64 offen offset:16")
    I("s_and_b32 s74, s2, 7")
    I("s_mul_i32 s74, s74, 11")
    I("s_lshr_b32 s75, s2, 3")
    I("s_add_u32 s74, s74, s75")
    I("s_cmp_ge_u32 s2, 88")
    I("s_cselect_b32 s74, 0x1000, s74")
    c("ffn loads: for non-ffn wgs use an out-of-range offset (returns 0 quickly)")
    I("v_lshrrev_b32 v24, 1, v1")
    I("v_mul_u32_u24 v24, 2752, v24")
    I("v_and_b32 v25, 1, v1")
    I("v_lshl_add_u32 v24, v25, 4, v24")
    I(f"s_mul_i32 s64, s19, {128*2752}")
    I("s_lshl_b32 s65, s74, 5")
    I("s_add_u32 s64, s64, s65")
    I("s_cmp_ge_u32 s74, 86")
    I("s_cselect_b32 s64, 0x40000000, s64")
    for n in range(4):
        I(f"buffer_load_dwordx4 v[{96+4*n}:{99+4*n}], v24, s[32:35], s64 offen{FNT}")
        I(f"buffer_load_dwordx4 v[{112+4*n}:{115+4*n}], v24, s[36:39], s64 offen{FNT}")
        if n != 3: I(f"s_add_u32 s64, s64, {32*2752}")
    I("s_barrier")
    I("s_lshl_b32 s76, s2, 17")
    I("s_lshl_b32 s64, s19, 15")
    I("s_add_u32 s76, s76, s64")
    for n in range(PF0):
        I(f"buffer_load_dwordx4 v[{160+4*(n%16)}:{163+4*(n%16)}], v4, s[44:47], s76 offen nt")
        I("s_add_u32 s76, s76, 1024")
    I(f"s_waitcnt vmcnt({8+PF0})")
    for k in range(8):
        I(f"v_lshlrev_b32 v{56+2*k}, 16, v{48+k}")
        I(f"v_and_b32 v{57+2*k}, 0xffff0000, v{48+k}")
    I("v_add_f32 v8, v56, v57"); I("v_add_f32 v9, v58, v59"); I("v_add_f32 v10, v60, v61"); I("v_add_f32 v11, v62, v63")
    I("v_add_f32 v8, v8, v64"); I("v_add_f32 v9, v9, v65"); I("v_add_f32 v10, v10, v66"); I("v_add_f32 v11, v11, v67")
    I("v_add_f32 v8, v8, v68"); I("v_add_f32 v9, v9, v69"); I("v_add_f32 v10, v10, v70"); I("v_add_f32 v11, v11, v71")
    I("v_add_f32 v8, v8, v9"); I("v_add_f32 v10, v10, v11"); I("v_add_f32 v8, v8, v10")
    dppred(8, 9, "v_add_f32", 32)
    I("v_mul_f32 v8, 0x3b000000, v8")
    for k in range(16):
        I(f"v_sub_f32 v{72+k}, v{56+k}, v8")
    I("v_mul_f32 v9, v72, v72"); I("v_mul_f32 v10, v73, v73"); I("v_mul_f32 v11, v74, v74"); I("v_mul_f32 v12, v75, v75")
    for k in range(4, 16, 4):
        for q in range(4):
            I(f"v_fmac_f32 v{9+q}, v{72+k+q}, v{72+k+q}")
    I("v_add_f32 v9, v9, v10"); I("v_add_f32 v11, v11, v12"); I("v_add_f32 v12, v9, v11")
    dppred(12, 9, "v_add_f32", 32)
    I("v_mul_f32 v12, 0x3b000000, v12")
    I("v_cvt_pk_bf16_f32 v9, v8, v12")
    I("v_lshlrev_b32 v8, 16, v9")
    I("v_and_b32 v12, 0xffff0000, v9")
    I(f"v_add_f32 v12, {f2u(1e-5):#x}, v12")
    I("v_cvt_pk_bf16_f32 v12, v12, v12")
    I("v_lshlrev_b32 v12, 16, v12")
    I("v_sqrt_f32 v12, v12")
    I("s_nop 0")
    I("v_cvt_pk_bf16_f32 v12, v12, v12")
    I("v_lshlrev_b32 v12, 16, v12")
    I("v_rcp_f32 v9, v12")
    for k in range(16):
        I(f"v_sub_f32 v{56+k}, v{56+k}, v8")
    for k in range(8):
        I(f"v_cvt_pk_bf16_f32 v{72+k}, v{56+2*k}, v{57+2*k}")
    for k in range(8):
        I(f"v_lshlrev_b32 v{56+2*k}, 16, v{72+k}")
        I(f"v_and_b32 v{57+2*k}, 0xffff0000, v{72+k}")
    for k in range(16):
        I(f"v_mul_f32 v{56+k}, v{56+k}, v9")
    for k in range(8):
        I(f"v_cvt_pk_bf16_f32 v{72+k}, v{56+2*k}, v{57+2*k}")
    I("v_lshrrev_b32 v10, 5, v1")
    I("s_lshl_b32 s64, s19, 1")
    I("v_add_u32 v10, s64, v10")
    I(f"v_mul_u32_u24 v10, {XNS}, v10")
    I("v_and_b32 v11, 31, v1")
    I("v_lshl_add_u32 v10, v11, 5, v10")
    I(f"v_add_u32 v10, {XN}, v10")
    I("ds_write_b128 v10, v[72:75]")
    I("ds_write_b128 v10, v[76:79] offset:16")
    if "TLB" in FL:
        c("touch pages of buffers used by later kernels (TLB / cache warm-up), wave 7 only")
        I("s_cmp_lg_u32 s18, 7")
        I("s_cbranch_scc1 K1_NOTLB")
        srd(48, 12, 13, 4194304)
        srd(52, 14, 15, 4194304)
        srd(56, 80, 81, 1409024)
        srd(60, 82, 83, 8192)
        I("v_lshlrev_b32 v20, 16, v1")
        I("buffer_load_dword v21, v20, s[48:51], 0 offen")
        I("buffer_load_dword v21, v20, s[52:55], 0 offen")
        I("buffer_load_dword v21, v20, s[56:59], 0 offen")
        I("buffer_load_dword v21, v20, s[60:63], 0 offen")
        I("v_mul_u32_u24 v20, 0x58000, v1")
        I("buffer_load_dword v21, v20, s[40:43], 0 offen")
        I("s_waitcnt vmcnt(0)")
        e("K1_NOTLB:")
    c("prefetch part 1 (no waits)")
    for n in range(PF1):
        I(f"buffer_load_dwordx4 v[{160+4*(n%16)}:{163+4*(n%16)}], v4, s[44:47], s76 offen nt")
        I("s_add_u32 s76, s76, 1024")
    I("s_waitcnt lgkmcnt(0)")
    I("s_barrier")
    I("s_cmp_ge_u32 s74, 86")
    I("s_cbranch_scc1 K1_BNOF")
    for ks in range(4):
        I(f"ds_read2_b64 v[{32+4*ks}:{35+4*ks}], v31 offset0:{ks*8} offset1:{ks*8+4}")
    I("s_lshl_b32 s66, s19, 12")
    I(f"s_add_u32 s66, s66, {FST}")
    I("v_add_u32 v25, s66, v4")
    I("v_lshlrev_b32 v26, 5, v28")
    I("v_lshl_add_u32 v26, v30, 3, v26")
    I("v_add_u32 v26, s66, v26")
    for r in range(8):
        I(f"v_mov_b32 v{8+r}, 0")
    I(f"s_waitcnt vmcnt({PF1+PF0})")
    for m in range(2):
        for n in range(4):
            I(f"ds_write_b128 v25, v[{96+16*m+4*n}:{99+16*m+4*n}] offset:{n*1024}")
        for ks in range(4):
            d = 128 + (m * 4 + ks) * 4
            I(f"ds_read_b64_tr_b16 v[{d}:{d+1}], v26 offset:{ks*1024}")
            I(f"ds_read_b64_tr_b16 v[{d+2}:{d+3}], v26 offset:{ks*1024+512}")
    I("s_waitcnt lgkmcnt(0)")
    for m in range(2):
        for ks in range(4):
            d = 128 + (m * 4 + ks) * 4
            I(f"v_mfma_f32_16x16x32_bf16 v[{8+4*m}:{11+4*m}], v[{32+4*ks}:{35+4*ks}], v[{d}:{d+3}], v[{8+4*m}:{11+4*m}]")
    I("v_lshlrev_b32 v17, 5, v1")
    I("v_add_u32 v18, s66, v17")
    I(f"v_add_u32 v17, {FST}, v17")
    I("s_nop 7")
    I("ds_write_b128 v18, v[8:11]")
    I("ds_write_b128 v18, v[12:15] offset:16")
    e("K1_BNOF:")
    for n in range(PF2):
        I(f"buffer_load_dwordx4 v[{160+4*(n%16)}:{163+4*(n%16)}], v4, s[44:47], s76 offen nt")
        I("s_add_u32 s76, s76, 1024")
    I("s_waitcnt lgkmcnt(0)")
    I("s_barrier")
    I("s_cmp_ge_u32 s74, 86")
    I("s_cbranch_scc1 K1_BEND")
    I("s_cmp_lg_u32 s18, 4")
    I("s_cbranch_scc1 K1_BEND")
    for w in range(1, 4):
        I(f"ds_read_b128 v[{96+8*w}:{99+8*w}], v17 offset:{w*4096}")
        I(f"ds_read_b128 v[{100+8*w}:{103+8*w}], v17 offset:{w*4096+16}")
    I("s_waitcnt lgkmcnt(0)")
    for w in range(1, 4):
        for r in range(8):
            I(f"v_add_f32 v{8+r}, v{8+r}, v{96+8*w+r}")
    for r in range(4):
        I(f"v_cvt_pk_bf16_f32 v{96+r}, v{8+r}, v{12+r}")
    for r in range(4):
        I(f"v_lshlrev_b32 v{8+r}, 16, v{96+r}")
        I(f"v_and_b32 v{12+r}, 0xffff0000, v{96+r}")
    I(f"s_mov_b32 s64, {f2u(0.044715):#x}")
    I(f"s_mov_b32 s65, {f2u(-2.0 * 0.7978845608028654 * 1.4426950408889634):#x}")
    for r in range(4):
        I(f"v_mul_f32 v{96+r}, v{8+r}, v{8+r}")
        I(f"v_mul_f32 v{96+r}, s64, v{96+r}")
        I(f"v_fma_f32 v{96+r}, v{96+r}, v{8+r}, v{8+r}")
        I(f"v_mul_f32 v{96+r}, s65, v{96+r}")
        I(f"v_exp_f32 v{96+r}, v{96+r}")
        I("s_nop 0")
        I(f"v_add_f32 v{96+r}, 1.0, v{96+r}")
        I(f"v_rcp_f32 v{96+r}, v{96+r}")
        I("s_nop 0")
        I(f"v_mul_f32 v{96+r}, v{96+r}, v{8+r}")
    for r in range(4):
        I(f"v_cvt_pk_bf16_f32 v{96+r}, v{96+r}, v{96+r}")
        I(f"v_lshlrev_b32 v{96+r}, 16, v{96+r}")
        I(f"v_mul_f32 v{96+r}, v{96+r}, v{12+r}")
        I(f"v_cvt_pk_bf16_f32 v{96+r}, v{96+r}, v{96+r}")
    I("v_mul_u32_u24 v100, 11008, v2")
    I("v_lshl_add_u32 v100, v3, 1, v100")
    I("v_cmp_lt_u32 vcc, 1, v2")
    I("v_mov_b32 v101, 0x7f000000")
    I("s_lshl_b32 s64, s74, 5")
    I(f"s_add_u32 s64, s64, {HH}")
    I("v_cndmask_b32 v100, v100, v101, vcc")
    I("v_add_u32 v101, 5504, v100")
    for r in range(4):
        I(f"buffer_store_short v{96+r}, v{100+(r>>1)}, s[40:43], s64 offen offset:{(r&1)*2752}")
    e("K1_BEND:")
    I("s_waitcnt vmcnt(0)")
    if "TS" in FL:
        I("s_sub_u32 s18, s18, 4")
        I("s_add_u32 s2, s2, 256")
        ts(0, 4, r=120)
    e("K1_END:")
    I("s_endpgm")

def k2():
    STG = 131072
    PB = STG; MX = STG + 8192; LB = MX + 512
    kstart("k2_kernel")
    I("s_cmp_ge_u32 s2, 256")
    I("s_cbranch_scc1 K2_END")
    I("s_load_dwordx2 s[4:5], s[0:1], 8")
    I("s_load_dwordx4 s[12:15], s[0:1], 32")
    I("s_load_dwordx2 s[72:73], s[0:1], 72")
    I("s_load_dwordx2 s[78:79], s[0:1], 96")
    common_ids()
    I("s_and_b32 s19, s18, 3")
    I("v_lshlrev_b32 v4, 4, v1")
    I("v_and_b32 v8, 31, v1")
    I("v_lshrrev_b32 v9, 5, v1")
    I("s_waitcnt lgkmcnt(0)")
    srd(40, 78, 79, WSSZ)
    srd(44, 4, 5, 33554432)
    srd(48, 12, 13, 4194304)
    srd(52, 14, 15, 4194304)
    srd(56, 72, 73, 1409024)
    I("s_cmp_ge_u32 s18, 4")
    I("s_cbranch_scc1 K2_B")
    c("==== A waves: c_kv DMA (window major), QK")
    ht(1, 0, "c")
    ts(1, 0)
    I("v_lshlrev_b32 v5, 2, v2")
    I("v_xor_b32 v5, v5, v3")
    I("v_lshlrev_b32 v5, 4, v5")
    I("v_lshl_add_u32 v5, v2, 10, v5")
    for q in range(4):
        I(f"v_xor_b32 v{10+q}, {q*16}, v5")
    I("s_lshl_b32 s64, s2, 17")
    I("s_lshl_b32 s65, s19, 15")
    I("s_add_u32 s64, s64, s65")
    I("s_lshl_b32 s65, s19, 13")
    for win in range(4):
        I(f"s_add_u32 s66, s64, {win*256}")
        I(f"s_add_u32 s67, s65, {win*32768}")
        I("s_mov_b32 m0, s67")
        I("s_nop 0")
        for kk in range(8):
            I(f"buffer_load_dwordx4 v{10+(kk&3)}, s[44:47], s66 offen{K2NT} lds")
            if kk != 7:
                I("s_add_u32 m0, m0, 1024")
                I("s_add_u32 s66, s66, 4096")
    c("Q frag read addrs")
    I("v_and_b32 v27, 15, v8")
    I("v_xor_b32 v27, v27, v9")
    I("v_lshlrev_b32 v27, 4, v27")
    I("v_lshl_add_u32 v27, v8, 10, v27")
    I(f"v_add_u32 v27, {STG}, v27")
    for q in range(8):
        I(f"v_xor_b32 v{40+q}, {q*32}, v27")
    c("QK addrs v[12:19]/v[20..27]")
    I("v_and_b32 v11, 3, v8")
    I("v_lshlrev_b32 v11, 2, v11")
    I("v_bfe_u32 v12, v8, 2, 2")
    I("v_or_b32 v11, v11, v12")
    I("v_xor_b32 v11, v11, v9")
    I("v_lshlrev_b32 v11, 4, v11")
    I("v_lshl_add_u32 v11, v8, 8, v11")
    I("v_add_u32 v11, s65, v11")
    for q in range(8):
        I(f"v_xor_b32 v{48+q}, {q*32}, v11")
        I(f"v_add_u32 v{56+q}, 0x10000, v{48+q}")
    for r in range(16):
        I(f"v_mov_b32 v{20+r}, 0")
    I("s_barrier")
    for st in range(32):
        I(f"ds_read_b128 v[{64+4*st}:{67+4*st}], v{40+(st&7)} offset:{(st>>3)*256}")
        if st == 15: I("s_waitcnt lgkmcnt(0)")
    I("s_waitcnt lgkmcnt(0)")
    I("s_barrier")
    for win in range(4):
        I(f"s_waitcnt vmcnt({8*(3-win)}) lgkmcnt(0)")
        if win == 3: ts(1, 1)
        for q in range(8):
            a = (48 if win < 2 else 56) + q
            I(f"ds_read_b128 v[{192+4*q}:{195+4*q}], v{a} offset:{(win&1)*32768}")
        for q in range(8):
            st = win * 8 + q
            I(f"s_waitcnt lgkmcnt({7-q})")
            I(f"v_mfma_f32_32x32x16_bf16 v[20:35], v[{192+4*q}:{195+4*q}], v[{64+4*st}:{67+4*st}], v[20:35]")
    I("v_lshlrev_b32 v38, 4, v8")
    I("s_lshl_b32 s64, s19, 2")
    I(f"s_add_u32 s64, s64, {MX}")
    I("v_add_u32 v39, s64, v38")
    I("s_lshl_b32 s64, s19, 11")
    I(f"s_add_u32 s64, s64, {PB}")
    I("v_add_u32 v42, s64, v4")
    I("s_nop 7")
    I("v_max3_f32 v36, v20, v21, v22")
    for r in range(3, 15, 2):
        I(f"v_max3_f32 v36, v36, v{20+r}, v{21+r}")
    I("v_max_f32 v36, v36, v35")
    xor32(36, 37, "v_max_f32")
    I("ds_write_b32 v39, v36")
    I("s_waitcnt lgkmcnt(0)")
    I("s_barrier")
    I(f"v_add_u32 v40, {MX}, v38")
    I("ds_read_b128 v[44:47], v40")
    I(f"s_mov_b32 s64, {f2u(SC):#x}")
    I("s_waitcnt lgkmcnt(0)")
    I("v_max3_f32 v36, v44, v45, v46")
    I("v_max_f32 v36, v36, v47")
    I("v_mul_f32 v36, s64, v36")
    for r in range(16):
        I(f"v_fma_f32 v{20+r}, v{20+r}, s64, -v36")
    for r in range(16):
        I(f"v_exp_f32 v{20+r}, v{20+r}")
    I("s_nop 0")
    for r in range(8):
        I(f"v_cvt_pk_bf16_f32 v{48+r}, v{20+2*r}, v{21+2*r}")
    I("ds_write_b128 v42, v[48:51]")
    I("ds_write_b128 v42, v[52:55] offset:1024")
    I("v_add_f32 v37, v20, v21"); I("v_add_f32 v41, v22, v23"); I("v_add_f32 v43, v24, v25"); I("v_add_f32 v44, v26, v27")
    I("v_add_f32 v37, v37, v28"); I("v_add_f32 v41, v41, v29"); I("v_add_f32 v43, v43, v30"); I("v_add_f32 v44, v44, v31")
    I("v_add_f32 v37, v37, v32"); I("v_add_f32 v41, v41, v33"); I("v_add_f32 v43, v43, v34"); I("v_add_f32 v44, v44, v35")
    I("v_add_f32 v37, v37, v41"); I("v_add_f32 v43, v43, v44"); I("v_add_f32 v37, v37, v43")
    xor32(37, 41, "v_add_f32")
    I(f"v_add_u32 v39, {LB-MX}, v39")
    I("ds_write_b32 v39, v37")
    I("s_branch K2_PV")
    c("==== B waves: Q staging, K3 weight prefetch")
    e("K2_B:")
    I("s_lshl_b32 s64, s17, 15")
    I("s_lshl_b32 s65, s19, 13")
    I("s_add_u32 s64, s64, s65")
    for n in range(8):
        I(f"buffer_load_dwordx4 v[{192+4*n}:{195+4*n}], v4, s[40:43], s64 offen offset:{(n&3)*1024}")
        if n == 3: I("s_add_u32 s64, s64, 4096")
    I("s_and_b32 s64, s19, 1")
    I("s_lshl_b32 s64, s64, 7")
    I("v_xor_b32 v26, s64, v4")
    I(f"s_add_u32 s64, s65, {STG}")
    I("v_add_u32 v26, s64, v26")
    for n in range(8):
        I(f"v_xor_b32 v{16+n}, {n*16}, v26")
    I("v_lshlrev_b32 v38, 4, v8")
    I("s_waitcnt vmcnt(0)")
    for n in range(8):
        I(f"ds_write_b128 v{16+n}, v[{192+4*n}:{195+4*n}] offset:{n*1024}")
    I("s_waitcnt lgkmcnt(0)")
    I("s_barrier")
    I("s_barrier")
    if "NOPF3" not in FL:
        I("v_and_b32 v56, 255, v0")
        I("v_lshrrev_b32 v57, 4, v56")
        I("v_lshlrev_b32 v56, 4, v56")
        I("s_lshl_b32 s64, s16, 17")
        I("s_lshl_b32 s65, s17, 14")
        I("s_add_u32 s64, s64, s65")
        for n in range(4):
            I(f"buffer_load_dwordx4 v[{240+4*n}:{243+4*n}], v56, s[52:55], s64 offen nt")
            I("s_add_u32 s64, s64, 4096")
        I("v_lshlrev_b32 v57, 13, v57")
        I("v_lshl_add_u32 v57, v3, 4, v57")
        I("s_lshl_b32 s64, s17, 19")
        I("s_lshl_b32 s65, s16, 8")
        I("s_add_u32 s64, s64, s65")
        for n in range(4):
            I(f"buffer_load_dwordx4 v[{240+4*n}:{243+4*n}], v57, s[48:51], s64 offen nt")
            I("s_add_u32 s64, s64, 131072")
        I("s_lshl_b32 s64, s2, 14")
        for n in range(4):
            I(f"buffer_load_dwordx4 v[{240+4*n}:{243+4*n}], v56, s[56:59], s64 offen nt")
            I("s_add_u32 s64, s64, 4096")
    I("s_barrier")
    c("==== PV on 8 waves: window = w8>>1, half = w8&1")
    e("K2_PV:")
    I("v_lshrrev_b32 v44, 2, v3")
    I("v_bfe_u32 v45, v1, 4, 1")
    I("v_lshl_add_u32 v46, v9, 2, v44")
    I("v_bfe_u32 v47, v3, 1, 1")
    I("v_lshl_add_u32 v47, v45, 1, v47")
    I("v_lshl_add_u32 v56, v44, 2, v9")
    I("v_xor_b32 v47, v47, v56")
    I("v_lshlrev_b32 v47, 4, v47")
    I("v_and_b32 v56, 1, v3")
    I("v_lshl_add_u32 v47, v56, 3, v47")
    I("v_lshl_add_u32 v47, v46, 8, v47")
    I("s_lshr_b32 s64, s18, 1")
    I("s_lshl_b32 s64, s64, 15")
    I("v_add_u32 v47, s64, v47")
    I("s_and_b32 s64, s18, 1")
    I("s_lshl_b32 s64, s64, 7")
    I("v_xor_b32 v47, s64, v47")
    for nt in range(2):
        for sec in range(2):
            x = (nt << 6) ^ (sec * 32)
            I(f"v_xor_b32 v{224+nt*2+sec}, {x}, v47")
            if sec: I(f"v_add_u32 v{224+nt*2+sec}, 2048, v{224+nt*2+sec}")
    I(f"v_add_u32 v42, {PB}, v4")
    I(f"v_add_u32 v40, {LB}, v38")
    for r in range(32):
        I(f"v_mov_b32 v{128+r}, 0")
    c("O staging addrs")
    I("v_and_b32 v60, 7, v8")
    I("v_lshlrev_b32 v60, 4, v60")
    I("v_lshl_add_u32 v60, v9, 3, v60")
    I("v_lshl_add_u32 v60, v8, 7, v60")
    I("s_lshl_b32 s64, s18, 12")
    I("v_add_u32 v60, s64, v60")
    I("v_lshrrev_b32 v61, 3, v1")
    I("v_and_b32 v62, 7, v1")
    I("v_xor_b32 v63, v61, v62")
    I("v_lshlrev_b32 v63, 4, v63")
    I("v_lshl_add_u32 v63, v61, 7, v63")
    I("v_add_u32 v63, s64, v63")
    I("v_lshlrev_b32 v61, 18, v61")
    I("v_lshl_add_u32 v61, v62, 4, v61")
    I("s_lshl_b32 s68, s2, 7")
    I("s_lshl_b32 s65, s18, 15")
    I("s_add_u32 s68, s68, s65")
    I(f"s_add_u32 s68, s68, {OPB}")
    I("s_waitcnt lgkmcnt(0)")
    I("s_barrier")
    for t in range(8):
        I(f"ds_read_b128 v[{96+4*t}:{99+4*t}], v42 offset:{t*1024}")
    I("ds_read_b128 v[44:47], v40")
    for tp in range(4):
        for t2 in range(2):
            t = tp * 2 + t2
            for nt in range(2):
                for sec in range(2):
                    d = 192 + t2 * 8 + nt * 4 + sec * 2
                    I(f"ds_read_b64_tr_b16 v[{d}:{d+1}], v{224+nt*2+sec} offset:{t*4096}")
        for t2 in range(2):
            t = tp * 2 + t2
            for nt in range(2):
                d = 192 + t2 * 8 + nt * 4
                I(f"s_waitcnt lgkmcnt({6-4*t2-2*nt})")
                I(f"v_mfma_f32_32x32x16_bf16 v[{128+16*nt}:{143+16*nt}], v[{d}:{d+3}], v[{96+4*t}:{99+4*t}], v[{128+16*nt}:{143+16*nt}]")
    I("s_cmp_lg_u32 s18, 0")
    I("s_cbranch_scc1 K2_NOSTAT")
    ts(1, 2, r=250)
    I("v_add_f32 v37, v44, v45")
    I("v_add_f32 v46, v46, v47")
    I("v_add_f32 v37, v37, v46")
    I("v_lshlrev_b32 v40, 11, v8")
    I("v_cmp_lt_u32 vcc, 0, v9")
    I("v_mov_b32 v41, 0x7f000000")
    I("s_lshl_b32 s64, s2, 3")
    I(f"s_add_u32 s64, s64, {STATS}")
    I("v_cndmask_b32 v40, v40, v41, vcc")
    I("buffer_store_dwordx2 v[36:37], v40, s[40:43], s64 offen")
    e("K2_NOSTAT:")
    I("s_nop 7")
    I("s_nop 3")
    for nt in range(2):
        for q in range(4):
            b = 128 + 16 * nt + 4 * q
            k = nt * 4 + q
            I(f"v_cvt_pk_bf16_f32 v{160+2*k}, v{b}, v{b+1}")
            I(f"v_cvt_pk_bf16_f32 v{161+2*k}, v{b+2}, v{b+3}")
            I(f"v_xor_b32 v{176+k}, {k*16}, v60")
    I("s_barrier")
    for k in range(8):
        I(f"ds_write_b64 v{176+k}, v[{160+2*k}:{161+2*k}]")
    for n in range(4):
        I(f"ds_read_b128 v[{64+4*n}:{67+4*n}], v63 offset:{n*1024}")
    for n in range(4):
        I(f"s_waitcnt lgkmcnt({3-n})")
        I(f"buffer_store_dwordx4 v[{64+4*n}:{67+4*n}], v61, s[40:43], s68 offen{PST}")
        if n != 3: I(f"s_add_u32 s68, s68, {8*262144}")
    ht(1, 1, "d")
    if "TS" in FL:
        I("s_waitcnt vmcnt(0)")
        I("s_cmp_ge_u32 s18, 4")
        I("s_cbranch_scc1 K2_END")
        ts(1, 3, r=250)
    e("K2_END:")
    I("s_endpgm")

def k3():
    WUV = 65536; COEF = WUV + 32768; CL = COEF + 1024; CLS = 272; CX = CL + 8 * CLS; CXS = 272
    kstart("k3_kernel")
    I("s_cmp_ge_u32 s2, 256")
    I("s_cbranch_scc1 K3_END")
    I("s_load_dwordx4 s[12:15], s[0:1], 32")
    I("s_load_dwordx2 s[72:73], s[0:1], 72")
    I("s_load_dwordx2 s[78:79], s[0:1], 96")
    common_ids()
    I("s_and_b32 s19, s18, 3")
    I("s_and_b32 s17, s17, 3")
    I("s_lshr_b32 s20, s2, 7")
    I("s_and_b32 s21, s2, 127")
    I("s_waitcnt lgkmcnt(0)")
    srd(40, 78, 79, WSSZ)
    srd(48, 12, 13, 4194304)
    srd(52, 14, 15, 4194304)
    srd(56, 72, 73, 1409024)
    I("v_lshlrev_b32 v4, 4, v1")
    I("v_and_b32 v48, 7, v1")
    I("v_mul_u32_u24 v18, 2752, v48")
    I("v_lshl_add_u32 v18, v2, 3, v18")
    I("s_lshl_b32 s64, s21, 5")
    I(f"s_add_u32 s64, s64, {HH}")
    I("s_cmp_ge_u32 s18, 4")
    I("s_cbranch_scc1 K3_B")
    c("==== group A: combine")
    ht(2, 0, "e")
    if "TS" in FL: ts(2, 0)
    I("v_lshlrev_b32 v5, 3, v0")
    I("s_lshl_b32 s65, s16, 11")
    I(f"s_add_u32 s65, s65, {STATS}")
    I("buffer_load_dwordx2 v[8:9], v5, s[40:43], s65 offen")
    I("v_lshrrev_b32 v6, 4, v0")
    I("v_lshlrev_b32 v7, 6, v6")
    I("v_lshlrev_b32 v6, 11, v6")
    I("v_lshl_add_u32 v6, v48, 4, v6")
    I("v_lshrrev_b32 v10, 3, v3")
    I("v_lshl_add_u32 v6, v10, 15, v6")
    I("s_lshl_b32 s65, s16, 2")
    I("s_add_u32 s65, s65, s17")
    I("s_lshl_b32 s65, s65, 16")
    I(f"s_add_u32 s65, s65, {OPB}")
    for k in range(16):
        I(f"buffer_load_dwordx4 v[{64+4*k}:{67+4*k}], v6, s[40:43], s65 offen offset:{k*128}")
    I("buffer_load_dwordx2 v[144:145], v18, s[40:43], s64 offen")
    I("s_waitcnt vmcnt(17)")
    I("v_mov_b32 v20, v8")
    dppred(20, 21, "v_max_f32", 32)
    I("v_sub_f32 v20, v8, v20")
    I("v_exp_f32 v20, v20")
    I("s_nop 0")
    I("v_mul_f32 v22, v20, v9")
    dppred(22, 21, "v_add_f32", 32)
    I("v_rcp_f32 v22, v22")
    I("s_nop 0")
    I("v_mul_f32 v20, v20, v22")
    I("v_lshlrev_b32 v21, 2, v0")
    I(f"v_add_u32 v21, {COEF}, v21")
    I("ds_write_b32 v21, v20")
    I(f"v_add_u32 v7, {COEF}, v7")
    for q in range(4):
        I(f"ds_read_b128 v[{24+4*q}:{27+4*q}], v7 offset:{16*q}")
    for q in range(8):
        I(f"v_mov_b32 v{40+q}, 0")
    I("s_waitcnt lgkmcnt(0)")
    for k in range(16):
        I(f"s_waitcnt vmcnt({16-k})")
        for q in range(4):
            I(f"v_lshlrev_b32 v56, 16, v{64+4*k+q}")
            I(f"v_and_b32 v57, 0xffff0000, v{64+4*k+q}")
            I(f"v_fmac_f32 v{40+2*q}, v{24+k}, v56")
            I(f"v_fmac_f32 v{41+2*q}, v{24+k}, v57")
    for q in range(8):
        I(f"v_mov_b32 v{56+q}, v{40+q}")
    I("s_nop 1")
    for q in range(8):
        I(f"v_permlane16_swap_b32 v{40+q}, v{56+q}")
    I("s_nop 1")
    for q in range(8):
        I(f"v_add_f32 v{40+q}, v{40+q}, v{56+q}")
    for q in range(4):
        I(f"v_cvt_pk_bf16_f32 v{56+q}, v{40+2*q}, v{41+2*q}")
    I("v_lshrrev_b32 v49, 5, v0")
    I(f"v_mul_u32_u24 v49, {CLS}, v49")
    I("v_lshl_add_u32 v49, v3, 4, v49")
    I(f"v_add_u32 v49, {CL}, v49")
    I("ds_write_b128 v49, v[56:59]")
    if "TS" in FL: ts(2, 1)
    I(f"v_mul_u32_u24 v49, {CLS}, v48")
    I("v_lshl_add_u32 v49, v2, 3, v49")
    I(f"v_add_u32 v49, {CL}, v49")
    I("v_lshrrev_b32 v50, 2, v3")
    I("v_lshl_add_u32 v51, v2, 2, v50")
    I("v_and_b32 v52, 7, v51")
    I("s_lshl_b32 s64, s19, 1")
    I("v_xor_b32 v53, s64, v52")
    I("v_lshlrev_b32 v54, 8, v51")
    I("v_lshl_add_u32 v54, v53, 5, v54")
    I("v_and_b32 v55, 3, v3")
    I("v_lshl_add_u32 v54, v55, 3, v54")
    I(f"v_add_u32 v54, {WUV}, v54")
    I("v_xor_b32 v55, 32, v54")
    for r in range(8):
        I(f"v_mov_b32 v{120+r}, 0")
    I("s_waitcnt lgkmcnt(0)")
    I("s_barrier")
    for ks in range(4):
        I(f"ds_read2_b64 v[{64+4*ks}:{67+4*ks}], v49 offset0:{ks*8} offset1:{ks*8+4}")
    for ks in range(4):
        for nt in range(2):
            d = 80 + (ks * 2 + nt) * 4
            I(f"ds_read_b64_tr_b16 v[{d}:{d+1}], v{54+nt} offset:{ks*8192}")
            I(f"ds_read_b64_tr_b16 v[{d+2}:{d+3}], v{54+nt} offset:{ks*8192+4096}")
    for ks in range(4):
        for nt in range(2):
            d = 80 + (ks * 2 + nt) * 4
            I(f"s_waitcnt lgkmcnt({14-2*(ks*2+nt)})")
            I(f"v_mfma_f32_16x16x32_bf16 v[{120+4*nt}:{123+4*nt}], v[{64+4*ks}:{67+4*ks}], v[{d}:{d+3}], v[{120+4*nt}:{123+4*nt}]")
    I(f"v_mul_u32_u24 v56, {4*CXS}, v2")
    I("v_lshl_add_u32 v56, v3, 1, v56")
    I("s_lshl_b32 s64, s19, 6")
    I(f"s_add_u32 s64, s64, {CX}")
    I("v_add_u32 v56, s64, v56")
    I("s_nop 7")
    for nt in range(2):
        I(f"v_cvt_pk_bf16_f32 v{96+2*nt}, v{120+4*nt}, v{121+4*nt}")
        I(f"v_cvt_pk_bf16_f32 v{97+2*nt}, v{122+4*nt}, v{123+4*nt}")
    for nt in range(2):
        I(f"ds_write_b16 v56, v{96+2*nt} offset:{nt*32}")
        I(f"ds_write_b16_d16_hi v56, v{96+2*nt} offset:{nt*32+CXS}")
        I(f"ds_write_b16 v56, v{97+2*nt} offset:{nt*32+2*CXS}")
        I(f"ds_write_b16_d16_hi v56, v{97+2*nt} offset:{nt*32+3*CXS}")
    I("s_waitcnt vmcnt(0) lgkmcnt(0)")
    I("s_barrier")
    I("s_branch K3_O")
    c("==== group B: weight loads")
    e("K3_B:")
    I("buffer_load_dwordx2 v[144:145], v18, s[40:43], s64 offen")
    I("v_lshlrev_b32 v10, 1, v2")
    I("v_xor_b32 v10, v10, v3")
    I("v_lshlrev_b32 v10, 4, v10")
    I("v_lshl_add_u32 v10, v2, 13, v10")
    I("v_xor_b32 v11, 0x80, v10")
    I("s_lshl_b32 s64, s17, 7")
    I("s_lshl_b32 s65, s19, 5")
    I("s_add_u32 s64, s64, s65")
    I("s_lshl_b32 s64, s64, 13")
    I("s_lshl_b32 s66, s16, 8")
    I("s_add_u32 s64, s64, s66")
    I("s_lshl_b32 s65, s65, 8")
    I(f"s_add_u32 s65, s65, {WUV}")
    I("s_mov_b32 m0, s65")
    I("s_nop 0")
    for i in range(8):
        I(f"buffer_load_dwordx4 v{10 + (i & 1)}, s[48:51], s64 offen nt lds")
        if i != 7:
            I("s_add_u32 m0, m0, 1024")
            I("s_add_u32 s64, s64, 32768")
    c("w_o half rows: 2 rows x 512B per instr")
    I("v_lshrrev_b32 v12, 5, v1")
    I("v_and_b32 v13, 31, v1")
    I("v_lshlrev_b32 v14, 1, v12")
    I("v_xor_b32 v13, v13, v14")
    I("v_lshlrev_b32 v13, 4, v13")
    I("v_lshl_add_u32 v13, v12, 10, v13")
    for q in range(4):
        I(f"v_xor_b32 v{20+q}, {q*64}, v13")
    I("s_lshl_b32 s64, s16, 17")
    I("s_lshl_b32 s65, s19, 15")
    I("s_add_u32 s64, s64, s65")
    I("s_lshl_b32 s65, s20, 9")
    I("s_add_u32 s64, s64, s65")
    I("s_lshl_b32 s65, s19, 14")
    I("s_mov_b32 m0, s65")
    I("s_nop 0")
    for i in range(16):
        I(f"buffer_load_dwordx4 v{20 + (i & 3)}, s[52:55], s64 offen nt lds")
        if i != 15:
            I("s_add_u32 m0, m0, 1024")
            I("s_add_u32 s64, s64, 2048")
    c("w_down rows 16t + 4w + 2n + rsub, half nh")
    I("v_and_b32 v15, 31, v1")
    I("v_lshlrev_b32 v15, 4, v15")
    I("v_lshl_add_u32 v15, v12, 10, v15")
    I("s_lshl_b32 s64, s21, 14")
    I("s_lshl_b32 s65, s19, 12")
    I("s_add_u32 s64, s64, s65")
    I("s_lshl_b32 s65, s20, 9")
    I("s_add_u32 s64, s64, s65")
    for n in range(2):
        I(f"buffer_load_dwordx4 v[{128+4*n}:{131+4*n}], v15, s[56:59], s64 offen offset:{n*2048} nt")
    I("v_lshrrev_b32 v50, 2, v3")
    I("v_lshl_add_u32 v51, v2, 2, v50")
    I("v_and_b32 v52, 7, v51")
    c("lds addr for w_down: row=4w+2n+rsub ; (row&7) = 4(w&1)+2n+rsub")
    I("v_and_b32 v57, 31, v1")
    I("v_xor_b32 v57, v57, v14")
    I("s_and_b32 s64, s19, 1")
    I("s_lshl_b32 s64, s64, 3")
    I("v_xor_b32 v57, s64, v57")
    I("v_lshlrev_b32 v57, 4, v57")
    I("v_lshl_add_u32 v57, v12, 9, v57")
    I("s_lshl_b32 s64, s19, 11")
    I(f"s_add_u32 s64, s64, {WUV}")
    I("v_add_u32 v57, s64, v57")
    I("v_xor_b32 v58, 64, v57")
    I("s_waitcnt vmcnt(18)")
    I("s_barrier")
    I("s_waitcnt vmcnt(0)")
    I("s_barrier")
    for n in range(2):
        I(f"ds_write_b128 v{57+n}, v[{128+4*n}:{131+4*n}] offset:{n*1024}")
    c("==== o-proj on 8 waves: 32 cols each")
    e("K3_O:")
    I(f"v_mul_u32_u24 v49, {CXS}, v48")
    I("v_lshl_add_u32 v49, v2, 3, v49")
    I(f"v_add_u32 v49, {CX}, v49")
    for ks in range(4):
        I(f"ds_read2_b64 v[{64+4*ks}:{67+4*ks}], v49 offset0:{ks*8} offset1:{ks*8+4}")
    I("v_lshlrev_b32 v54, 9, v51")
    I("v_lshl_add_u32 v54, v52, 5, v54")
    I("v_and_b32 v55, 3, v3")
    I("v_lshl_add_u32 v54, v55, 3, v54")
    I("s_lshr_b32 s64, s18, 2")
    I("s_lshl_b32 s64, s64, 8")
    I("v_add_u32 v54, s64, v54")
    I("s_and_b32 s64, s18, 3")
    I("s_lshl_b32 s64, s64, 6")
    I("v_xor_b32 v100, s64, v54")
    I("v_xor_b32 v101, 32, v100")
    for r in range(8):
        I(f"v_mov_b32 v{160+r}, 0")
    for ks in range(4):
        for nt in range(2):
            d = 192 + (ks * 2 + nt) * 4
            I(f"ds_read_b64_tr_b16 v[{d}:{d+1}], v{100+nt} offset:{ks*16384}")
            I(f"ds_read_b64_tr_b16 v[{d+2}:{d+3}], v{100+nt} offset:{ks*16384+8192}")
    for ks in range(4):
        for nt in range(2):
            d = 192 + (ks * 2 + nt) * 4
            I(f"s_waitcnt lgkmcnt({14-2*(ks*2+nt)})")
            I(f"v_mfma_f32_16x16x32_bf16 v[{160+4*nt}:{163+4*nt}], v[{64+4*ks}:{67+4*ks}], v[{d}:{d+3}], v[{160+4*nt}:{163+4*nt}]")
    I("s_cmp_ge_u32 s21, 86")
    I("s_cbranch_scc1 K3_NOFFN2")
    I("s_barrier")
    for nt in range(2):
        I(f"v_add_u32 v{100+nt}, {WUV}, v{100+nt}")
    for nt in range(2):
        d = 192 + nt * 2
        I(f"ds_read_b64_tr_b16 v[{d}:{d+1}], v{100+nt}")
    I("s_waitcnt lgkmcnt(0)")
    for nt in range(2):
        d = 192 + nt * 2
        I(f"v_mfma_f32_16x16x16_bf16 v[{160+4*nt}:{163+4*nt}], v[144:145], v[{d}:{d+1}], v[{160+4*nt}:{163+4*nt}]")
    e("K3_NOFFN2:")
    I("v_lshlrev_b32 v60, 12, v2")
    I("v_lshl_add_u32 v60, v3, 2, v60")
    I("v_cmp_lt_u32 vcc, 1, v2")
    I("v_mov_b32 v61, 0x7f000000")
    I("s_lshl_b32 s64, s2, 13")
    I("s_lshl_b32 s65, s18, 7")
    I("v_cndmask_b32 v60, v60, v61, vcc")
    I("s_add_u32 s64, s64, s65")
    I(f"s_add_u32 s64, s64, {OUTP}")
    I("s_nop 7")
    for nt in range(2):
        for r in range(4):
            I(f"buffer_store_dword v{160+4*nt+r}, v60, s[40:43], s64 offen offset:{r*1024+nt*64}{OST}")
    ht(2, 1, "f")
    if "TS" in FL:
        I("s_waitcnt vmcnt(0)")
        I("s_cmp_ge_u32 s18, 4")
        I("s_cbranch_scc1 K3_END")
        ts(2, 3)
    e("K3_END:")
    I("s_endpgm")

def k4():
    kstart("k4_kernel")
    I("s_cmp_ge_u32 s2, 64")
    I("s_cbranch_scc1 K4_END")
    I("s_load_dwordx2 s[4:5], s[0:1], 0")
    I("s_load_dwordx2 s[8:9], s[0:1], 80")
    I("s_load_dwordx2 s[6:7], s[0:1], 96")
    I("v_and_b32 v1, 15, v0")
    I("v_lshrrev_b32 v2, 4, v0")
    I("v_lshrrev_b32 v4, 6, v0")
    I("v_lshlrev_b32 v3, 16, v2")
    I("v_readfirstlane_b32 s18, v4")
    I("v_lshl_add_u32 v3, v1, 4, v3")
    I("s_lshr_b32 s16, s2, 3")
    I("s_lshl_b32 s16, s16, 10")
    I("s_and_b32 s19, s2, 3")
    I("s_lshl_b32 s19, s19, 8")
    I("s_add_u32 s16, s16, s19")
    I("s_bfe_u32 s19, s2, 0x10002")
    I("s_lshl_b32 s19, s19, 20")
    I("s_add_u32 s16, s16, s19")
    I("s_waitcnt lgkmcnt(0)")
    srd(20, 4, 5, 8192)
    srd(24, 8, 9, 8192)
    srd(40, 6, 7, WSSZ)
    ts(3, 0, r=76)
    if "HT" in FL:
        I("s_memrealtime s[92:93]")
    I(f"s_add_u32 s44, s16, {OUTP}")
    for k in range(8):
        I(f"buffer_load_dwordx4 v[{8+4*k}:{11+4*k}], v3, s[40:43], s44 offen")
        if k != 7: I("s_add_u32 s44, s44, 8192")
    I("v_lshlrev_b32 v4, 3, v1")
    I("s_lshl_b32 s17, s2, 7")
    I("buffer_load_dwordx2 v[72:73], v4, s[20:23], s17 offen")
    I("s_waitcnt vmcnt(1)")
    for k in range(1, 8):
        for q in range(4):
            I(f"v_add_f32 v{8+q}, v{8+q}, v{8+4*k+q}")
    for q in range(4):
        I(f"v_mov_b32 v{12+q}, v{8+q}")
    I("s_nop 1")
    for q in range(4):
        I(f"v_permlane16_swap_b32 v{8+q}, v{12+q}")
    I("s_nop 1")
    for q in range(4):
        I(f"v_add_f32 v{8+q}, v{8+q}, v{12+q}")
    for q in range(4):
        I(f"v_mov_b32 v{12+q}, v{8+q}")
    I("s_nop 1")
    for q in range(4):
        I(f"v_permlane32_swap_b32 v{8+q}, v{12+q}")
    I("s_nop 1")
    for q in range(4):
        I(f"v_add_f32 v{8+q}, v{8+q}, v{12+q}")
    I("v_lshlrev_b32 v5, 4, v0")
    I("ds_write_b128 v5, v[8:11]")
    I("s_waitcnt lgkmcnt(0)")
    I("s_barrier")
    I("v_lshlrev_b32 v5, 4, v1")
    for w in range(4):
        I(f"ds_read_b128 v[{16+4*w}:{19+4*w}], v5 offset:{w*1024}")
    I("s_waitcnt vmcnt(0) lgkmcnt(0)")
    for q in range(4):
        I(f"v_add_f32 v{16+q}, v{16+q}, v{20+q}")
        I(f"v_add_f32 v{24+q}, v{24+q}, v{28+q}")
        I(f"v_add_f32 v{16+q}, v{16+q}, v{24+q}")
    I("v_lshlrev_b32 v20, 16, v72")
    I("v_and_b32 v21, 0xffff0000, v72")
    I("v_lshlrev_b32 v22, 16, v73")
    I("v_and_b32 v23, 0xffff0000, v73")
    for q in range(4):
        I(f"v_add_f32 v{16+q}, v{16+q}, v{20+q}")
    I("v_cvt_pk_bf16_f32 v24, v16, v17")
    I("v_cvt_pk_bf16_f32 v25, v18, v19")
    I("v_cmp_lt_u32 vcc, 15, v0")
    I("v_mov_b32 v6, 0x7f000000")
    I("s_nop 1")
    I("v_cndmask_b32 v4, v4, v6, vcc")
    I("buffer_store_dwordx2 v[24:25], v4, s[24:27], s17 offen")
    if "HT" in FL:
        I("s_cmp_lg_u32 s2, 5")
        I("s_cbranch_scc1 K4_END")
        I("s_load_dwordx2 s[10:11], s[0:1], 88")
        I("s_memrealtime s[90:91]")
        I("s_waitcnt lgkmcnt(0)")
        I("s_sub_u32 s10, s10, 0")
        I("s_subb_u32 s11, s11, 0")
        srd(28, 10, 11, 256)
        I("v_lshlrev_b32 v30, 2, v0")
        I(f"v_add_u32 v31, {TSOFF + 0x40000}, v30")
        I("buffer_load_dword v32, v31, s[40:43], 0 offen sc1")
        I("s_waitcnt vmcnt(0)")
        I("v_mov_b32 v33, s92")
        I("v_cmp_eq_u32 vcc, 6, v0")
        I("s_nop 1")
        I("v_cndmask_b32 v32, v32, v33, vcc")
        I("v_mov_b32 v33, s90")
        I("v_cmp_eq_u32 vcc, 7, v0")
        I("s_nop 1")
        I("v_cndmask_b32 v32, v32, v33, vcc")
        I("v_cmp_gt_u32 vcc, 8, v0")
        I("s_and_saveexec_b64 s[86:87], vcc")
        I("buffer_store_dword v32, v30, s[28:31], 0 offen")
    if "TS" in FL:
        I("s_waitcnt vmcnt(0)")
        ts(3, 3, r=76)
    e("K4_END:")
    I("s_endpgm")
    e("KALL_END:")

e("; @launch kernel=k1_kernel grid=(256,1,1) block=(512,1,1) lds=160256")
e("; @launch kernel=k2_kernel grid=(256,1,1) block=(512,1,1) lds=163840")
e("; @launch kernel=k3_kernel grid=(256,1,1) block=(512,1,1) lds=106496")
e("; @launch kernel=k4_kernel grid=(64,1,1) block=(256,1,1) lds=4096")
e('.amdgcn_target "amdgcn-amd-amdhsa--gfx950"')
e(".text")
k1(); k2(); k3(); k4()
e('.section .rodata,"a"')
for n, v in (("k1_kernel", 256), ("k2_kernel", 256), ("k3_kernel", 256), ("k4_kernel", 80)):
    e(".p2align 6")
    kdesc(n, v)
if "NONT" in FL:
    L = [x.replace(" nt lds", " lds") if x.endswith(" nt lds") else (x[:-3] if x.endswith(" nt") else x) for x in L]
open(sys.argv[1], "w").write("\n".join(L) + "\n")
```

```python
import sys, os, struct
FL = os.environ.get("FL", "").split(",")
L = []
def e(s=""): L.append(s)
def c(s): L.append("    ; " + s)
def I(s): L.append("    " + s)
def f2u(x): return struct.unpack("<I", struct.pack("<f", x))[0]

QABS = 0x0
HH   = 0x40000
STATS= 0x50000
OPB  = 0x100000
OUTP = 0x1100000
TSOFF= 0x1500000
WSSZ = 0x1600000
SC = (128 ** -0.5) * 1.4426950408889634
TSX = 1 if "TS" in FL else 0
PST = os.environ.get("PST", " sc1")
PFN = int(os.environ.get("PFN", "32"))
PFT = int(os.environ.get("PFT", "12"))
K2NT = os.environ.get("K2NT", " nt")
WONT = os.environ.get("WONT", " nt")
OST = os.environ.get("OST", "")
PFD = int(os.environ.get("PFD", "1"))
PFX = int(os.environ.get("PFX", "0"))
PFNF = int(os.environ.get("PFNF", "8"))
FNT = os.environ.get("FNT", " nt")

def srd(d, lo, hi, nbytes):
    I(f"s_mov_b32 s{d}, s{lo}")
    I(f"s_and_b32 s{d+1}, s{hi}, 0xffff")
    I(f"s_mov_b32 s{d+2}, {nbytes}")
    I(f"s_mov_b32 s{d+3}, 0x00020000")

def kstart(name):
    e(f".globl {name}"); e(".p2align 8"); e(f".type {name},@function"); e(f"{name}:")

def kdesc(name, vgpr, sgpr=102):
    e(f".amdhsa_kernel {name}")
    e(f"  .amdhsa_next_free_vgpr {vgpr}")
    e(f"  .amdhsa_next_free_sgpr {sgpr}")
    e(f"  .amdhsa_accum_offset {(vgpr+3)//4*4}")
    e("  .amdhsa_group_segment_fixed_size 0")
    e("  .amdhsa_kernarg_size 104")
    e("  .amdhsa_user_sgpr_count 2")
    e("  .amdhsa_user_sgpr_kernarg_segment_ptr 1")
    e("  .amdhsa_system_sgpr_workgroup_id_x 1")
    e(".end_amdhsa_kernel")

def ts(kid, idx, r=250):
    if "TS" not in FL: return
    I("s_memrealtime s[90:91]")
    I("s_waitcnt lgkmcnt(0)")
    I(f"v_mov_b32 v{r}, s90")
    I("s_lshl_b32 s92, s2, 7")
    I("s_lshl_b32 s93, s18, 5")
    I("s_add_u32 s92, s92, s93")
    I(f"s_add_u32 s92, s92, {TSOFF + kid*65536 + idx*4}")
    I(f"v_and_b32 v{r+2}, 63, v0")
    I(f"v_cmp_eq_u32 vcc, 0, v{r+2}")
    I(f"v_mov_b32 v{r+1}, 0x7f000000")
    I("s_nop 1")
    I(f"v_cndmask_b32 v{r+1}, v{r+1}, 0, vcc")
    I(f"buffer_store_dword v{r}, v{r+1}, s[40:43], s92 offen")

def ht(kid, idx, lab):
    if "HT" not in FL: return
    I("s_cmp_lg_u32 s2, 5")
    I(f"s_cbranch_scc1 HT_{lab}")
    I("s_cmp_lg_u32 s18, 0")
    I(f"s_cbranch_scc1 HT_{lab}")
    I("s_memrealtime s[90:91]")
    I("s_waitcnt lgkmcnt(0)")
    I("v_mov_b32 v250, s90")
    I(f"v_mov_b32 v251, {TSOFF + 0x40000 + kid*8 + idx*4}")
    I("buffer_store_dword v250, v251, s[40:43], 0 offen sc1")
    I("s_waitcnt vmcnt(0)")
    e(f"HT_{lab}:")

def xor32(v, tmp, op):
    I(f"v_mov_b32 v{tmp}, v{v}")
    I("s_nop 1")
    I(f"v_permlane32_swap_b32 v{v}, v{tmp}")
    I("s_nop 1")
    I(f"{op} v{v}, v{v}, v{tmp}")

def dppred(v, tmp, op, width):
    for m in ("quad_perm:[1,0,3,2]", "quad_perm:[2,3,0,1]", "row_half_mirror", "row_mirror"):
        I("s_nop 1")
        I(f"{op}_dpp v{v}, v{v}, v{v} {m} row_mask:0xf bank_mask:0xf")
    if width >= 32:
        I(f"v_mov_b32 v{tmp}, v{v}")
        I("s_nop 1")
        I(f"v_permlane16_swap_b32 v{v}, v{tmp}")
        I("s_nop 1")
        I(f"{op} v{v}, v{v}, v{tmp}")
    if width >= 64:
        xor32(v, tmp, op)

def common_ids():
    I("s_and_b32 s16, s2, 31")
    I("s_lshr_b32 s17, s2, 5")
    I("v_lshrrev_b32 v2, 6, v0")
    I("v_and_b32 v1, 63, v0")
    I("s_nop 0")
    I("v_readfirstlane_b32 s18, v2")
    I("v_lshrrev_b32 v2, 4, v1")
    I("v_and_b32 v3, 15, v1")
    I("s_mov_b32 s19, s18")

def k1():
    XN = 131072; XNS = 1040; QB = XN + 8 * XNS; QS = 272; FST = QB + 16 * QS; FST = (FST + 255) // 256 * 256
    assert FST + 16384 <= 163840
    PF0 = int(os.environ.get("PF0", "0")); PF1 = int(os.environ.get("PF1", "0")); PF2 = int(os.environ.get("PF2", "0"))
    kstart("k1_kernel")
    I("s_cmp_ge_u32 s2, 256")
    I("s_cbranch_scc1 K1_END")
    I("s_load_dwordx4 s[4:7], s[0:1], 0")
    I("s_load_dwordx4 s[8:11], s[0:1], 16")
    I("s_load_dwordx4 s[68:71], s[0:1], 56")
    I("s_load_dwordx2 s[78:79], s[0:1], 96")
    if "TLB" in FL:
        I("s_load_dwordx4 s[12:15], s[0:1], 32")
        I("s_load_dwordx4 s[80:83], s[0:1], 72")
    common_ids()
    I("s_and_b32 s19, s18, 3")
    I("v_lshlrev_b32 v4, 4, v1")
    I("v_lshrrev_b32 v28, 2, v3")
    I("v_lshl_add_u32 v28, v2, 2, v28")
    I("v_and_b32 v29, 7, v28")
    I("v_and_b32 v30, 3, v3")
    I("v_and_b32 v31, 7, v1")
    I(f"v_mul_u32_u24 v31, {XNS}, v31")
    I("v_lshl_add_u32 v31, v2, 3, v31")
    I("s_lshl_b32 s64, s19, 8")
    I(f"s_add_u32 s64, s64, {XN}")
    I("v_add_u32 v31, s64, v31")
    I("s_waitcnt lgkmcnt(0)")
    srd(20, 4, 5, 8192)
    srd(24, 8, 9, 4194304)
    srd(28, 10, 11, 4194304)
    srd(32, 68, 69, 1409024)
    srd(36, 70, 71, 1409024)
    srd(40, 78, 79, WSSZ)
    srd(44, 6, 7, 33554432)
    I("s_cmp_ge_u32 s18, 4")
    I("s_cbranch_scc1 K1_B")
    c("==== A waves")
    ht(0, 0, "a")
    ts(0, 0)
    I("v_lshlrev_b32 v6, 1, v2")
    I("v_xor_b32 v6, v6, v3")
    I("v_lshlrev_b32 v6, 4, v6")
    I("v_lshl_add_u32 v6, v2, 13, v6")
    I("v_xor_b32 v7, 0x80, v6")
    I("s_lshl_b32 s64, s19, 20")
    I("s_lshl_b32 s65, s16, 8")
    I("s_add_u32 s64, s64, s65")
    I("s_lshl_b32 s66, s19, 15")
    I("s_mov_b32 m0, s66")
    I("s_barrier")
    for i in range(32):
        I(f"buffer_load_dwordx4 v{6 + (i & 1)}, s[24:27], s64 offen nt lds")
        if i != 31:
            I("s_add_u32 m0, m0, 1024")
            I("s_add_u32 s64, s64, 32768")
    I("v_lshlrev_b32 v8, 13, v3")
    I("v_lshl_add_u32 v8, v2, 4, v8")
    I("s_lshl_b32 s64, s17, 6")
    I("s_lshl_b32 s66, s19, 4")
    I("s_add_u32 s64, s64, s66")
    I("s_lshl_b32 s64, s64, 13")
    I("s_add_u32 s64, s64, s65")
    for ks in range(4):
        I(f"buffer_load_dwordx4 v[{80+4*ks}:{83+4*ks}], v8, s[28:31], s64 offen offset:{ks*64} nt")
    c("addresses")
    I("v_and_b32 v70, 7, v1")
    I(f"v_mul_u32_u24 v70, {XNS}, v70")
    I("v_lshl_add_u32 v70, v2, 3, v70")
    I(f"v_add_u32 v70, {XN}, v70")
    I("s_lshl_b32 s64, s19, 1")
    I("v_xor_b32 v73, s64, v29")
    I("v_lshlrev_b32 v74, 8, v28")
    I("v_lshl_add_u32 v74, v73, 5, v74")
    I("v_lshl_add_u32 v74, v30, 3, v74")
    I("v_xor_b32 v75, 32, v74")
    I("v_add_u32 v76, 0x10000, v74")
    I("v_add_u32 v77, 0x10000, v75")
    I(f"v_mul_u32_u24 v24, {4*QS}, v2")
    I("v_lshl_add_u32 v24, v3, 1, v24")
    I("s_lshl_b32 s64, s19, 6")
    I(f"s_add_u32 s64, s64, {QB}")
    I("v_add_u32 v24, s64, v24")
    I(f"v_mul_u32_u24 v25, {QS}, v3")
    I("v_lshl_add_u32 v25, v2, 4, v25")
    I(f"v_add_u32 v25, {QB}, v25")
    I("v_lshlrev_b32 v26, 15, v3")
    I("v_lshl_add_u32 v26, v2, 3, v26")
    I("v_cmp_lt_u32 vcc, 7, v3")
    I("v_mov_b32 v27, 0x7f000000")
    I("s_lshl_b32 s70, s16, 10")
    I("s_lshl_b32 s65, s17, 7")
    I("v_cndmask_b32 v26, v26, v27, vcc")
    I("s_add_u32 s70, s70, s65")
    I("s_lshl_b32 s65, s19, 5")
    I("s_add_u32 s70, s70, s65")
    for r in range(12):
        I(f"v_mov_b32 v{8+r}, 0")
    I("s_waitcnt vmcnt(4)")
    I("s_barrier")
    ts(0, 1, r=120)
    for ch in range(4):
        for k4 in range(4):
            ks = ch * 4 + k4
            I(f"ds_read2_b64 v[{128+64*(ch&1)+4*k4}:{131+64*(ch&1)+4*k4}], v70 offset0:{ks*8} offset1:{ks*8+4}")
            for nt in range(2):
                base = (74 + nt) if ks < 8 else (76 + nt)
                off = (ks & 7) * 8192
                d = 144 + 64 * (ch & 1) + (k4 * 2 + nt) * 4
                I(f"ds_read_b64_tr_b16 v[{d}:{d+1}], v{base} offset:{off}")
                I(f"ds_read_b64_tr_b16 v[{d+2}:{d+3}], v{base} offset:{off+4096}")
            if k4 == 2: I("s_waitcnt lgkmcnt(10)")
        for k4 in range(4):
            I(f"s_waitcnt lgkmcnt({5*(3-k4)})")
            for nt in range(2):
                d = 144 + 64 * (ch & 1) + (k4 * 2 + nt) * 4
                a = 128 + 64 * (ch & 1) + 4 * k4
                I(f"v_mfma_f32_16x16x32_bf16 v[{8+4*nt}:{11+4*nt}], v[{a}:{a+3}], v[{d}:{d+3}], v[{8+4*nt}:{11+4*nt}]")
    ts(0, 5, r=120)
    I("s_nop 7")
    for nt in range(2):
        I(f"v_cvt_pk_bf16_f32 v{20+2*nt}, v{8+4*nt}, v{9+4*nt}")
        I(f"v_cvt_pk_bf16_f32 v{21+2*nt}, v{10+4*nt}, v{11+4*nt}")
    for nt in range(2):
        I(f"ds_write_b16 v24, v{20+2*nt} offset:{nt*32}")
        I(f"ds_write_b16_d16_hi v24, v{20+2*nt} offset:{nt*32+QS}")
        I(f"ds_write_b16 v24, v{21+2*nt} offset:{nt*32+2*QS}")
        I(f"ds_write_b16_d16_hi v24, v{21+2*nt} offset:{nt*32+3*QS}")
    I("s_waitcnt lgkmcnt(0)")
    I("s_barrier")
    for ks in range(4):
        I(f"ds_read_b128 v[{128+4*ks}:{131+4*ks}], v25 offset:{ks*64}")
    I("s_waitcnt vmcnt(0) lgkmcnt(0)")
    for ks in range(4):
        I(f"v_mfma_f32_16x16x32_bf16 v[16:19], v[{80+4*ks}:{83+4*ks}], v[{128+4*ks}:{131+4*ks}], v[16:19]")
    I("s_nop 7")
    I("v_cvt_pk_bf16_f32 v12, v16, v17")
    I("v_cvt_pk_bf16_f32 v13, v18, v19")
    I("buffer_store_dwordx2 v[12:13], v26, s[40:43], s70 offen")
    ht(0, 1, "b")
    if "TS" in FL:
        I("s_waitcnt vmcnt(0)")
        ts(0, 2)
    I("s_branch K1_END")
    c("==== B waves: LN, FFN, prefetch")
    e("K1_B:")
    if "CPF" in FL:
        c("touch the code of the later kernels so that their instruction fetch hits L2")
        I("s_getpc_b64 s[84:85]")
        e("K1_PC:")
        I("s_add_u32 s84, s84, k2_kernel-K1_PC")
        I("s_addc_u32 s85, s85, 0")
        I("v_and_b32 v6, 255, v0")
        I("v_lshlrev_b32 v6, 6, v6")
        I("v_cmp_gt_u32 vcc, KALL_END-k2_kernel, v6")
        I("s_and_saveexec_b64 s[86:87], vcc")
        I("s_cbranch_execz K1_PCD")
        I("global_load_dword v7, v6, s[84:85]")
        e("K1_PCD:")
        I("s_mov_b64 exec, s[86:87]")
    I("s_lshl_b32 s64, s19, 11")
    I("v_lshlrev_b32 v5, 5, v1")
    I("buffer_load_dwordx4 v[48:51], v5, s[20:23], s64 offen")
    I("buffer_load_dwordx4 v[52:55], v5, s[20:23], s64 offen offset:16")
    I("s_and_b32 s74, s2, 7")
    I("s_mul_i32 s74, s74, 11")
    I("s_lshr_b32 s75, s2, 3")
    I("s_add_u32 s74, s74, s75")
    I("s_cmp_ge_u32 s2, 88")
    I("s_cselect_b32 s74, 0x1000, s74")
    c("ffn loads: for non-ffn wgs use an out-of-range offset (returns 0 quickly)")
    I("v_lshrrev_b32 v24, 1, v1")
    I("v_mul_u32_u24 v24, 2752, v24")
    I("v_and_b32 v25, 1, v1")
    I("v_lshl_add_u32 v24, v25, 4, v24")
    I(f"s_mul_i32 s64, s19, {128*2752}")
    I("s_lshl_b32 s65, s74, 5")
    I("s_add_u32 s64, s64, s65")
    I("s_cmp_ge_u32 s74, 86")
    I("s_cselect_b32 s64, 0x40000000, s64")
    for n in range(4):
        I(f"buffer_load_dwordx4 v[{96+4*n}:{99+4*n}], v24, s[32:35], s64 offen{FNT}")
        I(f"buffer_load_dwordx4 v[{112+4*n}:{115+4*n}], v24, s[36:39], s64 offen{FNT}")
        if n != 3: I(f"s_add_u32 s64, s64, {32*2752}")
    I("s_barrier")
    I("s_lshl_b32 s76, s2, 17")
    I("s_lshl_b32 s64, s19, 15")
    I("s_add_u32 s76, s76, s64")
    for n in range(PF0):
        I(f"buffer_load_dwordx4 v[{160+4*(n%16)}:{163+4*(n%16)}], v4, s[44:47], s76 offen nt")
        I("s_add_u32 s76, s76, 1024")
    I(f"s_waitcnt vmcnt({8+PF0})")
    for k in range(8):
        I(f"v_lshlrev_b32 v{56+2*k}, 16, v{48+k}")
        I(f"v_and_b32 v{57+2*k}, 0xffff0000, v{48+k}")
    I("v_add_f32 v8, v56, v57"); I("v_add_f32 v9, v58, v59"); I("v_add_f32 v10, v60, v61"); I("v_add_f32 v11, v62, v63")
    I("v_add_f32 v8, v8, v64"); I("v_add_f32 v9, v9, v65"); I("v_add_f32 v10, v10, v66"); I("v_add_f32 v11, v11, v67")
    I("v_add_f32 v8, v8, v68"); I("v_add_f32 v9, v9, v69"); I("v_add_f32 v10, v10, v70"); I("v_add_f32 v11, v11, v71")
    I("v_add_f32 v8, v8, v9"); I("v_add_f32 v10, v10, v11"); I("v_add_f32 v8, v8, v10")
    dppred(8, 9, "v_add_f32", 32)
    I("v_mul_f32 v8, 0x3b000000, v8")
    for k in range(16):
        I(f"v_sub_f32 v{72+k}, v{56+k}, v8")
    I("v_mul_f32 v9, v72, v72"); I("v_mul_f32 v10, v73, v73"); I("v_mul_f32 v11, v74, v74"); I("v_mul_f32 v12, v75, v75")
    for k in range(4, 16, 4):
        for q in range(4):
            I(f"v_fmac_f32 v{9+q}, v{72+k+q}, v{72+k+q}")
    I("v_add_f32 v9, v9, v10"); I("v_add_f32 v11, v11, v12"); I("v_add_f32 v12, v9, v11")
    dppred(12, 9, "v_add_f32", 32)
    I("v_mul_f32 v12, 0x3b000000, v12")
    I("v_cvt_pk_bf16_f32 v9, v8, v12")
    I("v_lshlrev_b32 v8, 16, v9")
    I("v_and_b32 v12, 0xffff0000, v9")
    I(f"v_add_f32 v12, {f2u(1e-5):#x}, v12")
    I("v_cvt_pk_bf16_f32 v12, v12, v12")
    I("v_lshlrev_b32 v12, 16, v12")
    I("v_sqrt_f32 v12, v12")
    I("s_nop 0")
    I("v_cvt_pk_bf16_f32 v12, v12, v12")
    I("v_lshlrev_b32 v12, 16, v12")
    I("v_rcp_f32 v9, v12")
    for k in range(16):
        I(f"v_sub_f32 v{56+k}, v{56+k}, v8")
    for k in range(8):
        I(f"v_cvt_pk_bf16_f32 v{72+k}, v{56+2*k}, v{57+2*k}")
    for k in range(8):
        I(f"v_lshlrev_b32 v{56+2*k}, 16, v{72+k}")
        I(f"v_and_b32 v{57+2*k}, 0xffff0000, v{72+k}")
    for k in range(16):
        I(f"v_mul_f32 v{56+k}, v{56+k}, v9")
    for k in range(8):
        I(f"v_cvt_pk_bf16_f32 v{72+k}, v{56+2*k}, v{57+2*k}")
    I("v_lshrrev_b32 v10, 5, v1")
    I("s_lshl_b32 s64, s19, 1")
    I("v_add_u32 v10, s64, v10")
    I(f"v_mul_u32_u24 v10, {XNS}, v10")
    I("v_and_b32 v11, 31, v1")
    I("v_lshl_add_u32 v10, v11, 5, v10")
    I(f"v_add_u32 v10, {XN}, v10")
    I("ds_write_b128 v10, v[72:75]")
    I("ds_write_b128 v10, v[76:79] offset:16")
    if "TLB" in FL:
        c("touch pages of buffers used by later kernels (TLB / cache warm-up), wave 7 only")
        I("s_cmp_lg_u32 s18, 7")
        I("s_cbranch_scc1 K1_NOTLB")
        srd(48, 12, 13, 4194304)
        srd(52, 14, 15, 4194304)
        srd(56, 80, 81, 1409024)
        srd(60, 82, 83, 8192)
        I("v_lshlrev_b32 v20, 16, v1")
        I("buffer_load_dword v21, v20, s[48:51], 0 offen")
        I("buffer_load_dword v21, v20, s[52:55], 0 offen")
        I("buffer_load_dword v21, v20, s[56:59], 0 offen")
        I("buffer_load_dword v21, v20, s[60:63], 0 offen")
        I("v_mul_u32_u24 v20, 0x58000, v1")
        I("buffer_load_dword v21, v20, s[40:43], 0 offen")
        I("s_waitcnt vmcnt(0)")
        e("K1_NOTLB:")
    c("prefetch part 1 (no waits)")
    for n in range(PF1):
        I(f"buffer_load_dwordx4 v[{160+4*(n%16)}:{163+4*(n%16)}], v4, s[44:47], s76 offen nt")
        I("s_add_u32 s76, s76, 1024")
    I("s_waitcnt lgkmcnt(0)")
    I("s_barrier")
    I("s_cmp_ge_u32 s74, 86")
    I("s_cbranch_scc1 K1_BNOF")
    for ks in range(4):
        I(f"ds_read2_b64 v[{32+4*ks}:{35+4*ks}], v31 offset0:{ks*8} offset1:{ks*8+4}")
    I("s_lshl_b32 s66, s19, 12")
    I(f"s_add_u32 s66, s66, {FST}")
    I("v_add_u32 v25, s66, v4")
    I("v_lshlrev_b32 v26, 5, v28")
    I("v_lshl_add_u32 v26, v30, 3, v26")
    I("v_add_u32 v26, s66, v26")
    for r in range(8):
        I(f"v_mov_b32 v{8+r}, 0")
    I(f"s_waitcnt vmcnt({PF1+PF0})")
    for m in range(2):
        for n in range(4):
            I(f"ds_write_b128 v25, v[{96+16*m+4*n}:{99+16*m+4*n}] offset:{n*1024}")
        for ks in range(4):
            d = 128 + (m * 4 + ks) * 4
            I(f"ds_read_b64_tr_b16 v[{d}:{d+1}], v26 offset:{ks*1024}")
            I(f"ds_read_b64_tr_b16 v[{d+2}:{d+3}], v26 offset:{ks*1024+512}")
    I("s_waitcnt lgkmcnt(0)")
    for m in range(2):
        for ks in range(4):
            d = 128 + (m * 4 + ks) * 4
            I(f"v_mfma_f32_16x16x32_bf16 v[{8+4*m}:{11+4*m}], v[{32+4*ks}:{35+4*ks}], v[{d}:{d+3}], v[{8+4*m}:{11+4*m}]")
    I("v_lshlrev_b32 v17, 5, v1")
    I("v_add_u32 v18, s66, v17")
    I(f"v_add_u32 v17, {FST}, v17")
    I("s_nop 7")
    I("ds_write_b128 v18, v[8:11]")
    I("ds_write_b128 v18, v[12:15] offset:16")
    e("K1_BNOF:")
    for n in range(PF2):
        I(f"buffer_load_dwordx4 v[{160+4*(n%16)}:{163+4*(n%16)}], v4, s[44:47], s76 offen nt")
        I("s_add_u32 s76, s76, 1024")
    I("s_waitcnt lgkmcnt(0)")
    I("s_barrier")
    I("s_cmp_ge_u32 s74, 86")
    I("s_cbranch_scc1 K1_BEND")
    I("s_cmp_lg_u32 s18, 4")
    I("s_cbranch_scc1 K1_BEND")
    for w in range(1, 4):
        I(f"ds_read_b128 v[{96+8*w}:{99+8*w}], v17 offset:{w*4096}")
        I(f"ds_read_b128 v[{100+8*w}:{103+8*w}], v17 offset:{w*4096+16}")
    I("s_waitcnt lgkmcnt(0)")
    for w in range(1, 4):
        for r in range(8):
            I(f"v_add_f32 v{8+r}, v{8+r}, v{96+8*w+r}")
    for r in range(4):
        I(f"v_cvt_pk_bf16_f32 v{96+r}, v{8+r}, v{12+r}")
    for r in range(4):
        I(f"v_lshlrev_b32 v{8+r}, 16, v{96+r}")
        I(f"v_and_b32 v{12+r}, 0xffff0000, v{96+r}")
    I(f"s_mov_b32 s64, {f2u(0.044715):#x}")
    I(f"s_mov_b32 s65, {f2u(-2.0 * 0.7978845608028654 * 1.4426950408889634):#x}")
    for r in range(4):
        I(f"v_mul_f32 v{96+r}, v{8+r}, v{8+r}")
        I(f"v_mul_f32 v{96+r}, s64, v{96+r}")
        I(f"v_fma_f32 v{96+r}, v{96+r}, v{8+r}, v{8+r}")
        I(f"v_mul_f32 v{96+r}, s65, v{96+r}")
        I(f"v_exp_f32 v{96+r}, v{96+r}")
        I("s_nop 0")
        I(f"v_add_f32 v{96+r}, 1.0, v{96+r}")
        I(f"v_rcp_f32 v{96+r}, v{96+r}")
        I("s_nop 0")
        I(f"v_mul_f32 v{96+r}, v{96+r}, v{8+r}")
    for r in range(4):
        I(f"v_cvt_pk_bf16_f32 v{96+r}, v{96+r}, v{96+r}")
        I(f"v_lshlrev_b32 v{96+r}, 16, v{96+r}")
        I(f"v_mul_f32 v{96+r}, v{96+r}, v{12+r}")
        I(f"v_cvt_pk_bf16_f32 v{96+r}, v{96+r}, v{96+r}")
    I("v_mul_u32_u24 v100, 11008, v2")
    I("v_lshl_add_u32 v100, v3, 1, v100")
    I("v_cmp_lt_u32 vcc, 1, v2")
    I("v_mov_b32 v101, 0x7f000000")
    I("s_lshl_b32 s64, s74, 5")
    I(f"s_add_u32 s64, s64, {HH}")
    I("v_cndmask_b32 v100, v100, v101, vcc")
    I("v_add_u32 v101, 5504, v100")
    for r in range(4):
        I(f"buffer_store_short v{96+r}, v{100+(r>>1)}, s[40:43], s64 offen offset:{(r&1)*2752}")
    e("K1_BEND:")
    if "NOWAITPF" not in FL: I("s_waitcnt vmcnt(0)")
    if "TS" in FL:
        I("s_sub_u32 s18, s18, 4")
        I("s_add_u32 s2, s2, 256")
        ts(0, 4, r=120)
    e("K1_END:")
    I("s_endpgm")

def k2():
    STG = 131072
    PB = STG; MX = STG + 8192; LB = MX + 512
    kstart("k2_kernel")
    I("s_cmp_ge_u32 s2, 256")
    I("s_cbranch_scc1 K2_END")
    I("s_load_dwordx2 s[4:5], s[0:1], 8")
    I("s_load_dwordx4 s[12:15], s[0:1], 32")
    I("s_load_dwordx2 s[72:73], s[0:1], 72")
    I("s_load_dwordx2 s[78:79], s[0:1], 96")
    common_ids()
    I("s_and_b32 s19, s18, 3")
    I("v_lshlrev_b32 v4, 4, v1")
    I("v_and_b32 v8, 31, v1")
    I("v_lshrrev_b32 v9, 5, v1")
    I("s_waitcnt lgkmcnt(0)")
    srd(40, 78, 79, WSSZ)
    srd(44, 4, 5, 33554432)
    srd(48, 12, 13, 4194304)
    srd(52, 14, 15, 4194304)
    srd(56, 72, 73, 1409024)
    I("s_cmp_ge_u32 s18, 4")
    I("s_cbranch_scc1 K2_B")
    c("==== A waves: c_kv DMA (window major), QK")
    ht(1, 0, "c")
    ts(1, 0)
    if "K2ROW" in FL:
        I("s_lshl_b32 s64, s2, 17")
        I("s_lshl_b32 s65, s19, 15")
        I("s_add_u32 s64, s64, s65")
        I("s_mov_b32 m0, s65")
        for kk in range(32):
            f = ((kk & 3) << 2) | ((kk >> 2) & 3)
            I(f"v_xor_b32 v{10 + (kk & 3)}, {f*16}, v4")
            I(f"buffer_load_dwordx4 v{10 + (kk & 3)}, s[44:47], s64 offen{K2NT} lds")
            if kk != 31:
                I("s_add_u32 m0, m0, 1024")
                I("s_add_u32 s64, s64, 1024")
    else:
        I("v_lshlrev_b32 v5, 2, v2")
        I("v_xor_b32 v5, v5, v3")
        I("v_lshlrev_b32 v5, 4, v5")
        I("v_lshl_add_u32 v5, v2, 10, v5")
        for q in range(4):
            I(f"v_xor_b32 v{10+q}, {q*16}, v5")
        I("s_lshl_b32 s64, s2, 17")
        I("s_lshl_b32 s65, s19, 15")
        I("s_add_u32 s64, s64, s65")
        I("s_lshl_b32 s65, s19, 13")
        for win in range(4):
            I(f"s_add_u32 s66, s64, {win*256}")
            I(f"s_add_u32 s67, s65, {win*32768}")
            I("s_mov_b32 m0, s67")
            I("s_nop 0")
            for kk in range(8):
                I(f"buffer_load_dwordx4 v{10+(kk&3)}, s[44:47], s66 offen{K2NT} lds")
                if kk != 7:
                    I("s_add_u32 m0, m0, 1024")
                    I("s_add_u32 s66, s66, 4096")
    c("Q frag read addrs")
    I("v_and_b32 v27, 15, v8")
    I("v_xor_b32 v27, v27, v9")
    I("v_lshlrev_b32 v27, 4, v27")
    I("v_lshl_add_u32 v27, v8, 10, v27")
    I(f"v_add_u32 v27, {STG}, v27")
    for q in range(8):
        I(f"v_xor_b32 v{40+q}, {q*32}, v27")
    c("QK addrs v[12:19]/v[20..27]")
    I("v_and_b32 v11, 3, v8")
    I("v_lshlrev_b32 v11, 2, v11")
    I("v_bfe_u32 v12, v8, 2, 2")
    I("v_or_b32 v11, v11, v12")
    I("v_xor_b32 v11, v11, v9")
    I("v_lshlrev_b32 v11, 4, v11")
    I(f"v_lshl_add_u32 v11, v8, {10 if 'K2ROW' in FL else 8}, v11")
    I("v_add_u32 v11, s65, v11")
    for q in range(8):
        I(f"v_xor_b32 v{48+q}, {q*32}, v11")
        I(f"v_add_u32 v{56+q}, 0x10000, v{48+q}")
    for r in range(16):
        I(f"v_mov_b32 v{20+r}, 0")
    I("s_barrier")
    for st in range(32):
        I(f"ds_read_b128 v[{64+4*st}:{67+4*st}], v{40+(st&7)} offset:{(st>>3)*256}")
        if st == 15: I("s_waitcnt lgkmcnt(0)")
    I("s_waitcnt lgkmcnt(0)")
    I("s_barrier")
    for win in range(4):
        if "K2ROW" in FL:
            if win == 0:
                I("s_waitcnt vmcnt(0) lgkmcnt(0)")
                ts(1, 1)
            for q in range(8):
                I(f"ds_read_b128 v[{192+4*q}:{195+4*q}], v{48+q} offset:{win*256}")
        else:
            I(f"s_waitcnt vmcnt({8*(3-win)}) lgkmcnt(0)")
            if win == 3: ts(1, 1)
            for q in range(8):
                a = (48 if win < 2 else 56) + q
                I(f"ds_read_b128 v[{192+4*q}:{195+4*q}], v{a} offset:{(win&1)*32768}")
        for q in range(8):
            st = win * 8 + q
            I(f"s_waitcnt lgkmcnt({7-q})")
            I(f"v_mfma_f32_32x32x16_bf16 v[20:35], v[{192+4*q}:{195+4*q}], v[{64+4*st}:{67+4*st}], v[20:35]")
    I("v_lshlrev_b32 v38, 4, v8")
    I("s_lshl_b32 s64, s19, 2")
    I(f"s_add_u32 s64, s64, {MX}")
    I("v_add_u32 v39, s64, v38")
    I("s_lshl_b32 s64, s19, 11")
    I(f"s_add_u32 s64, s64, {PB}")
    I("v_add_u32 v42, s64, v4")
    I("s_nop 7")
    I("v_max3_f32 v36, v20, v21, v22")
    for r in range(3, 15, 2):
        I(f"v_max3_f32 v36, v36, v{20+r}, v{21+r}")
    I("v_max_f32 v36, v36, v35")
    xor32(36, 37, "v_max_f32")
    I("ds_write_b32 v39, v36")
    I("s_waitcnt lgkmcnt(0)")
    I("s_barrier")
    I(f"v_add_u32 v40, {MX}, v38")
    I("ds_read_b128 v[44:47], v40")
    I(f"s_mov_b32 s64, {f2u(SC):#x}")
    I("s_waitcnt lgkmcnt(0)")
    I("v_max3_f32 v36, v44, v45, v46")
    I("v_max_f32 v36, v36, v47")
    I("v_mul_f32 v36, s64, v36")
    for r in range(16):
        I(f"v_fma_f32 v{20+r}, v{20+r}, s64, -v36")
    for r in range(16):
        I(f"v_exp_f32 v{20+r}, v{20+r}")
    I("s_nop 0")
    for r in range(8):
        I(f"v_cvt_pk_bf16_f32 v{48+r}, v{20+2*r}, v{21+2*r}")
    I("ds_write_b128 v42, v[48:51]")
    I("ds_write_b128 v42, v[52:55] offset:1024")
    I("v_add_f32 v37, v20, v21"); I("v_add_f32 v41, v22, v23"); I("v_add_f32 v43, v24, v25"); I("v_add_f32 v44, v26, v27")
    I("v_add_f32 v37, v37, v28"); I("v_add_f32 v41, v41, v29"); I("v_add_f32 v43, v43, v30"); I("v_add_f32 v44, v44, v31")
    I("v_add_f32 v37, v37, v32"); I("v_add_f32 v41, v41, v33"); I("v_add_f32 v43, v43, v34"); I("v_add_f32 v44, v44, v35")
    I("v_add_f32 v37, v37, v41"); I("v_add_f32 v43, v43, v44"); I("v_add_f32 v37, v37, v43")
    xor32(37, 41, "v_add_f32")
    I(f"v_add_u32 v39, {LB-MX}, v39")
    I("ds_write_b32 v39, v37")
    I("s_branch K2_PV")
    c("==== B waves: Q staging, K3 weight prefetch")
    e("K2_B:")
    I("s_lshl_b32 s64, s17, 15")
    I("s_lshl_b32 s65, s19, 13")
    I("s_add_u32 s64, s64, s65")
    for n in range(8):
        I(f"buffer_load_dwordx4 v[{192+4*n}:{195+4*n}], v4, s[40:43], s64 offen offset:{(n&3)*1024}")
        if n == 3: I("s_add_u32 s64, s64, 4096")
    I("s_and_b32 s64, s19, 1")
    I("s_lshl_b32 s64, s64, 7")
    I("v_xor_b32 v26, s64, v4")
    I(f"s_add_u32 s64, s65, {STG}")
    I("v_add_u32 v26, s64, v26")
    for n in range(8):
        I(f"v_xor_b32 v{16+n}, {n*16}, v26")
    I("v_lshlrev_b32 v38, 4, v8")
    I("s_waitcnt vmcnt(0)")
    for n in range(8):
        I(f"ds_write_b128 v{16+n}, v[{192+4*n}:{195+4*n}] offset:{n*1024}")
    I("s_waitcnt lgkmcnt(0)")
    I("s_barrier")
    I("s_barrier")
    if "NOPF3" not in FL:
        I("v_and_b32 v56, 255, v0")
        I("v_lshrrev_b32 v57, 4, v56")
        I("v_lshlrev_b32 v56, 4, v56")
        I("s_lshl_b32 s64, s16, 17")
        I("s_lshl_b32 s65, s17, 14")
        I("s_add_u32 s64, s64, s65")
        for n in range(4):
            I(f"buffer_load_dwordx4 v[{240+4*n}:{243+4*n}], v56, s[52:55], s64 offen nt")
            I("s_add_u32 s64, s64, 4096")
        I("v_lshlrev_b32 v57, 13, v57")
        I("v_lshl_add_u32 v57, v3, 4, v57")
        I("s_lshl_b32 s64, s17, 19")
        I("s_lshl_b32 s65, s16, 8")
        I("s_add_u32 s64, s64, s65")
        for n in range(4):
            I(f"buffer_load_dwordx4 v[{240+4*n}:{243+4*n}], v57, s[48:51], s64 offen nt")
            I("s_add_u32 s64, s64, 131072")
        I("s_lshl_b32 s64, s2, 14")
        for n in range(4):
            I(f"buffer_load_dwordx4 v[{240+4*n}:{243+4*n}], v56, s[56:59], s64 offen nt")
            I("s_add_u32 s64, s64, 4096")
    I("s_barrier")
    c("==== PV on 8 waves: window = w8>>1, half = w8&1")
    e("K2_PV:")
    I("v_lshrrev_b32 v44, 2, v3")
    I("v_bfe_u32 v45, v1, 4, 1")
    I("v_lshl_add_u32 v46, v9, 2, v44")
    I("v_bfe_u32 v47, v3, 1, 1")
    I("v_lshl_add_u32 v47, v45, 1, v47")
    I("v_lshl_add_u32 v56, v44, 2, v9")
    I("v_xor_b32 v47, v47, v56")
    I("v_lshlrev_b32 v47, 4, v47")
    I("v_and_b32 v56, 1, v3")
    I("v_lshl_add_u32 v47, v56, 3, v47")
    I(f"v_lshl_add_u32 v47, v46, {10 if 'K2ROW' in FL else 8}, v47")
    I("s_lshr_b32 s64, s18, 1")
    I(f"s_lshl_b32 s64, s64, {8 if 'K2ROW' in FL else 15}")
    I("v_add_u32 v47, s64, v47")
    I("s_and_b32 s64, s18, 1")
    I("s_lshl_b32 s64, s64, 7")
    I("v_xor_b32 v47, s64, v47")
    for nt in range(2):
        for sec in range(2):
            x = (nt << 6) ^ (sec * 32)
            I(f"v_xor_b32 v{224+nt*2+sec}, {x}, v47")
            if sec: I(f"v_add_u32 v{224+nt*2+sec}, {8192 if 'K2ROW' in FL else 2048}, v{224+nt*2+sec}")
            if "K2ROW" in FL: I(f"v_add_u32 v{228+nt*2+sec}, 0x10000, v{224+nt*2+sec}")
    I(f"v_add_u32 v42, {PB}, v4")
    I(f"v_add_u32 v40, {LB}, v38")
    for r in range(32):
        I(f"v_mov_b32 v{128+r}, 0")
    c("O staging addrs")
    I("v_and_b32 v60, 7, v8")
    I("v_lshlrev_b32 v60, 4, v60")
    I("v_lshl_add_u32 v60, v9, 3, v60")
    I("v_lshl_add_u32 v60, v8, 7, v60")
    I("s_lshl_b32 s64, s18, 12")
    I("v_add_u32 v60, s64, v60")
    I("v_lshrrev_b32 v61, 3, v1")
    I("v_and_b32 v62, 7, v1")
    I("v_xor_b32 v63, v61, v62")
    I("v_lshlrev_b32 v63, 4, v63")
    I("v_lshl_add_u32 v63, v61, 7, v63")
    I("v_add_u32 v63, s64, v63")
    I("v_lshlrev_b32 v61, 18, v61")
    I("v_lshl_add_u32 v61, v62, 4, v61")
    I("s_lshl_b32 s68, s2, 7")
    I("s_lshl_b32 s65, s18, 15")
    I("s_add_u32 s68, s68, s65")
    I(f"s_add_u32 s68, s68, {OPB}")
    I("s_waitcnt lgkmcnt(0)")
    I("s_barrier")
    for t in range(8):
        I(f"ds_read_b128 v[{96+4*t}:{99+4*t}], v42 offset:{t*1024}")
    I("ds_read_b128 v[44:47], v40")
    for tp in range(4):
        for t2 in range(2):
            t = tp * 2 + t2
            for nt in range(2):
                for sec in range(2):
                    d = 192 + t2 * 8 + nt * 4 + sec * 2
                    if "K2ROW" in FL:
                        I(f"ds_read_b64_tr_b16 v[{d}:{d+1}], v{(224 if t < 4 else 228)+nt*2+sec} offset:{(t&3)*16384}")
                    else:
                        I(f"ds_read_b64_tr_b16 v[{d}:{d+1}], v{224+nt*2+sec} offset:{t*4096}")
        for t2 in range(2):
            t = tp * 2 + t2
            for nt in range(2):
                d = 192 + t2 * 8 + nt * 4
                I(f"s_waitcnt lgkmcnt({6-4*t2-2*nt})")
                I(f"v_mfma_f32_32x32x16_bf16 v[{128+16*nt}:{143+16*nt}], v[{d}:{d+3}], v[{96+4*t}:{99+4*t}], v[{128+16*nt}:{143+16*nt}]")
    I("s_cmp_lg_u32 s18, 0")
    I("s_cbranch_scc1 K2_NOSTAT")
    ts(1, 2, r=250)
    I("v_add_f32 v37, v44, v45")
    I("v_add_f32 v46, v46, v47")
    I("v_add_f32 v37, v37, v46")
    I("v_lshlrev_b32 v40, 11, v8")
    I("v_cmp_lt_u32 vcc, 0, v9")
    I("v_mov_b32 v41, 0x7f000000")
    I("s_lshl_b32 s64, s2, 3")
    I(f"s_add_u32 s64, s64, {STATS}")
    I("v_cndmask_b32 v40, v40, v41, vcc")
    I("buffer_store_dwordx2 v[36:37], v40, s[40:43], s64 offen")
    e("K2_NOSTAT:")
    I("s_nop 7")
    I("s_nop 3")
    for nt in range(2):
        for q in range(4):
            b = 128 + 16 * nt + 4 * q
            k = nt * 4 + q
            I(f"v_cvt_pk_bf16_f32 v{160+2*k}, v{b}, v{b+1}")
            I(f"v_cvt_pk_bf16_f32 v{161+2*k}, v{b+2}, v{b+3}")
            I(f"v_xor_b32 v{176+k}, {k*16}, v60")
    I("s_barrier")
    for k in range(8):
        I(f"ds_write_b64 v{176+k}, v[{160+2*k}:{161+2*k}]")
    for n in range(4):
        I(f"ds_read_b128 v[{64+4*n}:{67+4*n}], v63 offset:{n*1024}")
    for n in range(4):
        I(f"s_waitcnt lgkmcnt({3-n})")
        I(f"buffer_store_dwordx4 v[{64+4*n}:{67+4*n}], v61, s[40:43], s68 offen{PST}")
        if n != 3: I(f"s_add_u32 s68, s68, {8*262144}")
    ht(1, 1, "d")
    if "TS" in FL:
        I("s_waitcnt vmcnt(0)")
        I("s_cmp_ge_u32 s18, 4")
        I("s_cbranch_scc1 K2_END")
        ts(1, 3, r=250)
    e("K2_END:")
    I("s_endpgm")

def k3():
    WUV = 65536; COEF = WUV + 32768; CL = COEF + 1024; CLS = 272; CX = CL + 8 * CLS; CXS = 272
    kstart("k3_kernel")
    I("s_cmp_ge_u32 s2, 256")
    I("s_cbranch_scc1 K3_END")
    I("s_load_dwordx4 s[12:15], s[0:1], 32")
    I("s_load_dwordx2 s[72:73], s[0:1], 72")
    I("s_load_dwordx2 s[78:79], s[0:1], 96")
    common_ids()
    I("s_and_b32 s19, s18, 3")
    I("s_and_b32 s17, s17, 3")
    I("s_lshr_b32 s20, s2, 7")
    I("s_and_b32 s21, s2, 127")
    I("s_waitcnt lgkmcnt(0)")
    srd(40, 78, 79, WSSZ)
    srd(48, 12, 13, 4194304)
    srd(52, 14, 15, 4194304)
    srd(56, 72, 73, 1409024)
    I("v_lshlrev_b32 v4, 4, v1")
    I("v_and_b32 v48, 7, v1")
    I("v_mul_u32_u24 v18, 2752, v48")
    I("v_lshl_add_u32 v18, v2, 3, v18")
    I("s_lshl_b32 s64, s21, 5")
    I(f"s_add_u32 s64, s64, {HH}")
    I("s_cmp_ge_u32 s18, 4")
    I("s_cbranch_scc1 K3_B")
    c("==== group A: combine")
    ht(2, 0, "e")
    if "TS" in FL: ts(2, 0)
    I("v_lshlrev_b32 v5, 3, v0")
    I("s_lshl_b32 s65, s16, 11")
    I(f"s_add_u32 s65, s65, {STATS}")
    I("buffer_load_dwordx2 v[8:9], v5, s[40:43], s65 offen")
    I("v_lshrrev_b32 v6, 4, v0")
    I("v_lshlrev_b32 v7, 6, v6")
    I("v_lshlrev_b32 v6, 11, v6")
    I("v_lshl_add_u32 v6, v48, 4, v6")
    I("v_lshrrev_b32 v10, 3, v3")
    I("v_lshl_add_u32 v6, v10, 15, v6")
    I("s_lshl_b32 s65, s16, 2")
    I("s_add_u32 s65, s65, s17")
    I("s_lshl_b32 s65, s65, 16")
    I(f"s_add_u32 s65, s65, {OPB}")
    for k in range(16):
        I(f"buffer_load_dwordx4 v[{64+4*k}:{67+4*k}], v6, s[40:43], s65 offen offset:{k*128}")
    I("buffer_load_dwordx2 v[144:145], v18, s[40:43], s64 offen")
    I("s_waitcnt vmcnt(17)")
    I("v_mov_b32 v20, v8")
    dppred(20, 21, "v_max_f32", 32)
    I("v_sub_f32 v20, v8, v20")
    I("v_exp_f32 v20, v20")
    I("s_nop 0")
    I("v_mul_f32 v22, v20, v9")
    dppred(22, 21, "v_add_f32", 32)
    I("v_rcp_f32 v22, v22")
    I("s_nop 0")
    I("v_mul_f32 v20, v20, v22")
    I("v_lshlrev_b32 v21, 2, v0")
    I(f"v_add_u32 v21, {COEF}, v21")
    I("ds_write_b32 v21, v20")
    I(f"v_add_u32 v7, {COEF}, v7")
    for q in range(4):
        I(f"ds_read_b128 v[{24+4*q}:{27+4*q}], v7 offset:{16*q}")
    for q in range(8):
        I(f"v_mov_b32 v{40+q}, 0")
    I("s_waitcnt lgkmcnt(0)")
    for k in range(16):
        I(f"s_waitcnt vmcnt({16-k})")
        for q in range(4):
            I(f"v_lshlrev_b32 v56, 16, v{64+4*k+q}")
            I(f"v_and_b32 v57, 0xffff0000, v{64+4*k+q}")
            I(f"v_fmac_f32 v{40+2*q}, v{24+k}, v56")
            I(f"v_fmac_f32 v{41+2*q}, v{24+k}, v57")
    for q in range(8):
        I(f"v_mov_b32 v{56+q}, v{40+q}")
    I("s_nop 1")
    for q in range(8):
        I(f"v_permlane16_swap_b32 v{40+q}, v{56+q}")
    I("s_nop 1")
    for q in range(8):
        I(f"v_add_f32 v{40+q}, v{40+q}, v{56+q}")
    for q in range(4):
        I(f"v_cvt_pk_bf16_f32 v{56+q}, v{40+2*q}, v{41+2*q}")
    I("v_lshrrev_b32 v49, 5, v0")
    I(f"v_mul_u32_u24 v49, {CLS}, v49")
    I("v_lshl_add_u32 v49, v3, 4, v49")
    I(f"v_add_u32 v49, {CL}, v49")
    I("ds_write_b128 v49, v[56:59]")
    if "TS" in FL: ts(2, 1)
    I(f"v_mul_u32_u24 v49, {CLS}, v48")
    I("v_lshl_add_u32 v49, v2, 3, v49")
    I(f"v_add_u32 v49, {CL}, v49")
    I("v_lshrrev_b32 v50, 2, v3")
    I("v_lshl_add_u32 v51, v2, 2, v50")
    I("v_and_b32 v52, 7, v51")
    I("s_lshl_b32 s64, s19, 1")
    I("v_xor_b32 v53, s64, v52")
    I("v_lshlrev_b32 v54, 8, v51")
    I("v_lshl_add_u32 v54, v53, 5, v54")
    I("v_and_b32 v55, 3, v3")
    I("v_lshl_add_u32 v54, v55, 3, v54")
    I(f"v_add_u32 v54, {WUV}, v54")
    I("v_xor_b32 v55, 32, v54")
    for r in range(8):
        I(f"v_mov_b32 v{120+r}, 0")
    I("s_waitcnt lgkmcnt(0)")
    I("s_barrier")
    for ks in range(4):
        I(f"ds_read2_b64 v[{64+4*ks}:{67+4*ks}], v49 offset0:{ks*8} offset1:{ks*8+4}")
    for ks in range(4):
        for nt in range(2):
            d = 80 + (ks * 2 + nt) * 4
            I(f"ds_read_b64_tr_b16 v[{d}:{d+1}], v{54+nt} offset:{ks*8192}")
            I(f"ds_read_b64_tr_b16 v[{d+2}:{d+3}], v{54+nt} offset:{ks*8192+4096}")
    for ks in range(4):
        for nt in range(2):
            d = 80 + (ks * 2 + nt) * 4
            I(f"s_waitcnt lgkmcnt({14-2*(ks*2+nt)})")
            I(f"v_mfma_f32_16x16x32_bf16 v[{120+4*nt}:{123+4*nt}], v[{64+4*ks}:{67+4*ks}], v[{d}:{d+3}], v[{120+4*nt}:{123+4*nt}]")
    I(f"v_mul_u32_u24 v56, {4*CXS}, v2")
    I("v_lshl_add_u32 v56, v3, 1, v56")
    I("s_lshl_b32 s64, s19, 6")
    I(f"s_add_u32 s64, s64, {CX}")
    I("v_add_u32 v56, s64, v56")
    I("s_nop 7")
    for nt in range(2):
        I(f"v_cvt_pk_bf16_f32 v{96+2*nt}, v{120+4*nt}, v{121+4*nt}")
        I(f"v_cvt_pk_bf16_f32 v{97+2*nt}, v{122+4*nt}, v{123+4*nt}")
    for nt in range(2):
        I(f"ds_write_b16 v56, v{96+2*nt} offset:{nt*32}")
        I(f"ds_write_b16_d16_hi v56, v{96+2*nt} offset:{nt*32+CXS}")
        I(f"ds_write_b16 v56, v{97+2*nt} offset:{nt*32+2*CXS}")
        I(f"ds_write_b16_d16_hi v56, v{97+2*nt} offset:{nt*32+3*CXS}")
    I("s_waitcnt vmcnt(0) lgkmcnt(0)")
    I("s_barrier")
    I("s_branch K3_O")
    c("==== group B: weight loads")
    e("K3_B:")
    I("buffer_load_dwordx2 v[144:145], v18, s[40:43], s64 offen")
    I("v_lshlrev_b32 v10, 1, v2")
    I("v_xor_b32 v10, v10, v3")
    I("v_lshlrev_b32 v10, 4, v10")
    I("v_lshl_add_u32 v10, v2, 13, v10")
    I("v_xor_b32 v11, 0x80, v10")
    I("s_lshl_b32 s64, s17, 7")
    I("s_lshl_b32 s65, s19, 5")
    I("s_add_u32 s64, s64, s65")
    I("s_lshl_b32 s64, s64, 13")
    I("s_lshl_b32 s66, s16, 8")
    I("s_add_u32 s64, s64, s66")
    I("s_lshl_b32 s65, s65, 8")
    I(f"s_add_u32 s65, s65, {WUV}")
    I("s_mov_b32 m0, s65")
    I("s_nop 0")
    for i in range(8):
        I(f"buffer_load_dwordx4 v{10 + (i & 1)}, s[48:51], s64 offen nt lds")
        if i != 7:
            I("s_add_u32 m0, m0, 1024")
            I("s_add_u32 s64, s64, 32768")
    c("w_o half rows: 2 rows x 512B per instr")
    I("v_lshrrev_b32 v12, 5, v1")
    I("v_and_b32 v13, 31, v1")
    I("v_lshlrev_b32 v14, 1, v12")
    I("v_xor_b32 v13, v13, v14")
    I("v_lshlrev_b32 v13, 4, v13")
    I("v_lshl_add_u32 v13, v12, 10, v13")
    for q in range(4):
        I(f"v_xor_b32 v{20+q}, {q*64}, v13")
    I("s_lshl_b32 s64, s16, 17")
    I("s_lshl_b32 s65, s19, 15")
    I("s_add_u32 s64, s64, s65")
    I("s_lshl_b32 s65, s20, 9")
    I("s_add_u32 s64, s64, s65")
    I("s_lshl_b32 s65, s19, 14")
    I("s_mov_b32 m0, s65")
    I("s_nop 0")
    for i in range(16):
        I(f"buffer_load_dwordx4 v{20 + (i & 3)}, s[52:55], s64 offen nt lds")
        if i != 15:
            I("s_add_u32 m0, m0, 1024")
            I("s_add_u32 s64, s64, 2048")
    c("w_down rows 16t + 4w + 2n + rsub, half nh")
    I("v_and_b32 v15, 31, v1")
    I("v_lshlrev_b32 v15, 4, v15")
    I("v_lshl_add_u32 v15, v12, 10, v15")
    I("s_lshl_b32 s64, s21, 14")
    I("s_lshl_b32 s65, s19, 12")
    I("s_add_u32 s64, s64, s65")
    I("s_lshl_b32 s65, s20, 9")
    I("s_add_u32 s64, s64, s65")
    for n in range(2):
        I(f"buffer_load_dwordx4 v[{128+4*n}:{131+4*n}], v15, s[56:59], s64 offen offset:{n*2048} nt")
    I("v_lshrrev_b32 v50, 2, v3")
    I("v_lshl_add_u32 v51, v2, 2, v50")
    I("v_and_b32 v52, 7, v51")
    c("lds addr for w_down: row=4w+2n+rsub ; (row&7) = 4(w&1)+2n+rsub")
    I("v_and_b32 v57, 31, v1")
    I("v_xor_b32 v57, v57, v14")
    I("s_and_b32 s64, s19, 1")
    I("s_lshl_b32 s64, s64, 3")
    I("v_xor_b32 v57, s64, v57")
    I("v_lshlrev_b32 v57, 4, v57")
    I("v_lshl_add_u32 v57, v12, 9, v57")
    I("s_lshl_b32 s64, s19, 11")
    I(f"s_add_u32 s64, s64, {WUV}")
    I("v_add_u32 v57, s64, v57")
    I("v_xor_b32 v58, 64, v57")
    I("s_waitcnt vmcnt(18)")
    I("s_barrier")
    I("s_waitcnt vmcnt(0)")
    I("s_barrier")
    for n in range(2):
        I(f"ds_write_b128 v{57+n}, v[{128+4*n}:{131+4*n}] offset:{n*1024}")
    c("==== o-proj on 8 waves: 32 cols each")
    e("K3_O:")
    I(f"v_mul_u32_u24 v49, {CXS}, v48")
    I("v_lshl_add_u32 v49, v2, 3, v49")
    I(f"v_add_u32 v49, {CX}, v49")
    for ks in range(4):
        I(f"ds_read2_b64 v[{64+4*ks}:{67+4*ks}], v49 offset0:{ks*8} offset1:{ks*8+4}")
    I("v_lshlrev_b32 v54, 9, v51")
    I("v_lshl_add_u32 v54, v52, 5, v54")
    I("v_and_b32 v55, 3, v3")
    I("v_lshl_add_u32 v54, v55, 3, v54")
    I("s_lshr_b32 s64, s18, 2")
    I("s_lshl_b32 s64, s64, 8")
    I("v_add_u32 v54, s64, v54")
    I("s_and_b32 s64, s18, 3")
    I("s_lshl_b32 s64, s64, 6")
    I("v_xor_b32 v100, s64, v54")
    I("v_xor_b32 v101, 32, v100")
    for r in range(8):
        I(f"v_mov_b32 v{160+r}, 0")
    for ks in range(4):
        for nt in range(2):
            d = 192 + (ks * 2 + nt) * 4
            I(f"ds_read_b64_tr_b16 v[{d}:{d+1}], v{100+nt} offset:{ks*16384}")
            I(f"ds_read_b64_tr_b16 v[{d+2}:{d+3}], v{100+nt} offset:{ks*16384+8192}")
    for ks in range(4):
        for nt in range(2):
            d = 192 + (ks * 2 + nt) * 4
            I(f"s_waitcnt lgkmcnt({14-2*(ks*2+nt)})")
            I(f"v_mfma_f32_16x16x32_bf16 v[{160+4*nt}:{163+4*nt}], v[{64+4*ks}:{67+4*ks}], v[{d}:{d+3}], v[{160+4*nt}:{163+4*nt}]")
    I("s_cmp_ge_u32 s21, 86")
    I("s_cbranch_scc1 K3_NOFFN2")
    I("s_barrier")
    for nt in range(2):
        I(f"v_add_u32 v{100+nt}, {WUV}, v{100+nt}")
    for nt in range(2):
        d = 192 + nt * 2
        I(f"ds_read_b64_tr_b16 v[{d}:{d+1}], v{100+nt}")
    I("s_waitcnt lgkmcnt(0)")
    for nt in range(2):
        d = 192 + nt * 2
        I(f"v_mfma_f32_16x16x16_bf16 v[{160+4*nt}:{163+4*nt}], v[144:145], v[{d}:{d+1}], v[{160+4*nt}:{163+4*nt}]")
    e("K3_NOFFN2:")
    I("v_lshlrev_b32 v60, 12, v2")
    I("v_lshl_add_u32 v60, v3, 2, v60")
    I("v_cmp_lt_u32 vcc, 1, v2")
    I("v_mov_b32 v61, 0x7f000000")
    I("s_lshl_b32 s64, s2, 13")
    I("s_lshl_b32 s65, s18, 7")
    I("v_cndmask_b32 v60, v60, v61, vcc")
    I("s_add_u32 s64, s64, s65")
    I(f"s_add_u32 s64, s64, {OUTP}")
    I("s_nop 7")
    for nt in range(2):
        for r in range(4):
            I(f"buffer_store_dword v{160+4*nt+r}, v60, s[40:43], s64 offen offset:{r*1024+nt*64}{OST}")
    ht(2, 1, "f")
    if "TS" in FL:
        I("s_waitcnt vmcnt(0)")
        I("s_cmp_ge_u32 s18, 4")
        I("s_cbranch_scc1 K3_END")
        ts(2, 3)
    e("K3_END:")
    I("s_endpgm")

def k4():
    kstart("k4_kernel")
    I("s_cmp_ge_u32 s2, 64")
    I("s_cbranch_scc1 K4_END")
    I("s_load_dwordx2 s[4:5], s[0:1], 0")
    I("s_load_dwordx2 s[8:9], s[0:1], 80")
    I("s_load_dwordx2 s[6:7], s[0:1], 96")
    I("v_and_b32 v1, 15, v0")
    I("v_lshrrev_b32 v2, 4, v0")
    I("v_lshrrev_b32 v4, 6, v0")
    I("v_lshlrev_b32 v3, 16, v2")
    I("v_readfirstlane_b32 s18, v4")
    I("v_lshl_add_u32 v3, v1, 4, v3")
    I("s_lshr_b32 s16, s2, 3")
    I("s_lshl_b32 s16, s16, 10")
    I("s_and_b32 s19, s2, 3")
    I("s_lshl_b32 s19, s19, 8")
    I("s_add_u32 s16, s16, s19")
    I("s_bfe_u32 s19, s2, 0x10002")
    I("s_lshl_b32 s19, s19, 20")
    I("s_add_u32 s16, s16, s19")
    I("s_waitcnt lgkmcnt(0)")
    srd(20, 4, 5, 8192)
    srd(24, 8, 9, 8192)
    srd(40, 6, 7, WSSZ)
    ts(3, 0, r=76)
    if "HT" in FL:
        I("s_memrealtime s[92:93]")
    I(f"s_add_u32 s44, s16, {OUTP}")
    for k in range(8):
        I(f"buffer_load_dwordx4 v[{8+4*k}:{11+4*k}], v3, s[40:43], s44 offen")
        if k != 7: I("s_add_u32 s44, s44, 8192")
    I("v_lshlrev_b32 v4, 3, v1")
    I("s_lshl_b32 s17, s2, 7")
    I("buffer_load_dwordx2 v[72:73], v4, s[20:23], s17 offen")
    I("s_waitcnt vmcnt(1)")
    for k in range(1, 8):
        for q in range(4):
            I(f"v_add_f32 v{8+q}, v{8+q}, v{8+4*k+q}")
    for q in range(4):
        I(f"v_mov_b32 v{12+q}, v{8+q}")
    I("s_nop 1")
    for q in range(4):
        I(f"v_permlane16_swap_b32 v{8+q}, v{12+q}")
    I("s_nop 1")
    for q in range(4):
        I(f"v_add_f32 v{8+q}, v{8+q}, v{12+q}")
    for q in range(4):
        I(f"v_mov_b32 v{12+q}, v{8+q}")
    I("s_nop 1")
    for q in range(4):
        I(f"v_permlane32_swap_b32 v{8+q}, v{12+q}")
    I("s_nop 1")
    for q in range(4):
        I(f"v_add_f32 v{8+q}, v{8+q}, v{12+q}")
    I("v_lshlrev_b32 v5, 4, v0")
    I("ds_write_b128 v5, v[8:11]")
    I("s_waitcnt lgkmcnt(0)")
    I("s_barrier")
    I("v_lshlrev_b32 v5, 4, v1")
    for w in range(4):
        I(f"ds_read_b128 v[{16+4*w}:{19+4*w}], v5 offset:{w*1024}")
    I("s_waitcnt vmcnt(0) lgkmcnt(0)")
    for q in range(4):
        I(f"v_add_f32 v{16+q}, v{16+q}, v{20+q}")
        I(f"v_add_f32 v{24+q}, v{24+q}, v{28+q}")
        I(f"v_add_f32 v{16+q}, v{16+q}, v{24+q}")
    I("v_lshlrev_b32 v20, 16, v72")
    I("v_and_b32 v21, 0xffff0000, v72")
    I("v_lshlrev_b32 v22, 16, v73")
    I("v_and_b32 v23, 0xffff0000, v73")
    for q in range(4):
        I(f"v_add_f32 v{16+q}, v{16+q}, v{20+q}")
    I("v_cvt_pk_bf16_f32 v24, v16, v17")
    I("v_cvt_pk_bf16_f32 v25, v18, v19")
    I("v_cmp_lt_u32 vcc, 15, v0")
    I("v_mov_b32 v6, 0x7f000000")
    I("s_nop 1")
    I("v_cndmask_b32 v4, v4, v6, vcc")
    I("buffer_store_dwordx2 v[24:25], v4, s[24:27], s17 offen")
    if "HT" in FL:
        I("s_cmp_lg_u32 s2, 5")
        I("s_cbranch_scc1 K4_END")
        I("s_load_dwordx2 s[10:11], s[0:1], 88")
        I("s_memrealtime s[90:91]")
        I("s_waitcnt lgkmcnt(0)")
        I("s_sub_u32 s10, s10, 0")
        I("s_subb_u32 s11, s11, 0")
        srd(28, 10, 11, 256)
        I("v_lshlrev_b32 v30, 2, v0")
        I(f"v_add_u32 v31, {TSOFF + 0x40000}, v30")
        I("buffer_load_dword v32, v31, s[40:43], 0 offen sc1")
        I("s_waitcnt vmcnt(0)")
        I("v_mov_b32 v33, s92")
        I("v_cmp_eq_u32 vcc, 6, v0")
        I("s_nop 1")
        I("v_cndmask_b32 v32, v32, v33, vcc")
        I("v_mov_b32 v33, s90")
        I("v_cmp_eq_u32 vcc, 7, v0")
        I("s_nop 1")
        I("v_cndmask_b32 v32, v32, v33, vcc")
        I("v_cmp_gt_u32 vcc, 8, v0")
        I("s_and_saveexec_b64 s[86:87], vcc")
        I("buffer_store_dword v32, v30, s[28:31], 0 offen")
    if "TS" in FL:
        I("s_waitcnt vmcnt(0)")
        ts(3, 3, r=76)
    e("K4_END:")
    I("s_endpgm")
    e("KALL_END:")

e("; @launch kernel=k1_kernel grid=(256,1,1) block=(512,1,1) lds=160256")
e("; @launch kernel=k2_kernel grid=(256,1,1) block=(512,1,1) lds=163840")
e("; @launch kernel=k3_kernel grid=(256,1,1) block=(512,1,1) lds=106496")
e("; @launch kernel=k4_kernel grid=(64,1,1) block=(256,1,1) lds=4096")
e('.amdgcn_target "amdgcn-amd-amdhsa--gfx950"')
e(".text")
k1(); k2(); k3(); k4()
e('.section .rodata,"a"')
for n, v in (("k1_kernel", 256), ("k2_kernel", 256), ("k3_kernel", 256), ("k4_kernel", 80)):
    e(".p2align 6")
    kdesc(n, v)
if "NONT" in FL:
    L = [x.replace(" nt lds", " lds") if x.endswith(" nt lds") else (x[:-3] if x.endswith(" nt") else x) for x in L]
open(sys.argv[1], "w").write("\n".join(L) + "\n")
```

```python
import sys, os, struct
FL = os.environ.get("FL", "").split(",")
L = []
def e(s=""): L.append(s)
def c(s): L.append("    ; " + s)
def I(s): L.append("    " + s)
def f2u(x): return struct.unpack("<I", struct.pack("<f", x))[0]

QABS = 0x0
HH   = 0x40000
STATS= 0x50000
OPB  = 0x100000
OUTP = 0x1100000
TSOFF= 0x1500000
WSSZ = 0x1600000
SC = (128 ** -0.5) * 1.4426950408889634
TSX = 1 if "TS" in FL else 0
PST = os.environ.get("PST", " sc1")
PFN = int(os.environ.get("PFN", "32"))
PFT = int(os.environ.get("PFT", "12"))
K2NT = os.environ.get("K2NT", " nt")
WONT = os.environ.get("WONT", " nt")
OST = os.environ.get("OST", "")
PFD = int(os.environ.get("PFD", "1"))
PFX = int(os.environ.get("PFX", "0"))
PFNF = int(os.environ.get("PFNF", "8"))
FNT = os.environ.get("FNT", " nt")

def srd(d, lo, hi, nbytes):
    I(f"s_mov_b32 s{d}, s{lo}")
    I(f"s_and_b32 s{d+1}, s{hi}, 0xffff")
    I(f"s_mov_b32 s{d+2}, {nbytes}")
    I(f"s_mov_b32 s{d+3}, 0x00020000")

def kstart(name):
    e(f".globl {name}"); e(".p2align 8"); e(f".type {name},@function"); e(f"{name}:")

def kdesc(name, vgpr, sgpr=102):
    e(f".amdhsa_kernel {name}")
    e(f"  .amdhsa_next_free_vgpr {vgpr}")
    e(f"  .amdhsa_next_free_sgpr {sgpr}")
    e(f"  .amdhsa_accum_offset {(vgpr+3)//4*4}")
    e("  .amdhsa_group_segment_fixed_size 0")
    e("  .amdhsa_kernarg_size 104")
    e("  .amdhsa_user_sgpr_count 2")
    e("  .amdhsa_user_sgpr_kernarg_segment_ptr 1")
    e("  .amdhsa_system_sgpr_workgroup_id_x 1")
    e(".end_amdhsa_kernel")

def ts(kid, idx, r=250):
    if "TS" not in FL: return
    I("s_memrealtime s[90:91]")
    I("s_waitcnt lgkmcnt(0)")
    I(f"v_mov_b32 v{r}, s90")
    I("s_lshl_b32 s92, s2, 7")
    I("s_lshl_b32 s93, s18, 5")
    I("s_add_u32 s92, s92, s93")
    I(f"s_add_u32 s92, s92, {TSOFF + kid*65536 + idx*4}")
    I(f"v_and_b32 v{r+2}, 63, v0")
    I(f"v_cmp_eq_u32 vcc, 0, v{r+2}")
    I(f"v_mov_b32 v{r+1}, 0x7f000000")
    I("s_nop 1")
    I(f"v_cndmask_b32 v{r+1}, v{r+1}, 0, vcc")
    I(f"buffer_store_dword v{r}, v{r+1}, s[40:43], s92 offen")

def ht(kid, idx, lab):
    if "HT" not in FL: return
    I("s_cmp_lg_u32 s2, 5")
    I(f"s_cbranch_scc1 HT_{lab}")
    I("s_cmp_lg_u32 s18, 0")
    I(f"s_cbranch_scc1 HT_{lab}")
    I("s_memrealtime s[90:91]")
    I("s_waitcnt lgkmcnt(0)")
    I("v_mov_b32 v250, s90")
    I(f"v_mov_b32 v251, {TSOFF + 0x40000 + kid*8 + idx*4}")
    I("buffer_store_dword v250, v251, s[40:43], 0 offen sc1")
    I("s_waitcnt vmcnt(0)")
    e(f"HT_{lab}:")

def xor32(v, tmp, op):
    I(f"v_mov_b32 v{tmp}, v{v}")
    I("s_nop 1")
    I(f"v_permlane32_swap_b32 v{v}, v{tmp}")
    I("s_nop 1")
    I(f"{op} v{v}, v{v}, v{tmp}")

def dppred(v, tmp, op, width):
    for m in ("quad_perm:[1,0,3,2]", "quad_perm:[2,3,0,1]", "row_half_mirror", "row_mirror"):
        I("s_nop 1")
        I(f"{op}_dpp v{v}, v{v}, v{v} {m} row_mask:0xf bank_mask:0xf")
    if width >= 32:
        I(f"v_mov_b32 v{tmp}, v{v}")
        I("s_nop 1")
        I(f"v_permlane16_swap_b32 v{v}, v{tmp}")
        I("s_nop 1")
        I(f"{op} v{v}, v{v}, v{tmp}")
    if width >= 64:
        xor32(v, tmp, op)

def common_ids():
    I("s_and_b32 s16, s2, 31")
    I("s_lshr_b32 s17, s2, 5")
    I("v_lshrrev_b32 v2, 6, v0")
    I("v_and_b32 v1, 63, v0")
    I("s_nop 0")
    I("v_readfirstlane_b32 s18, v2")
    I("v_lshrrev_b32 v2, 4, v1")
    I("v_and_b32 v3, 15, v1")
    I("s_mov_b32 s19, s18")

def k1():
    XN = 131072; XNS = 1040; QB = XN + 8 * XNS; QS = 272; FST = QB + 16 * QS; FST = (FST + 255) // 256 * 256
    assert FST + 16384 <= 163840
    PF0 = int(os.environ.get("PF0", "0")); PF1 = int(os.environ.get("PF1", "0")); PF2 = int(os.environ.get("PF2", "0"))
    kstart("k1_kernel")
    I("s_cmp_ge_u32 s2, 256")
    I("s_cbranch_scc1 K1_END")
    I("s_load_dwordx4 s[4:7], s[0:1], 0")
    I("s_load_dwordx4 s[8:11], s[0:1], 16")
    I("s_load_dwordx4 s[68:71], s[0:1], 56")
    I("s_load_dwordx2 s[78:79], s[0:1], 96")
    if "TLB" in FL:
        I("s_load_dwordx4 s[12:15], s[0:1], 32")
        I("s_load_dwordx4 s[80:83], s[0:1], 72")
    common_ids()
    I("s_and_b32 s19, s18, 3")
    I("v_lshlrev_b32 v4, 4, v1")
    I("v_lshrrev_b32 v28, 2, v3")
    I("v_lshl_add_u32 v28, v2, 2, v28")
    I("v_and_b32 v29, 7, v28")
    I("v_and_b32 v30, 3, v3")
    I("v_and_b32 v31, 7, v1")
    I(f"v_mul_u32_u24 v31, {XNS}, v31")
    I("v_lshl_add_u32 v31, v2, 3, v31")
    I("s_lshl_b32 s64, s19, 8")
    I(f"s_add_u32 s64, s64, {XN}")
    I("v_add_u32 v31, s64, v31")
    I("s_waitcnt lgkmcnt(0)")
    srd(20, 4, 5, 8192)
    srd(24, 8, 9, 4194304)
    srd(28, 10, 11, 4194304)
    srd(32, 68, 69, 1409024)
    srd(36, 70, 71, 1409024)
    srd(40, 78, 79, WSSZ)
    srd(44, 6, 7, 33554432)
    I("s_cmp_ge_u32 s18, 4")
    I("s_cbranch_scc1 K1_B")
    c("==== A waves")
    ht(0, 0, "a")
    ts(0, 0)
    I("v_lshlrev_b32 v6, 1, v2")
    I("v_xor_b32 v6, v6, v3")
    I("v_lshlrev_b32 v6, 4, v6")
    I("v_lshl_add_u32 v6, v2, 13, v6")
    I("v_xor_b32 v7, 0x80, v6")
    I("s_lshl_b32 s64, s19, 20")
    I("s_lshl_b32 s65, s16, 8")
    I("s_add_u32 s64, s64, s65")
    I("s_lshl_b32 s66, s19, 15")
    I("s_mov_b32 m0, s66")
    I("s_barrier")
    for i in range(32):
        I(f"buffer_load_dwordx4 v{6 + (i & 1)}, s[24:27], s64 offen nt lds")
        if i != 31:
            I("s_add_u32 m0, m0, 1024")
            I("s_add_u32 s64, s64, 32768")
    I("v_lshlrev_b32 v8, 13, v3")
    I("v_lshl_add_u32 v8, v2, 4, v8")
    I("s_lshl_b32 s64, s17, 6")
    I("s_lshl_b32 s66, s19, 4")
    I("s_add_u32 s64, s64, s66")
    I("s_lshl_b32 s64, s64, 13")
    I("s_add_u32 s64, s64, s65")
    for ks in range(4):
        I(f"buffer_load_dwordx4 v[{80+4*ks}:{83+4*ks}], v8, s[28:31], s64 offen offset:{ks*64} nt")
    c("addresses")
    I("v_and_b32 v70, 7, v1")
    I(f"v_mul_u32_u24 v70, {XNS}, v70")
    I("v_lshl_add_u32 v70, v2, 3, v70")
    I(f"v_add_u32 v70, {XN}, v70")
    I("s_lshl_b32 s64, s19, 1")
    I("v_xor_b32 v73, s64, v29")
    I("v_lshlrev_b32 v74, 8, v28")
    I("v_lshl_add_u32 v74, v73, 5, v74")
    I("v_lshl_add_u32 v74, v30, 3, v74")
    I("v_xor_b32 v75, 32, v74")
    I("v_add_u32 v76, 0x10000, v74")
    I("v_add_u32 v77, 0x10000, v75")
    I(f"v_mul_u32_u24 v24, {4*QS}, v2")
    I("v_lshl_add_u32 v24, v3, 1, v24")
    I("s_lshl_b32 s64, s19, 6")
    I(f"s_add_u32 s64, s64, {QB}")
    I("v_add_u32 v24, s64, v24")
    I(f"v_mul_u32_u24 v25, {QS}, v3")
    I("v_lshl_add_u32 v25, v2, 4, v25")
    I(f"v_add_u32 v25, {QB}, v25")
    I("v_lshlrev_b32 v26, 15, v3")
    I("v_lshl_add_u32 v26, v2, 3, v26")
    I("v_cmp_lt_u32 vcc, 7, v3")
    I("v_mov_b32 v27, 0x7f000000")
    I("s_lshl_b32 s70, s16, 10")
    I("s_lshl_b32 s65, s17, 7")
    I("v_cndmask_b32 v26, v26, v27, vcc")
    I("s_add_u32 s70, s70, s65")
    I("s_lshl_b32 s65, s19, 5")
    I("s_add_u32 s70, s70, s65")
    for r in range(12):
        I(f"v_mov_b32 v{8+r}, 0")
    I("s_waitcnt vmcnt(4)")
    I("s_barrier")
    ts(0, 1, r=120)
    for ch in range(4):
        for k4 in range(4):
            ks = ch * 4 + k4
            I(f"ds_read2_b64 v[{128+64*(ch&1)+4*k4}:{131+64*(ch&1)+4*k4}], v70 offset0:{ks*8} offset1:{ks*8+4}")
            for nt in range(2):
                base = (74 + nt) if ks < 8 else (76 + nt)
                off = (ks & 7) * 8192
                d = 144 + 64 * (ch & 1) + (k4 * 2 + nt) * 4
                I(f"ds_read_b64_tr_b16 v[{d}:{d+1}], v{base} offset:{off}")
                I(f"ds_read_b64_tr_b16 v[{d+2}:{d+3}], v{base} offset:{off+4096}")
            if k4 == 2: I("s_waitcnt lgkmcnt(10)")
        for k4 in range(4):
            I(f"s_waitcnt lgkmcnt({5*(3-k4)})")
            for nt in range(2):
                d = 144 + 64 * (ch & 1) + (k4 * 2 + nt) * 4
                a = 128 + 64 * (ch & 1) + 4 * k4
                I(f"v_mfma_f32_16x16x32_bf16 v[{8+4*nt}:{11+4*nt}], v[{a}:{a+3}], v[{d}:{d+3}], v[{8+4*nt}:{11+4*nt}]")
    ts(0, 5, r=120)
    I("s_nop 7")
    for nt in range(2):
        I(f"v_cvt_pk_bf16_f32 v{20+2*nt}, v{8+4*nt}, v{9+4*nt}")
        I(f"v_cvt_pk_bf16_f32 v{21+2*nt}, v{10+4*nt}, v{11+4*nt}")
    for nt in range(2):
        I(f"ds_write_b16 v24, v{20+2*nt} offset:{nt*32}")
        I(f"ds_write_b16_d16_hi v24, v{20+2*nt} offset:{nt*32+QS}")
        I(f"ds_write_b16 v24, v{21+2*nt} offset:{nt*32+2*QS}")
        I(f"ds_write_b16_d16_hi v24, v{21+2*nt} offset:{nt*32+3*QS}")
    I("s_waitcnt lgkmcnt(0)")
    I("s_barrier")
    for ks in range(4):
        I(f"ds_read_b128 v[{128+4*ks}:{131+4*ks}], v25 offset:{ks*64}")
    I("s_waitcnt vmcnt(0) lgkmcnt(0)")
    for ks in range(4):
        I(f"v_mfma_f32_16x16x32_bf16 v[16:19], v[{80+4*ks}:{83+4*ks}], v[{128+4*ks}:{131+4*ks}], v[16:19]")
    I("s_nop 7")
    I("v_cvt_pk_bf16_f32 v12, v16, v17")
    I("v_cvt_pk_bf16_f32 v13, v18, v19")
    I("buffer_store_dwordx2 v[12:13], v26, s[40:43], s70 offen")
    ht(0, 1, "b")
    if "TS" in FL:
        I("s_waitcnt vmcnt(0)")
        ts(0, 2)
    I("s_branch K1_END")
    c("==== B waves: LN, FFN, prefetch")
    e("K1_B:")
    if "CPF" in FL:
        c("touch the code of the later kernels so that their instruction fetch hits L2")
        I("s_getpc_b64 s[84:85]")
        e("K1_PC:")
        I("s_add_u32 s84, s84, k2_kernel-K1_PC")
        I("s_addc_u32 s85, s85, 0")
        I("v_and_b32 v6, 255, v0")
        I("v_lshlrev_b32 v6, 6, v6")
        I("v_cmp_gt_u32 vcc, KALL_END-k2_kernel, v6")
        I("s_and_saveexec_b64 s[86:87], vcc")
        I("s_cbranch_execz K1_PCD")
        I("global_load_dword v7, v6, s[84:85]")
        e("K1_PCD:")
        I("s_mov_b64 exec, s[86:87]")
    I("s_lshl_b32 s64, s19, 11")
    I("v_lshlrev_b32 v5, 5, v1")
    I("buffer_load_dwordx4 v[48:51], v5, s[20:23], s64 offen")
    I("buffer_load_dwordx4 v[52:55], v5, s[20:23], s64 offen offset:16")
    I("s_and_b32 s74, s2, 7")
    I("s_mul_i32 s74, s74, 11")
    I("s_lshr_b32 s75, s2, 3")
    I("s_add_u32 s74, s74, s75")
    I("s_cmp_ge_u32 s2, 88")
    I("s_cselect_b32 s74, 0x1000, s74")
    c("ffn loads: for non-ffn wgs use an out-of-range offset (returns 0 quickly)")
    I("v_lshrrev_b32 v24, 1, v1")
    I("v_mul_u32_u24 v24, 2752, v24")
    I("v_and_b32 v25, 1, v1")
    I("v_lshl_add_u32 v24, v25, 4, v24")
    I(f"s_mul_i32 s64, s19, {128*2752}")
    I("s_lshl_b32 s65, s74, 5")
    I("s_add_u32 s64, s64, s65")
    I("s_cmp_ge_u32 s74, 86")
    I("s_cselect_b32 s64, 0x40000000, s64")
    for n in range(4):
        I(f"buffer_load_dwordx4 v[{96+4*n}:{99+4*n}], v24, s[32:35], s64 offen{FNT}")
        I(f"buffer_load_dwordx4 v[{112+4*n}:{115+4*n}], v24, s[36:39], s64 offen{FNT}")
        if n != 3: I(f"s_add_u32 s64, s64, {32*2752}")
    I("s_barrier")
    I("s_lshl_b32 s76, s2, 17")
    I("s_lshl_b32 s64, s19, 15")
    I("s_add_u32 s76, s76, s64")
    for n in range(PF0):
        I(f"buffer_load_dwordx4 v[{160+4*(n%16)}:{163+4*(n%16)}], v4, s[44:47], s76 offen nt")
        I("s_add_u32 s76, s76, 1024")
    I(f"s_waitcnt vmcnt({8+PF0})")
    for k in range(8):
        I(f"v_lshlrev_b32 v{56+2*k}, 16, v{48+k}")
        I(f"v_and_b32 v{57+2*k}, 0xffff0000, v{48+k}")
    I("v_add_f32 v8, v56, v57"); I("v_add_f32 v9, v58, v59"); I("v_add_f32 v10, v60, v61"); I("v_add_f32 v11, v62, v63")
    I("v_add_f32 v8, v8, v64"); I("v_add_f32 v9, v9, v65"); I("v_add_f32 v10, v10, v66"); I("v_add_f32 v11, v11, v67")
    I("v_add_f32 v8, v8, v68"); I("v_add_f32 v9, v9, v69"); I("v_add_f32 v10, v10, v70"); I("v_add_f32 v11, v11, v71")
    I("v_add_f32 v8, v8, v9"); I("v_add_f32 v10, v10, v11"); I("v_add_f32 v8, v8, v10")
    dppred(8, 9, "v_add_f32", 32)
    I("v_mul_f32 v8, 0x3b000000, v8")
    for k in range(16):
        I(f"v_sub_f32 v{72+k}, v{56+k}, v8")
    I("v_mul_f32 v9, v72, v72"); I("v_mul_f32 v10, v73, v73"); I("v_mul_f32 v11, v74, v74"); I("v_mul_f32 v12, v75, v75")
    for k in range(4, 16, 4):
        for q in range(4):
            I(f"v_fmac_f32 v{9+q}, v{72+k+q}, v{72+k+q}")
    I("v_add_f32 v9, v9, v10"); I("v_add_f32 v11, v11, v12"); I("v_add_f32 v12, v9, v11")
    dppred(12, 9, "v_add_f32", 32)
    I("v_mul_f32 v12, 0x3b000000, v12")
    I("v_cvt_pk_bf16_f32 v9, v8, v12")
    I("v_lshlrev_b32 v8, 16, v9")
    I("v_and_b32 v12, 0xffff0000, v9")
    I(f"v_add_f32 v12, {f2u(1e-5):#x}, v12")
    I("v_cvt_pk_bf16_f32 v12, v12, v12")
    I("v_lshlrev_b32 v12, 16, v12")
    I("v_sqrt_f32 v12, v12")
    I("s_nop 0")
    I("v_cvt_pk_bf16_f32 v12, v12, v12")
    I("v_lshlrev_b32 v12, 16, v12")
    I("v_rcp_f32 v9, v12")
    for k in range(16):
        I(f"v_sub_f32 v{56+k}, v{56+k}, v8")
    for k in range(8):
        I(f"v_cvt_pk_bf16_f32 v{72+k}, v{56+2*k}, v{57+2*k}")
    for k in range(8):
        I(f"v_lshlrev_b32 v{56+2*k}, 16, v{72+k}")
        I(f"v_and_b32 v{57+2*k}, 0xffff0000, v{72+k}")
    for k in range(16):
        I(f"v_mul_f32 v{56+k}, v{56+k}, v9")
    for k in range(8):
        I(f"v_cvt_pk_bf16_f32 v{72+k}, v{56+2*k}, v{57+2*k}")
    I("v_lshrrev_b32 v10, 5, v1")
    I("s_lshl_b32 s64, s19, 1")
    I("v_add_u32 v10, s64, v10")
    I(f"v_mul_u32_u24 v10, {XNS}, v10")
    I("v_and_b32 v11, 31, v1")
    I("v_lshl_add_u32 v10, v11, 5, v10")
    I(f"v_add_u32 v10, {XN}, v10")
    I("ds_write_b128 v10, v[72:75]")
    I("ds_write_b128 v10, v[76:79] offset:16")
    if "TLB" in FL:
        c("touch pages of buffers used by later kernels (TLB / cache warm-up), wave 7 only")
        I("s_cmp_lg_u32 s18, 7")
        I("s_cbranch_scc1 K1_NOTLB")
        srd(48, 12, 13, 4194304)
        srd(52, 14, 15, 4194304)
        srd(56, 80, 81, 1409024)
        srd(60, 82, 83, 8192)
        I("v_lshlrev_b32 v20, 16, v1")
        I("buffer_load_dword v21, v20, s[48:51], 0 offen")
        I("buffer_load_dword v21, v20, s[52:55], 0 offen")
        I("buffer_load_dword v21, v20, s[56:59], 0 offen")
        I("buffer_load_dword v21, v20, s[60:63], 0 offen")
        I("v_mul_u32_u24 v20, 0x58000, v1")
        I("buffer_load_dword v21, v20, s[40:43], 0 offen")
        I("s_waitcnt vmcnt(0)")
        e("K1_NOTLB:")
    c("prefetch part 1 (no waits)")
    for n in range(PF1):
        I(f"buffer_load_dwordx4 v[{160+4*(n%16)}:{163+4*(n%16)}], v4, s[44:47], s76 offen nt")
        I("s_add_u32 s76, s76, 1024")
    I("s_waitcnt lgkmcnt(0)")
    I("s_barrier")
    I("s_cmp_ge_u32 s74, 86")
    I("s_cbranch_scc1 K1_BNOF")
    for ks in range(4):
        I(f"ds_read2_b64 v[{32+4*ks}:{35+4*ks}], v31 offset0:{ks*8} offset1:{ks*8+4}")
    I("s_lshl_b32 s66, s19, 12")
    I(f"s_add_u32 s66, s66, {FST}")
    I("v_add_u32 v25, s66, v4")
    I("v_lshlrev_b32 v26, 5, v28")
    I("v_lshl_add_u32 v26, v30, 3, v26")
    I("v_add_u32 v26, s66, v26")
    for r in range(8):
        I(f"v_mov_b32 v{8+r}, 0")
    I(f"s_waitcnt vmcnt({PF1+PF0})")
    for m in range(2):
        for n in range(4):
            I(f"ds_write_b128 v25, v[{96+16*m+4*n}:{99+16*m+4*n}] offset:{n*1024}")
        for ks in range(4):
            d = 128 + (m * 4 + ks) * 4
            I(f"ds_read_b64_tr_b16 v[{d}:{d+1}], v26 offset:{ks*1024}")
            I(f"ds_read_b64_tr_b16 v[{d+2}:{d+3}], v26 offset:{ks*1024+512}")
    I("s_waitcnt lgkmcnt(0)")
    for m in range(2):
        for ks in range(4):
            d = 128 + (m * 4 + ks) * 4
            I(f"v_mfma_f32_16x16x32_bf16 v[{8+4*m}:{11+4*m}], v[{32+4*ks}:{35+4*ks}], v[{d}:{d+3}], v[{8+4*m}:{11+4*m}]")
    I("v_lshlrev_b32 v17, 5, v1")
    I("v_add_u32 v18, s66, v17")
    I(f"v_add_u32 v17, {FST}, v17")
    I("s_nop 7")
    I("ds_write_b128 v18, v[8:11]")
    I("ds_write_b128 v18, v[12:15] offset:16")
    e("K1_BNOF:")
    for n in range(PF2):
        I(f"buffer_load_dwordx4 v[{160+4*(n%16)}:{163+4*(n%16)}], v4, s[44:47], s76 offen nt")
        I("s_add_u32 s76, s76, 1024")
    I("s_waitcnt lgkmcnt(0)")
    I("s_barrier")
    I("s_cmp_ge_u32 s74, 86")
    I("s_cbranch_scc1 K1_BEND")
    I("s_cmp_lg_u32 s18, 4")
    I("s_cbranch_scc1 K1_BEND")
    for w in range(1, 4):
        I(f"ds_read_b128 v[{96+8*w}:{99+8*w}], v17 offset:{w*4096}")
        I(f"ds_read_b128 v[{100+8*w}:{103+8*w}], v17 offset:{w*4096+16}")
    I("s_waitcnt lgkmcnt(0)")
    for w in range(1, 4):
        for r in range(8):
            I(f"v_add_f32 v{8+r}, v{8+r}, v{96+8*w+r}")
    for r in range(4):
        I(f"v_cvt_pk_bf16_f32 v{96+r}, v{8+r}, v{12+r}")
    for r in range(4):
        I(f"v_lshlrev_b32 v{8+r}, 16, v{96+r}")
        I(f"v_and_b32 v{12+r}, 0xffff0000, v{96+r}")
    I(f"s_mov_b32 s64, {f2u(0.044715):#x}")
    I(f"s_mov_b32 s65, {f2u(-2.0 * 0.7978845608028654 * 1.4426950408889634):#x}")
    for r in range(4):
        I(f"v_mul_f32 v{96+r}, v{8+r}, v{8+r}")
        I(f"v_mul_f32 v{96+r}, s64, v{96+r}")
        I(f"v_fma_f32 v{96+r}, v{96+r}, v{8+r}, v{8+r}")
        I(f"v_mul_f32 v{96+r}, s65, v{96+r}")
        I(f"v_exp_f32 v{96+r}, v{96+r}")
        I("s_nop 0")
        I(f"v_add_f32 v{96+r}, 1.0, v{96+r}")
        I(f"v_rcp_f32 v{96+r}, v{96+r}")
        I("s_nop 0")
        I(f"v_mul_f32 v{96+r}, v{96+r}, v{8+r}")
    for r in range(4):
        I(f"v_cvt_pk_bf16_f32 v{96+r}, v{96+r}, v{96+r}")
        I(f"v_lshlrev_b32 v{96+r}, 16, v{96+r}")
        I(f"v_mul_f32 v{96+r}, v{96+r}, v{12+r}")
        I(f"v_cvt_pk_bf16_f32 v{96+r}, v{96+r}, v{96+r}")
    I("v_mul_u32_u24 v100, 11008, v2")
    I("v_lshl_add_u32 v100, v3, 1, v100")
    I("v_cmp_lt_u32 vcc, 1, v2")
    I("v_mov_b32 v101, 0x7f000000")
    I("s_lshl_b32 s64, s74, 5")
    I(f"s_add_u32 s64, s64, {HH}")
    I("v_cndmask_b32 v100, v100, v101, vcc")
    I("v_add_u32 v101, 5504, v100")
    for r in range(4):
        I(f"buffer_store_short v{96+r}, v{100+(r>>1)}, s[40:43], s64 offen offset:{(r&1)*2752}")
    e("K1_BEND:")
    if "NOWAITPF" not in FL: I("s_waitcnt vmcnt(0)")
    if "TS" in FL:
        I("s_sub_u32 s18, s18, 4")
        I("s_add_u32 s2, s2, 256")
        ts(0, 4, r=120)
    e("K1_END:")
    I("s_endpgm")

def k2():
    STG = 131072
    PB = STG; MX = STG + 8192; LB = MX + 512
    kstart("k2_kernel")
    I("s_cmp_ge_u32 s2, 256")
    I("s_cbranch_scc1 K2_END")
    I("s_load_dwordx2 s[4:5], s[0:1], 8")
    I("s_load_dwordx4 s[12:15], s[0:1], 32")
    I("s_load_dwordx2 s[72:73], s[0:1], 72")
    I("s_load_dwordx2 s[78:79], s[0:1], 96")
    common_ids()
    I("s_and_b32 s19, s18, 3")
    I("v_lshlrev_b32 v4, 4, v1")
    I("v_and_b32 v8, 31, v1")
    I("v_lshrrev_b32 v9, 5, v1")
    I("s_waitcnt lgkmcnt(0)")
    srd(40, 78, 79, WSSZ)
    srd(44, 4, 5, 33554432)
    srd(48, 12, 13, 4194304)
    srd(52, 14, 15, 4194304)
    srd(56, 72, 73, 1409024)
    I("s_cmp_ge_u32 s18, 4")
    I("s_cbranch_scc1 K2_B")
    c("==== A waves: c_kv DMA (window major), QK")
    ht(1, 0, "c")
    ts(1, 0)
    if "K2ROW" in FL:
        I("s_lshl_b32 s64, s2, 17")
        I("s_lshl_b32 s65, s19, 15")
        I("s_add_u32 s64, s64, s65")
        I("s_mov_b32 m0, s65")
        for kk in range(32):
            f = ((kk & 3) << 2) | ((kk >> 2) & 3)
            I(f"v_xor_b32 v{10 + (kk & 3)}, {f*16}, v4")
            I(f"buffer_load_dwordx4 v{10 + (kk & 3)}, s[44:47], s64 offen{K2NT} lds")
            if kk != 31:
                I("s_add_u32 m0, m0, 1024")
                I("s_add_u32 s64, s64, 1024")
    else:
        I("v_lshlrev_b32 v5, 2, v2")
        I("v_xor_b32 v5, v5, v3")
        I("v_lshlrev_b32 v5, 4, v5")
        I("v_lshl_add_u32 v5, v2, 10, v5")
        for q in range(4):
            I(f"v_xor_b32 v{10+q}, {q*16}, v5")
        I("s_lshl_b32 s64, s2, 17")
        I("s_lshl_b32 s65, s19, 15")
        I("s_add_u32 s64, s64, s65")
        I("s_lshl_b32 s65, s19, 13")
        for win in range(4):
            I(f"s_add_u32 s66, s64, {win*256}")
            I(f"s_add_u32 s67, s65, {win*32768}")
            I("s_mov_b32 m0, s67")
            I("s_nop 0")
            for kk in range(8):
                I(f"buffer_load_dwordx4 v{10+(kk&3)}, s[44:47], s66 offen{K2NT} lds")
                if kk != 7:
                    I("s_add_u32 m0, m0, 1024")
                    I("s_add_u32 s66, s66, 4096")
    c("Q frag read addrs")
    I("v_and_b32 v27, 15, v8")
    I("v_xor_b32 v27, v27, v9")
    I("v_lshlrev_b32 v27, 4, v27")
    I("v_lshl_add_u32 v27, v8, 10, v27")
    I(f"v_add_u32 v27, {STG}, v27")
    for q in range(8):
        I(f"v_xor_b32 v{40+q}, {q*32}, v27")
    c("QK addrs v[12:19]/v[20..27]")
    I("v_and_b32 v11, 3, v8")
    I("v_lshlrev_b32 v11, 2, v11")
    I("v_bfe_u32 v12, v8, 2, 2")
    I("v_or_b32 v11, v11, v12")
    I("v_xor_b32 v11, v11, v9")
    I("v_lshlrev_b32 v11, 4, v11")
    I(f"v_lshl_add_u32 v11, v8, {10 if 'K2ROW' in FL else 8}, v11")
    I("v_add_u32 v11, s65, v11")
    for q in range(8):
        I(f"v_xor_b32 v{48+q}, {q*32}, v11")
        I(f"v_add_u32 v{56+q}, 0x10000, v{48+q}")
    for r in range(16):
        I(f"v_mov_b32 v{20+r}, 0")
    I("s_barrier")
    for st in range(32):
        I(f"ds_read_b128 v[{64+4*st}:{67+4*st}], v{40+(st&7)} offset:{(st>>3)*256}")
        if st == 15: I("s_waitcnt lgkmcnt(0)")
    I("s_waitcnt lgkmcnt(0)")
    I("s_barrier")
    for win in range(4):
        if "K2ROW" in FL:
            if win == 0:
                I("s_waitcnt vmcnt(0) lgkmcnt(0)")
                ts(1, 1)
            for q in range(8):
                I(f"ds_read_b128 v[{192+4*q}:{195+4*q}], v{48+q} offset:{win*256}")
        else:
            I(f"s_waitcnt vmcnt({8*(3-win)}) lgkmcnt(0)")
            if win == 3: ts(1, 1)
            for q in range(8):
                a = (48 if win < 2 else 56) + q
                I(f"ds_read_b128 v[{192+4*q}:{195+4*q}], v{a} offset:{(win&1)*32768}")
        for q in range(8):
            st = win * 8 + q
            I(f"s_waitcnt lgkmcnt({7-q})")
            I(f"v_mfma_f32_32x32x16_bf16 v[20:35], v[{192+4*q}:{195+4*q}], v[{64+4*st}:{67+4*st}], v[20:35]")
    I("v_lshlrev_b32 v38, 4, v8")
    I("s_lshl_b32 s64, s19, 2")
    I(f"s_add_u32 s64, s64, {MX}")
    I("v_add_u32 v39, s64, v38")
    I("s_lshl_b32 s64, s19, 11")
    I(f"s_add_u32 s64, s64, {PB}")
    I("v_add_u32 v42, s64, v4")
    I("s_nop 7")
    I("v_max3_f32 v36, v20, v21, v22")
    for r in range(3, 15, 2):
        I(f"v_max3_f32 v36, v36, v{20+r}, v{21+r}")
    I("v_max_f32 v36, v36, v35")
    xor32(36, 37, "v_max_f32")
    I("ds_write_b32 v39, v36")
    I("s_waitcnt lgkmcnt(0)")
    I("s_barrier")
    I(f"v_add_u32 v40, {MX}, v38")
    I("ds_read_b128 v[44:47], v40")
    I(f"s_mov_b32 s64, {f2u(SC):#x}")
    I("s_waitcnt lgkmcnt(0)")
    I("v_max3_f32 v36, v44, v45, v46")
    I("v_max_f32 v36, v36, v47")
    I("v_mul_f32 v36, s64, v36")
    for r in range(16):
        I(f"v_fma_f32 v{20+r}, v{20+r}, s64, -v36")
    for r in range(16):
        I(f"v_exp_f32 v{20+r}, v{20+r}")
    I("s_nop 0")
    for r in range(8):
        I(f"v_cvt_pk_bf16_f32 v{48+r}, v{20+2*r}, v{21+2*r}")
    I("ds_write_b128 v42, v[48:51]")
    I("ds_write_b128 v42, v[52:55] offset:1024")
    I("v_add_f32 v37, v20, v21"); I("v_add_f32 v41, v22, v23"); I("v_add_f32 v43, v24, v25"); I("v_add_f32 v44, v26, v27")
    I("v_add_f32 v37, v37, v28"); I("v_add_f32 v41, v41, v29"); I("v_add_f32 v43, v43, v30"); I("v_add_f32 v44, v44, v31")
    I("v_add_f32 v37, v37, v32"); I("v_add_f32 v41, v41, v33"); I("v_add_f32 v43, v43, v34"); I("v_add_f32 v44, v44, v35")
    I("v_add_f32 v37, v37, v41"); I("v_add_f32 v43, v43, v44"); I("v_add_f32 v37, v37, v43")
    xor32(37, 41, "v_add_f32")
    I(f"v_add_u32 v39, {LB-MX}, v39")
    I("ds_write_b32 v39, v37")
    I("s_branch K2_PV")
    c("==== B waves: Q staging, K3 weight prefetch")
    e("K2_B:")
    I("s_lshl_b32 s64, s17, 15")
    I("s_lshl_b32 s65, s19, 13")
    I("s_add_u32 s64, s64, s65")
    for n in range(8):
        I(f"buffer_load_dwordx4 v[{192+4*n}:{195+4*n}], v4, s[40:43], s64 offen offset:{(n&3)*1024}")
        if n == 3: I("s_add_u32 s64, s64, 4096")
    I("s_and_b32 s64, s19, 1")
    I("s_lshl_b32 s64, s64, 7")
    I("v_xor_b32 v26, s64, v4")
    I(f"s_add_u32 s64, s65, {STG}")
    I("v_add_u32 v26, s64, v26")
    for n in range(8):
        I(f"v_xor_b32 v{16+n}, {n*16}, v26")
    I("v_lshlrev_b32 v38, 4, v8")
    I("s_waitcnt vmcnt(0)")
    for n in range(8):
        I(f"ds_write_b128 v{16+n}, v[{192+4*n}:{195+4*n}] offset:{n*1024}")
    I("s_waitcnt lgkmcnt(0)")
    I("s_barrier")
    I("s_barrier")
    if "PF3LATE" in FL:
        I("s_barrier")
    if "NOPF3" not in FL:
        I("v_and_b32 v56, 255, v0")
        I("v_lshrrev_b32 v57, 4, v56")
        I("v_lshlrev_b32 v56, 4, v56")
        I("s_lshl_b32 s64, s16, 17")
        I("s_lshl_b32 s65, s17, 14")
        I("s_add_u32 s64, s64, s65")
        for n in range(4):
            I(f"buffer_load_dwordx4 v[{240+4*n}:{243+4*n}], v56, s[52:55], s64 offen nt")
            I("s_add_u32 s64, s64, 4096")
        I("v_lshlrev_b32 v57, 13, v57")
        I("v_lshl_add_u32 v57, v3, 4, v57")
        I("s_lshl_b32 s64, s17, 19")
        I("s_lshl_b32 s65, s16, 8")
        I("s_add_u32 s64, s64, s65")
        for n in range(4):
            I(f"buffer_load_dwordx4 v[{240+4*n}:{243+4*n}], v57, s[48:51], s64 offen nt")
            I("s_add_u32 s64, s64, 131072")
        I("s_lshl_b32 s64, s2, 14")
        for n in range(4):
            I(f"buffer_load_dwordx4 v[{240+4*n}:{243+4*n}], v56, s[56:59], s64 offen nt")
            I("s_add_u32 s64, s64, 4096")
    if "PF3LATE" not in FL:
        I("s_barrier")
    c("==== PV on 8 waves: window = w8>>1, half = w8&1")
    e("K2_PV:")
    I("v_lshrrev_b32 v44, 2, v3")
    I("v_bfe_u32 v45, v1, 4, 1")
    I("v_lshl_add_u32 v46, v9, 2, v44")
    I("v_bfe_u32 v47, v3, 1, 1")
    I("v_lshl_add_u32 v47, v45, 1, v47")
    I("v_lshl_add_u32 v56, v44, 2, v9")
    I("v_xor_b32 v47, v47, v56")
    I("v_lshlrev_b32 v47, 4, v47")
    I("v_and_b32 v56, 1, v3")
    I("v_lshl_add_u32 v47, v56, 3, v47")
    I(f"v_lshl_add_u32 v47, v46, {10 if 'K2ROW' in FL else 8}, v47")
    I("s_lshr_b32 s64, s18, 1")
    I(f"s_lshl_b32 s64, s64, {8 if 'K2ROW' in FL else 15}")
    I("v_add_u32 v47, s64, v47")
    I("s_and_b32 s64, s18, 1")
    I("s_lshl_b32 s64, s64, 7")
    I("v_xor_b32 v47, s64, v47")
    for nt in range(2):
        for sec in range(2):
            x = (nt << 6) ^ (sec * 32)
            I(f"v_xor_b32 v{224+nt*2+sec}, {x}, v47")
            if sec: I(f"v_add_u32 v{224+nt*2+sec}, {8192 if 'K2ROW' in FL else 2048}, v{224+nt*2+sec}")
            if "K2ROW" in FL: I(f"v_add_u32 v{228+nt*2+sec}, 0x10000, v{224+nt*2+sec}")
    I(f"v_add_u32 v42, {PB}, v4")
    I(f"v_add_u32 v40, {LB}, v38")
    for r in range(32):
        I(f"v_mov_b32 v{128+r}, 0")
    c("O staging addrs")
    I("v_and_b32 v60, 7, v8")
    I("v_lshlrev_b32 v60, 4, v60")
    I("v_lshl_add_u32 v60, v9, 3, v60")
    I("v_lshl_add_u32 v60, v8, 7, v60")
    I("s_lshl_b32 s64, s18, 12")
    I("v_add_u32 v60, s64, v60")
    I("v_lshrrev_b32 v61, 3, v1")
    I("v_and_b32 v62, 7, v1")
    I("v_xor_b32 v63, v61, v62")
    I("v_lshlrev_b32 v63, 4, v63")
    I("v_lshl_add_u32 v63, v61, 7, v63")
    I("v_add_u32 v63, s64, v63")
    I("v_lshlrev_b32 v61, 18, v61")
    I("v_lshl_add_u32 v61, v62, 4, v61")
    I("s_lshl_b32 s68, s2, 7")
    I("s_lshl_b32 s65, s18, 15")
    I("s_add_u32 s68, s68, s65")
    I(f"s_add_u32 s68, s68, {OPB}")
    I("s_waitcnt lgkmcnt(0)")
    I("s_barrier")
    for t in range(8):
        I(f"ds_read_b128 v[{96+4*t}:{99+4*t}], v42 offset:{t*1024}")
    I("ds_read_b128 v[44:47], v40")
    for tp in range(4):
        for t2 in range(2):
            t = tp * 2 + t2
            for nt in range(2):
                for sec in range(2):
                    d = 192 + t2 * 8 + nt * 4 + sec * 2
                    if "K2ROW" in FL:
                        I(f"ds_read_b64_tr_b16 v[{d}:{d+1}], v{(224 if t < 4 else 228)+nt*2+sec} offset:{(t&3)*16384}")
                    else:
                        I(f"ds_read_b64_tr_b16 v[{d}:{d+1}], v{224+nt*2+sec} offset:{t*4096}")
        for t2 in range(2):
            t = tp * 2 + t2
            for nt in range(2):
                d = 192 + t2 * 8 + nt * 4
                I(f"s_waitcnt lgkmcnt({6-4*t2-2*nt})")
                I(f"v_mfma_f32_32x32x16_bf16 v[{128+16*nt}:{143+16*nt}], v[{d}:{d+3}], v[{96+4*t}:{99+4*t}], v[{128+16*nt}:{143+16*nt}]")
    I("s_cmp_lg_u32 s18, 0")
    I("s_cbranch_scc1 K2_NOSTAT")
    ts(1, 2, r=250)
    I("v_add_f32 v37, v44, v45")
    I("v_add_f32 v46, v46, v47")
    I("v_add_f32 v37, v37, v46")
    I("v_lshlrev_b32 v40, 11, v8")
    I("v_cmp_lt_u32 vcc, 0, v9")
    I("v_mov_b32 v41, 0x7f000000")
    I("s_lshl_b32 s64, s2, 3")
    I(f"s_add_u32 s64, s64, {STATS}")
    I("v_cndmask_b32 v40, v40, v41, vcc")
    I("buffer_store_dwordx2 v[36:37], v40, s[40:43], s64 offen")
    e("K2_NOSTAT:")
    I("s_nop 7")
    I("s_nop 3")
    for nt in range(2):
        for q in range(4):
            b = 128 + 16 * nt + 4 * q
            k = nt * 4 + q
            I(f"v_cvt_pk_bf16_f32 v{160+2*k}, v{b}, v{b+1}")
            I(f"v_cvt_pk_bf16_f32 v{161+2*k}, v{b+2}, v{b+3}")
            I(f"v_xor_b32 v{176+k}, {k*16}, v60")
    I("s_barrier")
    for k in range(8):
        I(f"ds_write_b64 v{176+k}, v[{160+2*k}:{161+2*k}]")
    for n in range(4):
        I(f"ds_read_b128 v[{64+4*n}:{67+4*n}], v63 offset:{n*1024}")
    for n in range(4):
        I(f"s_waitcnt lgkmcnt({3-n})")
        I(f"buffer_store_dwordx4 v[{64+4*n}:{67+4*n}], v61, s[40:43], s68 offen{PST}")
        if n != 3: I(f"s_add_u32 s68, s68, {8*262144}")
    ht(1, 1, "d")
    if "TS" in FL:
        I("s_waitcnt vmcnt(0)")
        I("s_cmp_ge_u32 s18, 4")
        I("s_cbranch_scc1 K2_END")
        ts(1, 3, r=250)
    e("K2_END:")
    I("s_endpgm")

def k3():
    WUV = 65536; COEF = WUV + 32768; CL = COEF + 1024; CLS = 272; CX = CL + 8 * CLS; CXS = 272
    kstart("k3_kernel")
    I("s_cmp_ge_u32 s2, 256")
    I("s_cbranch_scc1 K3_END")
    I("s_load_dwordx4 s[12:15], s[0:1], 32")
    I("s_load_dwordx2 s[72:73], s[0:1], 72")
    I("s_load_dwordx2 s[78:79], s[0:1], 96")
    common_ids()
    I("s_and_b32 s19, s18, 3")
    I("s_and_b32 s17, s17, 3")
    I("s_lshr_b32 s20, s2, 7")
    I("s_and_b32 s21, s2, 127")
    I("s_waitcnt lgkmcnt(0)")
    srd(40, 78, 79, WSSZ)
    srd(48, 12, 13, 4194304)
    srd(52, 14, 15, 4194304)
    srd(56, 72, 73, 1409024)
    I("v_lshlrev_b32 v4, 4, v1")
    I("v_and_b32 v48, 7, v1")
    I("v_mul_u32_u24 v18, 2752, v48")
    I("v_lshl_add_u32 v18, v2, 3, v18")
    I("s_lshl_b32 s64, s21, 5")
    I(f"s_add_u32 s64, s64, {HH}")
    I("s_cmp_ge_u32 s18, 4")
    I("s_cbranch_scc1 K3_B")
    c("==== group A: combine")
    ht(2, 0, "e")
    if "TS" in FL: ts(2, 0)
    I("v_lshlrev_b32 v5, 3, v0")
    I("s_lshl_b32 s65, s16, 11")
    I(f"s_add_u32 s65, s65, {STATS}")
    I("buffer_load_dwordx2 v[8:9], v5, s[40:43], s65 offen")
    I("v_lshrrev_b32 v6, 4, v0")
    I("v_lshlrev_b32 v7, 6, v6")
    I("v_lshlrev_b32 v6, 11, v6")
    I("v_lshl_add_u32 v6, v48, 4, v6")
    I("v_lshrrev_b32 v10, 3, v3")
    I("v_lshl_add_u32 v6, v10, 15, v6")
    I("s_lshl_b32 s65, s16, 2")
    I("s_add_u32 s65, s65, s17")
    I("s_lshl_b32 s65, s65, 16")
    I(f"s_add_u32 s65, s65, {OPB}")
    for k in range(16):
        I(f"buffer_load_dwordx4 v[{64+4*k}:{67+4*k}], v6, s[40:43], s65 offen offset:{k*128}")
    I("buffer_load_dwordx2 v[144:145], v18, s[40:43], s64 offen")
    I("s_waitcnt vmcnt(17)")
    I("v_mov_b32 v20, v8")
    dppred(20, 21, "v_max_f32", 32)
    I("v_sub_f32 v20, v8, v20")
    I("v_exp_f32 v20, v20")
    I("s_nop 0")
    I("v_mul_f32 v22, v20, v9")
    dppred(22, 21, "v_add_f32", 32)
    I("v_rcp_f32 v22, v22")
    I("s_nop 0")
    I("v_mul_f32 v20, v20, v22")
    I("v_lshlrev_b32 v21, 2, v0")
    I(f"v_add_u32 v21, {COEF}, v21")
    I("ds_write_b32 v21, v20")
    I(f"v_add_u32 v7, {COEF}, v7")
    for q in range(4):
        I(f"ds_read_b128 v[{24+4*q}:{27+4*q}], v7 offset:{16*q}")
    for q in range(8):
        I(f"v_mov_b32 v{40+q}, 0")
    I("s_waitcnt lgkmcnt(0)")
    for k in range(16):
        I(f"s_waitcnt vmcnt({16-k})")
        for q in range(4):
            I(f"v_lshlrev_b32 v56, 16, v{64+4*k+q}")
            I(f"v_and_b32 v57, 0xffff0000, v{64+4*k+q}")
            I(f"v_fmac_f32 v{40+2*q}, v{24+k}, v56")
            I(f"v_fmac_f32 v{41+2*q}, v{24+k}, v57")
    for q in range(8):
        I(f"v_mov_b32 v{56+q}, v{40+q}")
    I("s_nop 1")
    for q in range(8):
        I(f"v_permlane16_swap_b32 v{40+q}, v{56+q}")
    I("s_nop 1")
    for q in range(8):
        I(f"v_add_f32 v{40+q}, v{40+q}, v{56+q}")
    for q in range(4):
        I(f"v_cvt_pk_bf16_f32 v{56+q}, v{40+2*q}, v{41+2*q}")
    I("v_lshrrev_b32 v49, 5, v0")
    I(f"v_mul_u32_u24 v49, {CLS}, v49")
    I("v_lshl_add_u32 v49, v3, 4, v49")
    I(f"v_add_u32 v49, {CL}, v49")
    I("ds_write_b128 v49, v[56:59]")
    if "TS" in FL: ts(2, 1)
    I(f"v_mul_u32_u24 v49, {CLS}, v48")
    I("v_lshl_add_u32 v49, v2, 3, v49")
    I(f"v_add_u32 v49, {CL}, v49")
    I("v_lshrrev_b32 v50, 2, v3")
    I("v_lshl_add_u32 v51, v2, 2, v50")
    I("v_and_b32 v52, 7, v51")
    I("s_lshl_b32 s64, s19, 1")
    I("v_xor_b32 v53, s64, v52")
    I("v_lshlrev_b32 v54, 8, v51")
    I("v_lshl_add_u32 v54, v53, 5, v54")
    I("v_and_b32 v55, 3, v3")
    I("v_lshl_add_u32 v54, v55, 3, v54")
    I(f"v_add_u32 v54, {WUV}, v54")
    I("v_xor_b32 v55, 32, v54")
    for r in range(8):
        I(f"v_mov_b32 v{120+r}, 0")
    I("s_waitcnt lgkmcnt(0)")
    I("s_barrier")
    for ks in range(4):
        I(f"ds_read2_b64 v[{64+4*ks}:{67+4*ks}], v49 offset0:{ks*8} offset1:{ks*8+4}")
    for ks in range(4):
        for nt in range(2):
            d = 80 + (ks * 2 + nt) * 4
            I(f"ds_read_b64_tr_b16 v[{d}:{d+1}], v{54+nt} offset:{ks*8192}")
            I(f"ds_read_b64_tr_b16 v[{d+2}:{d+3}], v{54+nt} offset:{ks*8192+4096}")
    for ks in range(4):
        for nt in range(2):
            d = 80 + (ks * 2 + nt) * 4
            I(f"s_waitcnt lgkmcnt({14-2*(ks*2+nt)})")
            I(f"v_mfma_f32_16x16x32_bf16 v[{120+4*nt}:{123+4*nt}], v[{64+4*ks}:{67+4*ks}], v[{d}:{d+3}], v[{120+4*nt}:{123+4*nt}]")
    I(f"v_mul_u32_u24 v56, {4*CXS}, v2")
    I("v_lshl_add_u32 v56, v3, 1, v56")
    I("s_lshl_b32 s64, s19, 6")
    I(f"s_add_u32 s64, s64, {CX}")
    I("v_add_u32 v56, s64, v56")
    I("s_nop 7")
    for nt in range(2):
        I(f"v_cvt_pk_bf16_f32 v{96+2*nt}, v{120+4*nt}, v{121+4*nt}")
        I(f"v_cvt_pk_bf16_f32 v{97+2*nt}, v{122+4*nt}, v{123+4*nt}")
    for nt in range(2):
        I(f"ds_write_b16 v56, v{96+2*nt} offset:{nt*32}")
        I(f"ds_write_b16_d16_hi v56, v{96+2*nt} offset:{nt*32+CXS}")
        I(f"ds_write_b16 v56, v{97+2*nt} offset:{nt*32+2*CXS}")
        I(f"ds_write_b16_d16_hi v56, v{97+2*nt} offset:{nt*32+3*CXS}")
    I("s_waitcnt vmcnt(0) lgkmcnt(0)")
    I("s_barrier")
    I("s_branch K3_O")
    c("==== group B: weight loads")
    e("K3_B:")
    I("buffer_load_dwordx2 v[144:145], v18, s[40:43], s64 offen")
    I("v_lshlrev_b32 v10, 1, v2")
    I("v_xor_b32 v10, v10, v3")
    I("v_lshlrev_b32 v10, 4, v10")
    I("v_lshl_add_u32 v10, v2, 13, v10")
    I("v_xor_b32 v11, 0x80, v10")
    I("s_lshl_b32 s64, s17, 7")
    I("s_lshl_b32 s65, s19, 5")
    I("s_add_u32 s64, s64, s65")
    I("s_lshl_b32 s64, s64, 13")
    I("s_lshl_b32 s66, s16, 8")
    I("s_add_u32 s64, s64, s66")
    I("s_lshl_b32 s65, s65, 8")
    I(f"s_add_u32 s65, s65, {WUV}")
    I("s_mov_b32 m0, s65")
    I("s_nop 0")
    for i in range(8):
        I(f"buffer_load_dwordx4 v{10 + (i & 1)}, s[48:51], s64 offen nt lds")
        if i != 7:
            I("s_add_u32 m0, m0, 1024")
            I("s_add_u32 s64, s64, 32768")
    c("w_o half rows: 2 rows x 512B per instr")
    I("v_lshrrev_b32 v12, 5, v1")
    I("v_and_b32 v13, 31, v1")
    I("v_lshlrev_b32 v14, 1, v12")
    I("v_xor_b32 v13, v13, v14")
    I("v_lshlrev_b32 v13, 4, v13")
    I("v_lshl_add_u32 v13, v12, 10, v13")
    for q in range(4):
        I(f"v_xor_b32 v{20+q}, {q*64}, v13")
    I("s_lshl_b32 s64, s16, 17")
    I("s_lshl_b32 s65, s19, 15")
    I("s_add_u32 s64, s64, s65")
    I("s_lshl_b32 s65, s20, 9")
    I("s_add_u32 s64, s64, s65")
    I("s_lshl_b32 s65, s19, 14")
    I("s_mov_b32 m0, s65")
    I("s_nop 0")
    for i in range(16):
        I(f"buffer_load_dwordx4 v{20 + (i & 3)}, s[52:55], s64 offen nt lds")
        if i != 15:
            I("s_add_u32 m0, m0, 1024")
            I("s_add_u32 s64, s64, 2048")
    c("w_down rows 16t + 4w + 2n + rsub, half nh")
    I("v_and_b32 v15, 31, v1")
    I("v_lshlrev_b32 v15, 4, v15")
    I("v_lshl_add_u32 v15, v12, 10, v15")
    I("s_lshl_b32 s64, s21, 14")
    I("s_lshl_b32 s65, s19, 12")
    I("s_add_u32 s64, s64, s65")
    I("s_lshl_b32 s65, s20, 9")
    I("s_add_u32 s64, s64, s65")
    for n in range(2):
        I(f"buffer_load_dwordx4 v[{128+4*n}:{131+4*n}], v15, s[56:59], s64 offen offset:{n*2048} nt")
    I("v_lshrrev_b32 v50, 2, v3")
    I("v_lshl_add_u32 v51, v2, 2, v50")
    I("v_and_b32 v52, 7, v51")
    c("lds addr for w_down: row=4w+2n+rsub ; (row&7) = 4(w&1)+2n+rsub")
    I("v_and_b32 v57, 31, v1")
    I("v_xor_b32 v57, v57, v14")
    I("s_and_b32 s64, s19, 1")
    I("s_lshl_b32 s64, s64, 3")
    I("v_xor_b32 v57, s64, v57")
    I("v_lshlrev_b32 v57, 4, v57")
    I("v_lshl_add_u32 v57, v12, 9, v57")
    I("s_lshl_b32 s64, s19, 11")
    I(f"s_add_u32 s64, s64, {WUV}")
    I("v_add_u32 v57, s64, v57")
    I("v_xor_b32 v58, 64, v57")
    I("s_waitcnt vmcnt(18)")
    I("s_barrier")
    I("s_waitcnt vmcnt(0)")
    I("s_barrier")
    for n in range(2):
        I(f"ds_write_b128 v{57+n}, v[{128+4*n}:{131+4*n}] offset:{n*1024}")
    c("==== o-proj on 8 waves: 32 cols each")
    e("K3_O:")
    I(f"v_mul_u32_u24 v49, {CXS}, v48")
    I("v_lshl_add_u32 v49, v2, 3, v49")
    I(f"v_add_u32 v49, {CX}, v49")
    for ks in range(4):
        I(f"ds_read2_b64 v[{64+4*ks}:{67+4*ks}], v49 offset0:{ks*8} offset1:{ks*8+4}")
    I("v_lshlrev_b32 v54, 9, v51")
    I("v_lshl_add_u32 v54, v52, 5, v54")
    I("v_and_b32 v55, 3, v3")
    I("v_lshl_add_u32 v54, v55, 3, v54")
    I("s_lshr_b32 s64, s18, 2")
    I("s_lshl_b32 s64, s64, 8")
    I("v_add_u32 v54, s64, v54")
    I("s_and_b32 s64, s18, 3")
    I("s_lshl_b32 s64, s64, 6")
    I("v_xor_b32 v100, s64, v54")
    I("v_xor_b32 v101, 32, v100")
    for r in range(8):
        I(f"v_mov_b32 v{160+r}, 0")
    for ks in range(4):
        for nt in range(2):
            d = 192 + (ks * 2 + nt) * 4
            I(f"ds_read_b64_tr_b16 v[{d}:{d+1}], v{100+nt} offset:{ks*16384}")
            I(f"ds_read_b64_tr_b16 v[{d+2}:{d+3}], v{100+nt} offset:{ks*16384+8192}")
    for ks in range(4):
        for nt in range(2):
            d = 192 + (ks * 2 + nt) * 4
            I(f"s_waitcnt lgkmcnt({14-2*(ks*2+nt)})")
            I(f"v_mfma_f32_16x16x32_bf16 v[{160+4*nt}:{163+4*nt}], v[{64+4*ks}:{67+4*ks}], v[{d}:{d+3}], v[{160+4*nt}:{163+4*nt}]")
    I("s_cmp_ge_u32 s21, 86")
    I("s_cbranch_scc1 K3_NOFFN2")
    I("s_barrier")
    for nt in range(2):
        I(f"v_add_u32 v{100+nt}, {WUV}, v{100+nt}")
    for nt in range(2):
        d = 192 + nt * 2
        I(f"ds_read_b64_tr_b16 v[{d}:{d+1}], v{100+nt}")
    I("s_waitcnt lgkmcnt(0)")
    for nt in range(2):
        d = 192 + nt * 2
        I(f"v_mfma_f32_16x16x16_bf16 v[{160+4*nt}:{163+4*nt}], v[144:145], v[{d}:{d+1}], v[{160+4*nt}:{163+4*nt}]")
    e("K3_NOFFN2:")
    I("v_lshlrev_b32 v60, 12, v2")
    I("v_lshl_add_u32 v60, v3, 2, v60")
    I("v_cmp_lt_u32 vcc, 1, v2")
    I("v_mov_b32 v61, 0x7f000000")
    I("s_lshl_b32 s64, s2, 13")
    I("s_lshl_b32 s65, s18, 7")
    I("v_cndmask_b32 v60, v60, v61, vcc")
    I("s_add_u32 s64, s64, s65")
    I(f"s_add_u32 s64, s64, {OUTP}")
    I("s_nop 7")
    for nt in range(2):
        for r in range(4):
            I(f"buffer_store_dword v{160+4*nt+r}, v60, s[40:43], s64 offen offset:{r*1024+nt*64}{OST}")
    ht(2, 1, "f")
    if "TS" in FL:
        I("s_waitcnt vmcnt(0)")
        I("s_cmp_ge_u32 s18, 4")
        I("s_cbranch_scc1 K3_END")
        ts(2, 3)
    e("K3_END:")
    I("s_endpgm")

def k4():
    kstart("k4_kernel")
    I("s_cmp_ge_u32 s2, 64")
    I("s_cbranch_scc1 K4_END")
    I("s_load_dwordx2 s[4:5], s[0:1], 0")
    I("s_load_dwordx2 s[8:9], s[0:1], 80")
    I("s_load_dwordx2 s[6:7], s[0:1], 96")
    I("v_and_b32 v1, 15, v0")
    I("v_lshrrev_b32 v2, 4, v0")
    I("v_lshrrev_b32 v4, 6, v0")
    I("v_lshlrev_b32 v3, 16, v2")
    I("v_readfirstlane_b32 s18, v4")
    I("v_lshl_add_u32 v3, v1, 4, v3")
    I("s_lshr_b32 s16, s2, 3")
    I("s_lshl_b32 s16, s16, 10")
    I("s_and_b32 s19, s2, 3")
    I("s_lshl_b32 s19, s19, 8")
    I("s_add_u32 s16, s16, s19")
    I("s_bfe_u32 s19, s2, 0x10002")
    I("s_lshl_b32 s19, s19, 20")
    I("s_add_u32 s16, s16, s19")
    I("s_waitcnt lgkmcnt(0)")
    srd(20, 4, 5, 8192)
    srd(24, 8, 9, 8192)
    srd(40, 6, 7, WSSZ)
    ts(3, 0, r=76)
    if "HT" in FL:
        I("s_memrealtime s[92:93]")
    I(f"s_add_u32 s44, s16, {OUTP}")
    for k in range(8):
        I(f"buffer_load_dwordx4 v[{8+4*k}:{11+4*k}], v3, s[40:43], s44 offen")
        if k != 7: I("s_add_u32 s44, s44, 8192")
    I("v_lshlrev_b32 v4, 3, v1")
    I("s_lshl_b32 s17, s2, 7")
    I("buffer_load_dwordx2 v[72:73], v4, s[20:23], s17 offen")
    I("s_waitcnt vmcnt(1)")
    for k in range(1, 8):
        for q in range(4):
            I(f"v_add_f32 v{8+q}, v{8+q}, v{8+4*k+q}")
    for q in range(4):
        I(f"v_mov_b32 v{12+q}, v{8+q}")
    I("s_nop 1")
    for q in range(4):
        I(f"v_permlane16_swap_b32 v{8+q}, v{12+q}")
    I("s_nop 1")
    for q in range(4):
        I(f"v_add_f32 v{8+q}, v{8+q}, v{12+q}")
    for q in range(4):
        I(f"v_mov_b32 v{12+q}, v{8+q}")
    I("s_nop 1")
    for q in range(4):
        I(f"v_permlane32_swap_b32 v{8+q}, v{12+q}")
    I("s_nop 1")
    for q in range(4):
        I(f"v_add_f32 v{8+q}, v{8+q}, v{12+q}")
    I("v_lshlrev_b32 v5, 4, v0")
    I("ds_write_b128 v5, v[8:11]")
    I("s_waitcnt lgkmcnt(0)")
    I("s_barrier")
    I("v_lshlrev_b32 v5, 4, v1")
    for w in range(4):
        I(f"ds_read_b128 v[{16+4*w}:{19+4*w}], v5 offset:{w*1024}")
    I("s_waitcnt vmcnt(0) lgkmcnt(0)")
    for q in range(4):
        I(f"v_add_f32 v{16+q}, v{16+q}, v{20+q}")
        I(f"v_add_f32 v{24+q}, v{24+q}, v{28+q}")
        I(f"v_add_f32 v{16+q}, v{16+q}, v{24+q}")
    I("v_lshlrev_b32 v20, 16, v72")
    I("v_and_b32 v21, 0xffff0000, v72")
    I("v_lshlrev_b32 v22, 16, v73")
    I("v_and_b32 v23, 0xffff0000, v73")
    for q in range(4):
        I(f"v_add_f32 v{16+q}, v{16+q}, v{20+q}")
    I("v_cvt_pk_bf16_f32 v24, v16, v17")
    I("v_cvt_pk_bf16_f32 v25, v18, v19")
    I("v_cmp_lt_u32 vcc, 15, v0")
    I("v_mov_b32 v6, 0x7f000000")
    I("s_nop 1")
    I("v_cndmask_b32 v4, v4, v6, vcc")
    I("buffer_store_dwordx2 v[24:25], v4, s[24:27], s17 offen")
    if "HT" in FL:
        I("s_cmp_lg_u32 s2, 5")
        I("s_cbranch_scc1 K4_END")
        I("s_load_dwordx2 s[10:11], s[0:1], 88")
        I("s_memrealtime s[90:91]")
        I("s_waitcnt lgkmcnt(0)")
        I("s_sub_u32 s10, s10, 0")
        I("s_subb_u32 s11, s11, 0")
        srd(28, 10, 11, 256)
        I("v_lshlrev_b32 v30, 2, v0")
        I(f"v_add_u32 v31, {TSOFF + 0x40000}, v30")
        I("buffer_load_dword v32, v31, s[40:43], 0 offen sc1")
        I("s_waitcnt vmcnt(0)")
        I("v_mov_b32 v33, s92")
        I("v_cmp_eq_u32 vcc, 6, v0")
        I("s_nop 1")
        I("v_cndmask_b32 v32, v32, v33, vcc")
        I("v_mov_b32 v33, s90")
        I("v_cmp_eq_u32 vcc, 7, v0")
        I("s_nop 1")
        I("v_cndmask_b32 v32, v32, v33, vcc")
        I("v_cmp_gt_u32 vcc, 8, v0")
        I("s_and_saveexec_b64 s[86:87], vcc")
        I("buffer_store_dword v32, v30, s[28:31], 0 offen")
    if "TS" in FL:
        I("s_waitcnt vmcnt(0)")
        ts(3, 3, r=76)
    e("K4_END:")
    I("s_endpgm")
    e("KALL_END:")

e("; @launch kernel=k1_kernel grid=(256,1,1) block=(512,1,1) lds=160256")
e("; @launch kernel=k2_kernel grid=(256,1,1) block=(512,1,1) lds=163840")
e("; @launch kernel=k3_kernel grid=(256,1,1) block=(512,1,1) lds=106496")
e("; @launch kernel=k4_kernel grid=(64,1,1) block=(256,1,1) lds=4096")
e('.amdgcn_target "amdgcn-amd-amdhsa--gfx950"')
e(".text")
k1(); k2(); k3(); k4()
e('.section .rodata,"a"')
for n, v in (("k1_kernel", 256), ("k2_kernel", 256), ("k3_kernel", 256), ("k4_kernel", 80)):
    e(".p2align 6")
    kdesc(n, v)
if "NONT" in FL:
    L = [x.replace(" nt lds", " lds") if x.endswith(" nt lds") else (x[:-3] if x.endswith(" nt") else x) for x in L]
open(sys.argv[1], "w").write("\n".join(L) + "\n")
```

```python
import sys, os, struct
FL = os.environ.get("FL", "").split(",")
L = []
def e(s=""): L.append(s)
def c(s): L.append("    ; " + s)
def I(s): L.append("    " + s)
def f2u(x): return struct.unpack("<I", struct.pack("<f", x))[0]

QABS = 0x0
HH   = 0x40000
STATS= 0x50000
OPB  = 0x100000
OUTP = 0x1100000
TSOFF= 0x1500000
WSSZ = 0x1600000
SC = (128 ** -0.5) * 1.4426950408889634
TSX = 1 if "TS" in FL else 0
PST = os.environ.get("PST", " sc1")
PFN = int(os.environ.get("PFN", "32"))
PFT = int(os.environ.get("PFT", "12"))
K2NT = os.environ.get("K2NT", " nt")
WONT = os.environ.get("WONT", " nt")
OST = os.environ.get("OST", "")
PFD = int(os.environ.get("PFD", "1"))
PFX = int(os.environ.get("PFX", "0"))
PFNF = int(os.environ.get("PFNF", "8"))
FNT = os.environ.get("FNT", " nt")

def srd(d, lo, hi, nbytes):
    I(f"s_mov_b32 s{d}, s{lo}")
    I(f"s_and_b32 s{d+1}, s{hi}, 0xffff")
    I(f"s_mov_b32 s{d+2}, {nbytes}")
    I(f"s_mov_b32 s{d+3}, 0x00020000")

def kstart(name):
    e(f".globl {name}"); e(".p2align 8"); e(f".type {name},@function"); e(f"{name}:")

def kdesc(name, vgpr, sgpr=102):
    e(f".amdhsa_kernel {name}")
    e(f"  .amdhsa_next_free_vgpr {vgpr}")
    e(f"  .amdhsa_next_free_sgpr {sgpr}")
    e(f"  .amdhsa_accum_offset {(vgpr+3)//4*4}")
    e("  .amdhsa_group_segment_fixed_size 0")
    e("  .amdhsa_kernarg_size 104")
    e("  .amdhsa_user_sgpr_count 2")
    e("  .amdhsa_user_sgpr_kernarg_segment_ptr 1")
    e("  .amdhsa_system_sgpr_workgroup_id_x 1")
    e(".end_amdhsa_kernel")

def ts(kid, idx, r=250):
    if "TS" not in FL: return
    I("s_memrealtime s[90:91]")
    I("s_waitcnt lgkmcnt(0)")
    I(f"v_mov_b32 v{r}, s90")
    I("s_lshl_b32 s92, s2, 7")
    I("s_lshl_b32 s93, s18, 5")
    I("s_add_u32 s92, s92, s93")
    I(f"s_add_u32 s92, s92, {TSOFF + kid*65536 + idx*4}")
    I(f"v_and_b32 v{r+2}, 63, v0")
    I(f"v_cmp_eq_u32 vcc, 0, v{r+2}")
    I(f"v_mov_b32 v{r+1}, 0x7f000000")
    I("s_nop 1")
    I(f"v_cndmask_b32 v{r+1}, v{r+1}, 0, vcc")
    I(f"buffer_store_dword v{r}, v{r+1}, s[40:43], s92 offen")

def ht(kid, idx, lab):
    if "HT" not in FL: return
    I("s_cmp_lg_u32 s2, 5")
    I(f"s_cbranch_scc1 HT_{lab}")
    I("s_cmp_lg_u32 s18, 0")
    I(f"s_cbranch_scc1 HT_{lab}")
    I("s_memrealtime s[90:91]")
    I("s_waitcnt lgkmcnt(0)")
    I("v_mov_b32 v250, s90")
    I(f"v_mov_b32 v251, {TSOFF + 0x40000 + kid*8 + idx*4}")
    I("buffer_store_dword v250, v251, s[40:43], 0 offen sc1")
    I("s_waitcnt vmcnt(0)")
    e(f"HT_{lab}:")

def xor32(v, tmp, op):
    I(f"v_mov_b32 v{tmp}, v{v}")
    I("s_nop 1")
    I(f"v_permlane32_swap_b32 v{v}, v{tmp}")
    I("s_nop 1")
    I(f"{op} v{v}, v{v}, v{tmp}")

def dppred(v, tmp, op, width):
    for m in ("quad_perm:[1,0,3,2]", "quad_perm:[2,3,0,1]", "row_half_mirror", "row_mirror"):
        I("s_nop 1")
        I(f"{op}_dpp v{v}, v{v}, v{v} {m} row_mask:0xf bank_mask:0xf")
    if width >= 32:
        I(f"v_mov_b32 v{tmp}, v{v}")
        I("s_nop 1")
        I(f"v_permlane16_swap_b32 v{v}, v{tmp}")
        I("s_nop 1")
        I(f"{op} v{v}, v{v}, v{tmp}")
    if width >= 64:
        xor32(v, tmp, op)

def common_ids():
    I("s_and_b32 s16, s2, 31")
    I("s_lshr_b32 s17, s2, 5")
    I("v_lshrrev_b32 v2, 6, v0")
    I("v_and_b32 v1, 63, v0")
    I("s_nop 0")
    I("v_readfirstlane_b32 s18, v2")
    I("v_lshrrev_b32 v2, 4, v1")
    I("v_and_b32 v3, 15, v1")
    I("s_mov_b32 s19, s18")

def k1():
    XN = 131072; XNS = 1040; QB = XN + 8 * XNS; QS = 272; FST = QB + 16 * QS; FST = (FST + 255) // 256 * 256
    assert FST + 16384 <= 163840
    PF0 = int(os.environ.get("PF0", "0")); PF1 = int(os.environ.get("PF1", "0")); PF2 = int(os.environ.get("PF2", "0"))
    kstart("k1_kernel")
    I("s_cmp_ge_u32 s2, 256")
    I("s_cbranch_scc1 K1_END")
    I("s_load_dwordx4 s[4:7], s[0:1], 0")
    I("s_load_dwordx4 s[8:11], s[0:1], 16")
    I("s_load_dwordx4 s[68:71], s[0:1], 56")
    I("s_load_dwordx2 s[78:79], s[0:1], 96")
    if "TLB" in FL or "PF3K1" in FL:
        I("s_load_dwordx4 s[12:15], s[0:1], 32")
        I("s_load_dwordx4 s[80:83], s[0:1], 72")
    common_ids()
    I("s_and_b32 s19, s18, 3")
    I("v_lshlrev_b32 v4, 4, v1")
    I("v_lshrrev_b32 v28, 2, v3")
    I("v_lshl_add_u32 v28, v2, 2, v28")
    I("v_and_b32 v29, 7, v28")
    I("v_and_b32 v30, 3, v3")
    I("v_and_b32 v31, 7, v1")
    I(f"v_mul_u32_u24 v31, {XNS}, v31")
    I("v_lshl_add_u32 v31, v2, 3, v31")
    I("s_lshl_b32 s64, s19, 8")
    I(f"s_add_u32 s64, s64, {XN}")
    I("v_add_u32 v31, s64, v31")
    I("s_waitcnt lgkmcnt(0)")
    srd(20, 4, 5, 8192)
    srd(24, 8, 9, 4194304)
    srd(28, 10, 11, 4194304)
    srd(32, 68, 69, 1409024)
    srd(36, 70, 71, 1409024)
    srd(40, 78, 79, WSSZ)
    srd(44, 6, 7, 33554432)
    I("s_cmp_ge_u32 s18, 4")
    I("s_cbranch_scc1 K1_B")
    c("==== A waves")
    ht(0, 0, "a")
    ts(0, 0)
    I("v_lshlrev_b32 v6, 1, v2")
    I("v_xor_b32 v6, v6, v3")
    I("v_lshlrev_b32 v6, 4, v6")
    I("v_lshl_add_u32 v6, v2, 13, v6")
    I("v_xor_b32 v7, 0x80, v6")
    I("s_lshl_b32 s64, s19, 20")
    I("s_lshl_b32 s65, s16, 8")
    I("s_add_u32 s64, s64, s65")
    I("s_lshl_b32 s66, s19, 15")
    I("s_mov_b32 m0, s66")
    I("s_barrier")
    for i in range(32):
        I(f"buffer_load_dwordx4 v{6 + (i & 1)}, s[24:27], s64 offen nt lds")
        if i != 31:
            I("s_add_u32 m0, m0, 1024")
            I("s_add_u32 s64, s64, 32768")
    I("v_lshlrev_b32 v8, 13, v3")
    I("v_lshl_add_u32 v8, v2, 4, v8")
    I("s_lshl_b32 s64, s17, 6")
    I("s_lshl_b32 s66, s19, 4")
    I("s_add_u32 s64, s64, s66")
    I("s_lshl_b32 s64, s64, 13")
    I("s_add_u32 s64, s64, s65")
    for ks in range(4):
        I(f"buffer_load_dwordx4 v[{80+4*ks}:{83+4*ks}], v8, s[28:31], s64 offen offset:{ks*64} nt")
    c("addresses")
    I("v_and_b32 v70, 7, v1")
    I(f"v_mul_u32_u24 v70, {XNS}, v70")
    I("v_lshl_add_u32 v70, v2, 3, v70")
    I(f"v_add_u32 v70, {XN}, v70")
    I("s_lshl_b32 s64, s19, 1")
    I("v_xor_b32 v73, s64, v29")
    I("v_lshlrev_b32 v74, 8, v28")
    I("v_lshl_add_u32 v74, v73, 5, v74")
    I("v_lshl_add_u32 v74, v30, 3, v74")
    I("v_xor_b32 v75, 32, v74")
    I("v_add_u32 v76, 0x10000, v74")
    I("v_add_u32 v77, 0x10000, v75")
    I(f"v_mul_u32_u24 v24, {4*QS}, v2")
    I("v_lshl_add_u32 v24, v3, 1, v24")
    I("s_lshl_b32 s64, s19, 6")
    I(f"s_add_u32 s64, s64, {QB}")
    I("v_add_u32 v24, s64, v24")
    I(f"v_mul_u32_u24 v25, {QS}, v3")
    I("v_lshl_add_u32 v25, v2, 4, v25")
    I(f"v_add_u32 v25, {QB}, v25")
    I("v_lshlrev_b32 v26, 15, v3")
    I("v_lshl_add_u32 v26, v2, 3, v26")
    I("v_cmp_lt_u32 vcc, 7, v3")
    I("v_mov_b32 v27, 0x7f000000")
    I("s_lshl_b32 s70, s16, 10")
    I("s_lshl_b32 s65, s17, 7")
    I("v_cndmask_b32 v26, v26, v27, vcc")
    I("s_add_u32 s70, s70, s65")
    I("s_lshl_b32 s65, s19, 5")
    I("s_add_u32 s70, s70, s65")
    for r in range(12):
        I(f"v_mov_b32 v{8+r}, 0")
    I("s_waitcnt vmcnt(4)")
    I("s_barrier")
    ts(0, 1, r=120)
    for ch in range(4):
        for k4 in range(4):
            ks = ch * 4 + k4
            I(f"ds_read2_b64 v[{128+64*(ch&1)+4*k4}:{131+64*(ch&1)+4*k4}], v70 offset0:{ks*8} offset1:{ks*8+4}")
            for nt in range(2):
                base = (74 + nt) if ks < 8 else (76 + nt)
                off = (ks & 7) * 8192
                d = 144 + 64 * (ch & 1) + (k4 * 2 + nt) * 4
                I(f"ds_read_b64_tr_b16 v[{d}:{d+1}], v{base} offset:{off}")
                I(f"ds_read_b64_tr_b16 v[{d+2}:{d+3}], v{base} offset:{off+4096}")
            if k4 == 2: I("s_waitcnt lgkmcnt(10)")
        for k4 in range(4):
            I(f"s_waitcnt lgkmcnt({5*(3-k4)})")
            for nt in range(2):
                d = 144 + 64 * (ch & 1) + (k4 * 2 + nt) * 4
                a = 128 + 64 * (ch & 1) + 4 * k4
                I(f"v_mfma_f32_16x16x32_bf16 v[{8+4*nt}:{11+4*nt}], v[{a}:{a+3}], v[{d}:{d+3}], v[{8+4*nt}:{11+4*nt}]")
    ts(0, 5, r=120)
    I("s_nop 7")
    for nt in range(2):
        I(f"v_cvt_pk_bf16_f32 v{20+2*nt}, v{8+4*nt}, v{9+4*nt}")
        I(f"v_cvt_pk_bf16_f32 v{21+2*nt}, v{10+4*nt}, v{11+4*nt}")
    for nt in range(2):
        I(f"ds_write_b16 v24, v{20+2*nt} offset:{nt*32}")
        I(f"ds_write_b16_d16_hi v24, v{20+2*nt} offset:{nt*32+QS}")
        I(f"ds_write_b16 v24, v{21+2*nt} offset:{nt*32+2*QS}")
        I(f"ds_write_b16_d16_hi v24, v{21+2*nt} offset:{nt*32+3*QS}")
    I("s_waitcnt lgkmcnt(0)")
    I("s_barrier")
    for ks in range(4):
        I(f"ds_read_b128 v[{128+4*ks}:{131+4*ks}], v25 offset:{ks*64}")
    I("s_waitcnt vmcnt(0) lgkmcnt(0)")
    for ks in range(4):
        I(f"v_mfma_f32_16x16x32_bf16 v[16:19], v[{80+4*ks}:{83+4*ks}], v[{128+4*ks}:{131+4*ks}], v[16:19]")
    I("s_nop 7")
    I("v_cvt_pk_bf16_f32 v12, v16, v17")
    I("v_cvt_pk_bf16_f32 v13, v18, v19")
    I("buffer_store_dwordx2 v[12:13], v26, s[40:43], s70 offen")
    ht(0, 1, "b")
    if "TS" in FL:
        I("s_waitcnt vmcnt(0)")
        ts(0, 2)
    I("s_branch K1_END")
    c("==== B waves: LN, FFN, prefetch")
    e("K1_B:")
    if "CPF" in FL:
        c("touch the code of the later kernels so that their instruction fetch hits L2")
        I("s_getpc_b64 s[84:85]")
        e("K1_PC:")
        I("s_add_u32 s84, s84, k2_kernel-K1_PC")
        I("s_addc_u32 s85, s85, 0")
        I("v_and_b32 v6, 255, v0")
        I("v_lshlrev_b32 v6, 6, v6")
        I("v_cmp_gt_u32 vcc, KALL_END-k2_kernel, v6")
        I("s_and_saveexec_b64 s[86:87], vcc")
        I("s_cbranch_execz K1_PCD")
        I("global_load_dword v7, v6, s[84:85]")
        e("K1_PCD:")
        I("s_mov_b64 exec, s[86:87]")
    I("s_lshl_b32 s64, s19, 11")
    I("v_lshlrev_b32 v5, 5, v1")
    I("buffer_load_dwordx4 v[48:51], v5, s[20:23], s64 offen")
    I("buffer_load_dwordx4 v[52:55], v5, s[20:23], s64 offen offset:16")
    I("s_and_b32 s74, s2, 7")
    I("s_mul_i32 s74, s74, 11")
    I("s_lshr_b32 s75, s2, 3")
    I("s_add_u32 s74, s74, s75")
    I("s_cmp_ge_u32 s2, 88")
    I("s_cselect_b32 s74, 0x1000, s74")
    c("ffn loads: for non-ffn wgs use an out-of-range offset (returns 0 quickly)")
    I("v_lshrrev_b32 v24, 1, v1")
    I("v_mul_u32_u24 v24, 2752, v24")
    I("v_and_b32 v25, 1, v1")
    I("v_lshl_add_u32 v24, v25, 4, v24")
    I(f"s_mul_i32 s64, s19, {128*2752}")
    I("s_lshl_b32 s65, s74, 5")
    I("s_add_u32 s64, s64, s65")
    I("s_cmp_ge_u32 s74, 86")
    I("s_cselect_b32 s64, 0x40000000, s64")
    for n in range(4):
        I(f"buffer_load_dwordx4 v[{96+4*n}:{99+4*n}], v24, s[32:35], s64 offen{FNT}")
        I(f"buffer_load_dwordx4 v[{112+4*n}:{115+4*n}], v24, s[36:39], s64 offen{FNT}")
        if n != 3: I(f"s_add_u32 s64, s64, {32*2752}")
    I("s_barrier")
    I("s_lshl_b32 s76, s2, 17")
    I("s_lshl_b32 s64, s19, 15")
    I("s_add_u32 s76, s76, s64")
    for n in range(PF0):
        I(f"buffer_load_dwordx4 v[{160+4*(n%16)}:{163+4*(n%16)}], v4, s[44:47], s76 offen nt")
        I("s_add_u32 s76, s76, 1024")
    I(f"s_waitcnt vmcnt({8+PF0})")
    for k in range(8):
        I(f"v_lshlrev_b32 v{56+2*k}, 16, v{48+k}")
        I(f"v_and_b32 v{57+2*k}, 0xffff0000, v{48+k}")
    I("v_add_f32 v8, v56, v57"); I("v_add_f32 v9, v58, v59"); I("v_add_f32 v10, v60, v61"); I("v_add_f32 v11, v62, v63")
    I("v_add_f32 v8, v8, v64"); I("v_add_f32 v9, v9, v65"); I("v_add_f32 v10, v10, v66"); I("v_add_f32 v11, v11, v67")
    I("v_add_f32 v8, v8, v68"); I("v_add_f32 v9, v9, v69"); I("v_add_f32 v10, v10, v70"); I("v_add_f32 v11, v11, v71")
    I("v_add_f32 v8, v8, v9"); I("v_add_f32 v10, v10, v11"); I("v_add_f32 v8, v8, v10")
    dppred(8, 9, "v_add_f32", 32)
    I("v_mul_f32 v8, 0x3b000000, v8")
    for k in range(16):
        I(f"v_sub_f32 v{72+k}, v{56+k}, v8")
    I("v_mul_f32 v9, v72, v72"); I("v_mul_f32 v10, v73, v73"); I("v_mul_f32 v11, v74, v74"); I("v_mul_f32 v12, v75, v75")
    for k in range(4, 16, 4):
        for q in range(4):
            I(f"v_fmac_f32 v{9+q}, v{72+k+q}, v{72+k+q}")
    I("v_add_f32 v9, v9, v10"); I("v_add_f32 v11, v11, v12"); I("v_add_f32 v12, v9, v11")
    dppred(12, 9, "v_add_f32", 32)
    I("v_mul_f32 v12, 0x3b000000, v12")
    I("v_cvt_pk_bf16_f32 v9, v8, v12")
    I("v_lshlrev_b32 v8, 16, v9")
    I("v_and_b32 v12, 0xffff0000, v9")
    I(f"v_add_f32 v12, {f2u(1e-5):#x}, v12")
    I("v_cvt_pk_bf16_f32 v12, v12, v12")
    I("v_lshlrev_b32 v12, 16, v12")
    I("v_sqrt_f32 v12, v12")
    I("s_nop 0")
    I("v_cvt_pk_bf16_f32 v12, v12, v12")
    I("v_lshlrev_b32 v12, 16, v12")
    I("v_rcp_f32 v9, v12")
    for k in range(16):
        I(f"v_sub_f32 v{56+k}, v{56+k}, v8")
    for k in range(8):
        I(f"v_cvt_pk_bf16_f32 v{72+k}, v{56+2*k}, v{57+2*k}")
    for k in range(8):
        I(f"v_lshlrev_b32 v{56+2*k}, 16, v{72+k}")
        I(f"v_and_b32 v{57+2*k}, 0xffff0000, v{72+k}")
    for k in range(16):
        I(f"v_mul_f32 v{56+k}, v{56+k}, v9")
    for k in range(8):
        I(f"v_cvt_pk_bf16_f32 v{72+k}, v{56+2*k}, v{57+2*k}")
    I("v_lshrrev_b32 v10, 5, v1")
    I("s_lshl_b32 s64, s19, 1")
    I("v_add_u32 v10, s64, v10")
    I(f"v_mul_u32_u24 v10, {XNS}, v10")
    I("v_and_b32 v11, 31, v1")
    I("v_lshl_add_u32 v10, v11, 5, v10")
    I(f"v_add_u32 v10, {XN}, v10")
    I("ds_write_b128 v10, v[72:75]")
    I("ds_write_b128 v10, v[76:79] offset:16")
    if "TLB" in FL:
        c("touch pages of buffers used by later kernels (TLB / cache warm-up), wave 7 only")
        I("s_cmp_lg_u32 s18, 7")
        I("s_cbranch_scc1 K1_NOTLB")
        srd(48, 12, 13, 4194304)
        srd(52, 14, 15, 4194304)
        srd(56, 80, 81, 1409024)
        srd(60, 82, 83, 8192)
        I("v_lshlrev_b32 v20, 16, v1")
        I("buffer_load_dword v21, v20, s[48:51], 0 offen")
        I("buffer_load_dword v21, v20, s[52:55], 0 offen")
        I("buffer_load_dword v21, v20, s[56:59], 0 offen")
        I("buffer_load_dword v21, v20, s[60:63], 0 offen")
        I("v_mul_u32_u24 v20, 0x58000, v1")
        I("buffer_load_dword v21, v20, s[40:43], 0 offen")
        I("s_waitcnt vmcnt(0)")
        e("K1_NOTLB:")
    c("prefetch part 1 (no waits)")
    for n in range(PF1):
        I(f"buffer_load_dwordx4 v[{160+4*(n%16)}:{163+4*(n%16)}], v4, s[44:47], s76 offen nt")
        I("s_add_u32 s76, s76, 1024")
    I("s_waitcnt lgkmcnt(0)")
    I("s_barrier")
    I("s_cmp_ge_u32 s74, 86")
    I("s_cbranch_scc1 K1_BNOF")
    for ks in range(4):
        I(f"ds_read2_b64 v[{32+4*ks}:{35+4*ks}], v31 offset0:{ks*8} offset1:{ks*8+4}")
    I("s_lshl_b32 s66, s19, 12")
    I(f"s_add_u32 s66, s66, {FST}")
    I("v_add_u32 v25, s66, v4")
    I("v_lshlrev_b32 v26, 5, v28")
    I("v_lshl_add_u32 v26, v30, 3, v26")
    I("v_add_u32 v26, s66, v26")
    for r in range(8):
        I(f"v_mov_b32 v{8+r}, 0")
    I(f"s_waitcnt vmcnt({PF1+PF0})")
    for m in range(2):
        for n in range(4):
            I(f"ds_write_b128 v25, v[{96+16*m+4*n}:{99+16*m+4*n}] offset:{n*1024}")
        for ks in range(4):
            d = 128 + (m * 4 + ks) * 4
            I(f"ds_read_b64_tr_b16 v[{d}:{d+1}], v26 offset:{ks*1024}")
            I(f"ds_read_b64_tr_b16 v[{d+2}:{d+3}], v26 offset:{ks*1024+512}")
    I("s_waitcnt lgkmcnt(0)")
    for m in range(2):
        for ks in range(4):
            d = 128 + (m * 4 + ks) * 4
            I(f"v_mfma_f32_16x16x32_bf16 v[{8+4*m}:{11+4*m}], v[{32+4*ks}:{35+4*ks}], v[{d}:{d+3}], v[{8+4*m}:{11+4*m}]")
    I("v_lshlrev_b32 v17, 5, v1")
    I("v_add_u32 v18, s66, v17")
    I(f"v_add_u32 v17, {FST}, v17")
    I("s_nop 7")
    I("ds_write_b128 v18, v[8:11]")
    I("ds_write_b128 v18, v[12:15] offset:16")
    e("K1_BNOF:")
    if "PF3K1" in FL:
        srd(48, 12, 13, 4194304)
        srd(52, 14, 15, 4194304)
        srd(56, 80, 81, 1409024)
        I("v_and_b32 v56, 255, v0")
        I("v_lshrrev_b32 v57, 4, v56")
        I("v_lshlrev_b32 v56, 4, v56")
        I("s_lshl_b32 s64, s16, 17")
        I("s_lshl_b32 s65, s17, 14")
        I("s_add_u32 s64, s64, s65")
        for n in range(4):
            I(f"buffer_load_dwordx4 v[{240+4*n}:{243+4*n}], v56, s[52:55], s64 offen nt")
            I("s_add_u32 s64, s64, 4096")
        I("v_lshlrev_b32 v57, 13, v57")
        I("v_lshl_add_u32 v57, v3, 4, v57")
        I("s_lshl_b32 s64, s17, 19")
        I("s_lshl_b32 s65, s16, 8")
        I("s_add_u32 s64, s64, s65")
        for n in range(4):
            I(f"buffer_load_dwordx4 v[{240+4*n}:{243+4*n}], v57, s[48:51], s64 offen nt")
            I("s_add_u32 s64, s64, 131072")
        I("s_lshl_b32 s64, s2, 14")
        for n in range(4):
            I(f"buffer_load_dwordx4 v[{240+4*n}:{243+4*n}], v56, s[56:59], s64 offen nt")
            I("s_add_u32 s64, s64, 4096")
    for n in range(PF2):
        I(f"buffer_load_dwordx4 v[{160+4*(n%16)}:{163+4*(n%16)}], v4, s[44:47], s76 offen nt")
        I("s_add_u32 s76, s76, 1024")
    I("s_waitcnt lgkmcnt(0)")
    I("s_barrier")
    I("s_cmp_ge_u32 s74, 86")
    I("s_cbranch_scc1 K1_BEND")
    I("s_cmp_lg_u32 s18, 4")
    I("s_cbranch_scc1 K1_BEND")
    for w in range(1, 4):
        I(f"ds_read_b128 v[{96+8*w}:{99+8*w}], v17 offset:{w*4096}")
        I(f"ds_read_b128 v[{100+8*w}:{103+8*w}], v17 offset:{w*4096+16}")
    I("s_waitcnt lgkmcnt(0)")
    for w in range(1, 4):
        for r in range(8):
            I(f"v_add_f32 v{8+r}, v{8+r}, v{96+8*w+r}")
    for r in range(4):
        I(f"v_cvt_pk_bf16_f32 v{96+r}, v{8+r}, v{12+r}")
    for r in range(4):
        I(f"v_lshlrev_b32 v{8+r}, 16, v{96+r}")
        I(f"v_and_b32 v{12+r}, 0xffff0000, v{96+r}")
    I(f"s_mov_b32 s64, {f2u(0.044715):#x}")
    I(f"s_mov_b32 s65, {f2u(-2.0 * 0.7978845608028654 * 1.4426950408889634):#x}")
    for r in range(4):
        I(f"v_mul_f32 v{96+r}, v{8+r}, v{8+r}")
        I(f"v_mul_f32 v{96+r}, s64, v{96+r}")
        I(f"v_fma_f32 v{96+r}, v{96+r}, v{8+r}, v{8+r}")
        I(f"v_mul_f32 v{96+r}, s65, v{96+r}")
        I(f"v_exp_f32 v{96+r}, v{96+r}")
        I("s_nop 0")
        I(f"v_add_f32 v{96+r}, 1.0, v{96+r}")
        I(f"v_rcp_f32 v{96+r}, v{96+r}")
        I("s_nop 0")
        I(f"v_mul_f32 v{96+r}, v{96+r}, v{8+r}")
    for r in range(4):
        I(f"v_cvt_pk_bf16_f32 v{96+r}, v{96+r}, v{96+r}")
        I(f"v_lshlrev_b32 v{96+r}, 16, v{96+r}")
        I(f"v_mul_f32 v{96+r}, v{96+r}, v{12+r}")
        I(f"v_cvt_pk_bf16_f32 v{96+r}, v{96+r}, v{96+r}")
    I("v_mul_u32_u24 v100, 11008, v2")
    I("v_lshl_add_u32 v100, v3, 1, v100")
    I("v_cmp_lt_u32 vcc, 1, v2")
    I("v_mov_b32 v101, 0x7f000000")
    I("s_lshl_b32 s64, s74, 5")
    I(f"s_add_u32 s64, s64, {HH}")
    I("v_cndmask_b32 v100, v100, v101, vcc")
    I("v_add_u32 v101, 5504, v100")
    for r in range(4):
        I(f"buffer_store_short v{96+r}, v{100+(r>>1)}, s[40:43], s64 offen offset:{(r&1)*2752}")
    e("K1_BEND:")
    if "NOWAITPF" not in FL: I("s_waitcnt vmcnt(0)")
    if "TS" in FL:
        I("s_sub_u32 s18, s18, 4")
        I("s_add_u32 s2, s2, 256")
        ts(0, 4, r=120)
    e("K1_END:")
    I("s_endpgm")

def k2():
    STG = 131072
    PB = STG; MX = STG + 8192; LB = MX + 512
    kstart("k2_kernel")
    I("s_cmp_ge_u32 s2, 256")
    I("s_cbranch_scc1 K2_END")
    I("s_load_dwordx2 s[4:5], s[0:1], 8")
    I("s_load_dwordx4 s[12:15], s[0:1], 32")
    I("s_load_dwordx2 s[72:73], s[0:1], 72")
    I("s_load_dwordx2 s[78:79], s[0:1], 96")
    common_ids()
    I("s_and_b32 s19, s18, 3")
    I("v_lshlrev_b32 v4, 4, v1")
    I("v_and_b32 v8, 31, v1")
    I("v_lshrrev_b32 v9, 5, v1")
    I("s_waitcnt lgkmcnt(0)")
    srd(40, 78, 79, WSSZ)
    srd(44, 4, 5, 33554432)
    srd(48, 12, 13, 4194304)
    srd(52, 14, 15, 4194304)
    srd(56, 72, 73, 1409024)
    I("s_cmp_ge_u32 s18, 4")
    I("s_cbranch_scc1 K2_B")
    c("==== A waves: c_kv DMA (window major), QK")
    ht(1, 0, "c")
    ts(1, 0)
    if "K2ROW" in FL:
        I("s_lshl_b32 s64, s2, 17")
        I("s_lshl_b32 s65, s19, 15")
        I("s_add_u32 s64, s64, s65")
        I("s_mov_b32 m0, s65")
        for kk in range(32):
            f = ((kk & 3) << 2) | ((kk >> 2) & 3)
            I(f"v_xor_b32 v{10 + (kk & 3)}, {f*16}, v4")
            I(f"buffer_load_dwordx4 v{10 + (kk & 3)}, s[44:47], s64 offen{K2NT} lds")
            if kk != 31:
                I("s_add_u32 m0, m0, 1024")
                I("s_add_u32 s64, s64, 1024")
    else:
        I("v_lshlrev_b32 v5, 2, v2")
        I("v_xor_b32 v5, v5, v3")
        I("v_lshlrev_b32 v5, 4, v5")
        I("v_lshl_add_u32 v5, v2, 10, v5")
        for q in range(4):
            I(f"v_xor_b32 v{10+q}, {q*16}, v5")
        I("s_lshl_b32 s64, s2, 17")
        I("s_lshl_b32 s65, s19, 15")
        I("s_add_u32 s64, s64, s65")
        I("s_lshl_b32 s65, s19, 13")
        for win in range(4):
            I(f"s_add_u32 s66, s64, {win*256}")
            I(f"s_add_u32 s67, s65, {win*32768}")
            I("s_mov_b32 m0, s67")
            I("s_nop 0")
            for kk in range(8):
                I(f"buffer_load_dwordx4 v{10+(kk&3)}, s[44:47], s66 offen{K2NT} lds")
                if kk != 7:
                    I("s_add_u32 m0, m0, 1024")
                    I("s_add_u32 s66, s66, 4096")
    c("Q frag read addrs")
    I("v_and_b32 v27, 15, v8")
    I("v_xor_b32 v27, v27, v9")
    I("v_lshlrev_b32 v27, 4, v27")
    I("v_lshl_add_u32 v27, v8, 10, v27")
    I(f"v_add_u32 v27, {STG}, v27")
    for q in range(8):
        I(f"v_xor_b32 v{40+q}, {q*32}, v27")
    c("QK addrs v[12:19]/v[20..27]")
    I("v_and_b32 v11, 3, v8")
    I("v_lshlrev_b32 v11, 2, v11")
    I("v_bfe_u32 v12, v8, 2, 2")
    I("v_or_b32 v11, v11, v12")
    I("v_xor_b32 v11, v11, v9")
    I("v_lshlrev_b32 v11, 4, v11")
    I(f"v_lshl_add_u32 v11, v8, {10 if 'K2ROW' in FL else 8}, v11")
    I("v_add_u32 v11, s65, v11")
    for q in range(8):
        I(f"v_xor_b32 v{48+q}, {q*32}, v11")
        I(f"v_add_u32 v{56+q}, 0x10000, v{48+q}")
    for r in range(16):
        I(f"v_mov_b32 v{20+r}, 0")
    I("s_barrier")
    for st in range(32):
        I(f"ds_read_b128 v[{64+4*st}:{67+4*st}], v{40+(st&7)} offset:{(st>>3)*256}")
        if st == 15: I("s_waitcnt lgkmcnt(0)")
    I("s_waitcnt lgkmcnt(0)")
    I("s_barrier")
    for win in range(4):
        if "K2ROW" in FL:
            if win == 0:
                I("s_waitcnt vmcnt(0) lgkmcnt(0)")
                ts(1, 1)
            for q in range(8):
                I(f"ds_read_b128 v[{192+4*q}:{195+4*q}], v{48+q} offset:{win*256}")
        else:
            I(f"s_waitcnt vmcnt({8*(3-win)}) lgkmcnt(0)")
            if win == 3: ts(1, 1)
            for q in range(8):
                a = (48 if win < 2 else 56) + q
                I(f"ds_read_b128 v[{192+4*q}:{195+4*q}], v{a} offset:{(win&1)*32768}")
        for q in range(8):
            st = win * 8 + q
            I(f"s_waitcnt lgkmcnt({7-q})")
            I(f"v_mfma_f32_32x32x16_bf16 v[20:35], v[{192+4*q}:{195+4*q}], v[{64+4*st}:{67+4*st}], v[20:35]")
    I("v_lshlrev_b32 v38, 4, v8")
    I("s_lshl_b32 s64, s19, 2")
    I(f"s_add_u32 s64, s64, {MX}")
    I("v_add_u32 v39, s64, v38")
    I("s_lshl_b32 s64, s19, 11")
    I(f"s_add_u32 s64, s64, {PB}")
    I("v_add_u32 v42, s64, v4")
    I("s_nop 7")
    I("v_max3_f32 v36, v20, v21, v22")
    for r in range(3, 15, 2):
        I(f"v_max3_f32 v36, v36, v{20+r}, v{21+r}")
    I("v_max_f32 v36, v36, v35")
    xor32(36, 37, "v_max_f32")
    I("ds_write_b32 v39, v36")
    I("s_waitcnt lgkmcnt(0)")
    I("s_barrier")
    I(f"v_add_u32 v40, {MX}, v38")
    I("ds_read_b128 v[44:47], v40")
    I(f"s_mov_b32 s64, {f2u(SC):#x}")
    I("s_waitcnt lgkmcnt(0)")
    I("v_max3_f32 v36, v44, v45, v46")
    I("v_max_f32 v36, v36, v47")
    I("v_mul_f32 v36, s64, v36")
    for r in range(16):
        I(f"v_fma_f32 v{20+r}, v{20+r}, s64, -v36")
    for r in range(16):
        I(f"v_exp_f32 v{20+r}, v{20+r}")
    I("s_nop 0")
    for r in range(8):
        I(f"v_cvt_pk_bf16_f32 v{48+r}, v{20+2*r}, v{21+2*r}")
    I("ds_write_b128 v42, v[48:51]")
    I("ds_write_b128 v42, v[52:55] offset:1024")
    I("v_add_f32 v37, v20, v21"); I("v_add_f32 v41, v22, v23"); I("v_add_f32 v43, v24, v25"); I("v_add_f32 v44, v26, v27")
    I("v_add_f32 v37, v37, v28"); I("v_add_f32 v41, v41, v29"); I("v_add_f32 v43, v43, v30"); I("v_add_f32 v44, v44, v31")
    I("v_add_f32 v37, v37, v32"); I("v_add_f32 v41, v41, v33"); I("v_add_f32 v43, v43, v34"); I("v_add_f32 v44, v44, v35")
    I("v_add_f32 v37, v37, v41"); I("v_add_f32 v43, v43, v44"); I("v_add_f32 v37, v37, v43")
    xor32(37, 41, "v_add_f32")
    I(f"v_add_u32 v39, {LB-MX}, v39")
    I("ds_write_b32 v39, v37")
    I("s_branch K2_PV")
    c("==== B waves: Q staging, K3 weight prefetch")
    e("K2_B:")
    I("s_lshl_b32 s64, s17, 15")
    I("s_lshl_b32 s65, s19, 13")
    I("s_add_u32 s64, s64, s65")
    for n in range(8):
        I(f"buffer_load_dwordx4 v[{192+4*n}:{195+4*n}], v4, s[40:43], s64 offen offset:{(n&3)*1024}")
        if n == 3: I("s_add_u32 s64, s64, 4096")
    I("s_and_b32 s64, s19, 1")
    I("s_lshl_b32 s64, s64, 7")
    I("v_xor_b32 v26, s64, v4")
    I(f"s_add_u32 s64, s65, {STG}")
    I("v_add_u32 v26, s64, v26")
    for n in range(8):
        I(f"v_xor_b32 v{16+n}, {n*16}, v26")
    I("v_lshlrev_b32 v38, 4, v8")
    I("s_waitcnt vmcnt(0)")
    for n in range(8):
        I(f"ds_write_b128 v{16+n}, v[{192+4*n}:{195+4*n}] offset:{n*1024}")
    I("s_waitcnt lgkmcnt(0)")
    I("s_barrier")
    I("s_barrier")
    if "PF3LATE" in FL:
        I("s_barrier")
    if "NOPF3" not in FL:
        I("v_and_b32 v56, 255, v0")
        I("v_lshrrev_b32 v57, 4, v56")
        I("v_lshlrev_b32 v56, 4, v56")
        I("s_lshl_b32 s64, s16, 17")
        I("s_lshl_b32 s65, s17, 14")
        I("s_add_u32 s64, s64, s65")
        for n in range(4):
            I(f"buffer_load_dwordx4 v[{240+4*n}:{243+4*n}], v56, s[52:55], s64 offen nt")
            I("s_add_u32 s64, s64, 4096")
        I("v_lshlrev_b32 v57, 13, v57")
        I("v_lshl_add_u32 v57, v3, 4, v57")
        I("s_lshl_b32 s64, s17, 19")
        I("s_lshl_b32 s65, s16, 8")
        I("s_add_u32 s64, s64, s65")
        for n in range(4):
            I(f"buffer_load_dwordx4 v[{240+4*n}:{243+4*n}], v57, s[48:51], s64 offen nt")
            I("s_add_u32 s64, s64, 131072")
        I("s_lshl_b32 s64, s2, 14")
        for n in range(4):
            I(f"buffer_load_dwordx4 v[{240+4*n}:{243+4*n}], v56, s[56:59], s64 offen nt")
            I("s_add_u32 s64, s64, 4096")
    if "PF3LATE" not in FL:
        I("s_barrier")
    c("==== PV on 8 waves: window = w8>>1, half = w8&1")
    e("K2_PV:")
    I("v_lshrrev_b32 v44, 2, v3")
    I("v_bfe_u32 v45, v1, 4, 1")
    I("v_lshl_add_u32 v46, v9, 2, v44")
    I("v_bfe_u32 v47, v3, 1, 1")
    I("v_lshl_add_u32 v47, v45, 1, v47")
    I("v_lshl_add_u32 v56, v44, 2, v9")
    I("v_xor_b32 v47, v47, v56")
    I("v_lshlrev_b32 v47, 4, v47")
    I("v_and_b32 v56, 1, v3")
    I("v_lshl_add_u32 v47, v56, 3, v47")
    I(f"v_lshl_add_u32 v47, v46, {10 if 'K2ROW' in FL else 8}, v47")
    I("s_lshr_b32 s64, s18, 1")
    I(f"s_lshl_b32 s64, s64, {8 if 'K2ROW' in FL else 15}")
    I("v_add_u32 v47, s64, v47")
    I("s_and_b32 s64, s18, 1")
    I("s_lshl_b32 s64, s64, 7")
    I("v_xor_b32 v47, s64, v47")
    for nt in range(2):
        for sec in range(2):
            x = (nt << 6) ^ (sec * 32)
            I(f"v_xor_b32 v{224+nt*2+sec}, {x}, v47")
            if sec: I(f"v_add_u32 v{224+nt*2+sec}, {8192 if 'K2ROW' in FL else 2048}, v{224+nt*2+sec}")
            if "K2ROW" in FL: I(f"v_add_u32 v{228+nt*2+sec}, 0x10000, v{224+nt*2+sec}")
    I(f"v_add_u32 v42, {PB}, v4")
    I(f"v_add_u32 v40, {LB}, v38")
    for r in range(32):
        I(f"v_mov_b32 v{128+r}, 0")
    c("O staging addrs")
    I("v_and_b32 v60, 7, v8")
    I("v_lshlrev_b32 v60, 4, v60")
    I("v_lshl_add_u32 v60, v9, 3, v60")
    I("v_lshl_add_u32 v60, v8, 7, v60")
    I("s_lshl_b32 s64, s18, 12")
    I("v_add_u32 v60, s64, v60")
    I("v_lshrrev_b32 v61, 3, v1")
    I("v_and_b32 v62, 7, v1")
    I("v_xor_b32 v63, v61, v62")
    I("v_lshlrev_b32 v63, 4, v63")
    I("v_lshl_add_u32 v63, v61, 7, v63")
    I("v_add_u32 v63, s64, v63")
    I("v_lshlrev_b32 v61, 18, v61")
    I("v_lshl_add_u32 v61, v62, 4, v61")
    I("s_lshl_b32 s68, s2, 7")
    I("s_lshl_b32 s65, s18, 15")
    I("s_add_u32 s68, s68, s65")
    I(f"s_add_u32 s68, s68, {OPB}")
    I("s_waitcnt lgkmcnt(0)")
    I("s_barrier")
    for t in range(8):
        I(f"ds_read_b128 v[{96+4*t}:{99+4*t}], v42 offset:{t*1024}")
    I("ds_read_b128 v[44:47], v40")
    for tp in range(4):
        for t2 in range(2):
            t = tp * 2 + t2
            for nt in range(2):
                for sec in range(2):
                    d = 192 + t2 * 8 + nt * 4 + sec * 2
                    if "K2ROW" in FL:
                        I(f"ds_read_b64_tr_b16 v[{d}:{d+1}], v{(224 if t < 4 else 228)+nt*2+sec} offset:{(t&3)*16384}")
                    else:
                        I(f"ds_read_b64_tr_b16 v[{d}:{d+1}], v{224+nt*2+sec} offset:{t*4096}")
        for t2 in range(2):
            t = tp * 2 + t2
            for nt in range(2):
                d = 192 + t2 * 8 + nt * 4
                I(f"s_waitcnt lgkmcnt({6-4*t2-2*nt})")
                I(f"v_mfma_f32_32x32x16_bf16 v[{128+16*nt}:{143+16*nt}], v[{d}:{d+3}], v[{96+4*t}:{99+4*t}], v[{128+16*nt}:{143+16*nt}]")
    I("s_cmp_lg_u32 s18, 0")
    I("s_cbranch_scc1 K2_NOSTAT")
    ts(1, 2, r=250)
    I("v_add_f32 v37, v44, v45")
    I("v_add_f32 v46, v46, v47")
    I("v_add_f32 v37, v37, v46")
    I("v_lshlrev_b32 v40, 11, v8")
    I("v_cmp_lt_u32 vcc, 0, v9")
    I("v_mov_b32 v41, 0x7f000000")
    I("s_lshl_b32 s64, s2, 3")
    I(f"s_add_u32 s64, s64, {STATS}")
    I("v_cndmask_b32 v40, v40, v41, vcc")
    I("buffer_store_dwordx2 v[36:37], v40, s[40:43], s64 offen")
    e("K2_NOSTAT:")
    I("s_nop 7")
    I("s_nop 3")
    for nt in range(2):
        for q in range(4):
            b = 128 + 16 * nt + 4 * q
            k = nt * 4 + q
            I(f"v_cvt_pk_bf16_f32 v{160+2*k}, v{b}, v{b+1}")
            I(f"v_cvt_pk_bf16_f32 v{161+2*k}, v{b+2}, v{b+3}")
            I(f"v_xor_b32 v{176+k}, {k*16}, v60")
    I("s_barrier")
    for k in range(8):
        I(f"ds_write_b64 v{176+k}, v[{160+2*k}:{161+2*k}]")
    for n in range(4):
        I(f"ds_read_b128 v[{64+4*n}:{67+4*n}], v63 offset:{n*1024}")
    for n in range(4):
        I(f"s_waitcnt lgkmcnt({3-n})")
        I(f"buffer_store_dwordx4 v[{64+4*n}:{67+4*n}], v61, s[40:43], s68 offen{PST}")
        if n != 3: I(f"s_add_u32 s68, s68, {8*262144}")
    ht(1, 1, "d")
    if "TS" in FL:
        I("s_waitcnt vmcnt(0)")
        I("s_cmp_ge_u32 s18, 4")
        I("s_cbranch_scc1 K2_END")
        ts(1, 3, r=250)
    e("K2_END:")
    I("s_endpgm")

def k3():
    WUV = 65536; COEF = WUV + 32768; CL = COEF + 1024; CLS = 272; CX = CL + 8 * CLS; CXS = 272
    kstart("k3_kernel")
    I("s_cmp_ge_u32 s2, 256")
    I("s_cbranch_scc1 K3_END")
    I("s_load_dwordx4 s[12:15], s[0:1], 32")
    I("s_load_dwordx2 s[72:73], s[0:1], 72")
    I("s_load_dwordx2 s[78:79], s[0:1], 96")
    common_ids()
    I("s_and_b32 s19, s18, 3")
    I("s_and_b32 s17, s17, 3")
    I("s_lshr_b32 s20, s2, 7")
    I("s_and_b32 s21, s2, 127")
    I("s_waitcnt lgkmcnt(0)")
    srd(40, 78, 79, WSSZ)
    srd(48, 12, 13, 4194304)
    srd(52, 14, 15, 4194304)
    srd(56, 72, 73, 1409024)
    I("v_lshlrev_b32 v4, 4, v1")
    I("v_and_b32 v48, 7, v1")
    I("v_mul_u32_u24 v18, 2752, v48")
    I("v_lshl_add_u32 v18, v2, 3, v18")
    I("s_lshl_b32 s64, s21, 5")
    I(f"s_add_u32 s64, s64, {HH}")
    I("s_cmp_ge_u32 s18, 4")
    I("s_cbranch_scc1 K3_B")
    c("==== group A: combine")
    ht(2, 0, "e")
    if "TS" in FL: ts(2, 0)
    I("v_lshlrev_b32 v5, 3, v0")
    I("s_lshl_b32 s65, s16, 11")
    I(f"s_add_u32 s65, s65, {STATS}")
    I("buffer_load_dwordx2 v[8:9], v5, s[40:43], s65 offen")
    I("v_lshrrev_b32 v6, 4, v0")
    I("v_lshlrev_b32 v7, 6, v6")
    I("v_lshlrev_b32 v6, 11, v6")
    I("v_lshl_add_u32 v6, v48, 4, v6")
    I("v_lshrrev_b32 v10, 3, v3")
    I("v_lshl_add_u32 v6, v10, 15, v6")
    I("s_lshl_b32 s65, s16, 2")
    I("s_add_u32 s65, s65, s17")
    I("s_lshl_b32 s65, s65, 16")
    I(f"s_add_u32 s65, s65, {OPB}")
    for k in range(16):
        I(f"buffer_load_dwordx4 v[{64+4*k}:{67+4*k}], v6, s[40:43], s65 offen offset:{k*128}")
    I("buffer_load_dwordx2 v[144:145], v18, s[40:43], s64 offen")
    I("s_waitcnt vmcnt(17)")
    I("v_mov_b32 v20, v8")
    dppred(20, 21, "v_max_f32", 32)
    I("v_sub_f32 v20, v8, v20")
    I("v_exp_f32 v20, v20")
    I("s_nop 0")
    I("v_mul_f32 v22, v20, v9")
    dppred(22, 21, "v_add_f32", 32)
    I("v_rcp_f32 v22, v22")
    I("s_nop 0")
    I("v_mul_f32 v20, v20, v22")
    I("v_lshlrev_b32 v21, 2, v0")
    I(f"v_add_u32 v21, {COEF}, v21")
    I("ds_write_b32 v21, v20")
    I(f"v_add_u32 v7, {COEF}, v7")
    for q in range(4):
        I(f"ds_read_b128 v[{24+4*q}:{27+4*q}], v7 offset:{16*q}")
    for q in range(8):
        I(f"v_mov_b32 v{40+q}, 0")
    I("s_waitcnt lgkmcnt(0)")
    for k in range(16):
        I(f"s_waitcnt vmcnt({16-k})")
        for q in range(4):
            I(f"v_lshlrev_b32 v56, 16, v{64+4*k+q}")
            I(f"v_and_b32 v57, 0xffff0000, v{64+4*k+q}")
            I(f"v_fmac_f32 v{40+2*q}, v{24+k}, v56")
            I(f"v_fmac_f32 v{41+2*q}, v{24+k}, v57")
    for q in range(8):
        I(f"v_mov_b32 v{56+q}, v{40+q}")
    I("s_nop 1")
    for q in range(8):
        I(f"v_permlane16_swap_b32 v{40+q}, v{56+q}")
    I("s_nop 1")
    for q in range(8):
        I(f"v_add_f32 v{40+q}, v{40+q}, v{56+q}")
    for q in range(4):
        I(f"v_cvt_pk_bf16_f32 v{56+q}, v{40+2*q}, v{41+2*q}")
    I("v_lshrrev_b32 v49, 5, v0")
    I(f"v_mul_u32_u24 v49, {CLS}, v49")
    I("v_lshl_add_u32 v49, v3, 4, v49")
    I(f"v_add_u32 v49, {CL}, v49")
    I("ds_write_b128 v49, v[56:59]")
    if "TS" in FL: ts(2, 1)
    I(f"v_mul_u32_u24 v49, {CLS}, v48")
    I("v_lshl_add_u32 v49, v2, 3, v49")
    I(f"v_add_u32 v49, {CL}, v49")
    I("v_lshrrev_b32 v50, 2, v3")
    I("v_lshl_add_u32 v51, v2, 2, v50")
    I("v_and_b32 v52, 7, v51")
    I("s_lshl_b32 s64, s19, 1")
    I("v_xor_b32 v53, s64, v52")
    I("v_lshlrev_b32 v54, 8, v51")
    I("v_lshl_add_u32 v54, v53, 5, v54")
    I("v_and_b32 v55, 3, v3")
    I("v_lshl_add_u32 v54, v55, 3, v54")
    I(f"v_add_u32 v54, {WUV}, v54")
    I("v_xor_b32 v55, 32, v54")
    for r in range(8):
        I(f"v_mov_b32 v{120+r}, 0")
    I("s_waitcnt lgkmcnt(0)")
    I("s_barrier")
    for ks in range(4):
        I(f"ds_read2_b64 v[{64+4*ks}:{67+4*ks}], v49 offset0:{ks*8} offset1:{ks*8+4}")
    for ks in range(4):
        for nt in range(2):
            d = 80 + (ks * 2 + nt) * 4
            I(f"ds_read_b64_tr_b16 v[{d}:{d+1}], v{54+nt} offset:{ks*8192}")
            I(f"ds_read_b64_tr_b16 v[{d+2}:{d+3}], v{54+nt} offset:{ks*8192+4096}")
    for ks in range(4):
        for nt in range(2):
            d = 80 + (ks * 2 + nt) * 4
            I(f"s_waitcnt lgkmcnt({14-2*(ks*2+nt)})")
            I(f"v_mfma_f32_16x16x32_bf16 v[{120+4*nt}:{123+4*nt}], v[{64+4*ks}:{67+4*ks}], v[{d}:{d+3}], v[{120+4*nt}:{123+4*nt}]")
    I(f"v_mul_u32_u24 v56, {4*CXS}, v2")
    I("v_lshl_add_u32 v56, v3, 1, v56")
    I("s_lshl_b32 s64, s19, 6")
    I(f"s_add_u32 s64, s64, {CX}")
    I("v_add_u32 v56, s64, v56")
    I("s_nop 7")
    for nt in range(2):
        I(f"v_cvt_pk_bf16_f32 v{96+2*nt}, v{120+4*nt}, v{121+4*nt}")
        I(f"v_cvt_pk_bf16_f32 v{97+2*nt}, v{122+4*nt}, v{123+4*nt}")
    for nt in range(2):
        I(f"ds_write_b16 v56, v{96+2*nt} offset:{nt*32}")
        I(f"ds_write_b16_d16_hi v56, v{96+2*nt} offset:{nt*32+CXS}")
        I(f"ds_write_b16 v56, v{97+2*nt} offset:{nt*32+2*CXS}")
        I(f"ds_write_b16_d16_hi v56, v{97+2*nt} offset:{nt*32+3*CXS}")
    I("s_waitcnt vmcnt(0) lgkmcnt(0)")
    I("s_barrier")
    I("s_branch K3_O")
    c("==== group B: weight loads")
    e("K3_B:")
    I("buffer_load_dwordx2 v[144:145], v18, s[40:43], s64 offen")
    I("v_lshlrev_b32 v10, 1, v2")
    I("v_xor_b32 v10, v10, v3")
    I("v_lshlrev_b32 v10, 4, v10")
    I("v_lshl_add_u32 v10, v2, 13, v10")
    I("v_xor_b32 v11, 0x80, v10")
    I("s_lshl_b32 s64, s17, 7")
    I("s_lshl_b32 s65, s19, 5")
    I("s_add_u32 s64, s64, s65")
    I("s_lshl_b32 s64, s64, 13")
    I("s_lshl_b32 s66, s16, 8")
    I("s_add_u32 s64, s64, s66")
    I("s_lshl_b32 s65, s65, 8")
    I(f"s_add_u32 s65, s65, {WUV}")
    I("s_mov_b32 m0, s65")
    I("s_nop 0")
    for i in range(8):
        I(f"buffer_load_dwordx4 v{10 + (i & 1)}, s[48:51], s64 offen nt lds")
        if i != 7:
            I("s_add_u32 m0, m0, 1024")
            I("s_add_u32 s64, s64, 32768")
    c("w_o half rows: 2 rows x 512B per instr")
    I("v_lshrrev_b32 v12, 5, v1")
    I("v_and_b32 v13, 31, v1")
    I("v_lshlrev_b32 v14, 1, v12")
    I("v_xor_b32 v13, v13, v14")
    I("v_lshlrev_b32 v13, 4, v13")
    I("v_lshl_add_u32 v13, v12, 10, v13")
    for q in range(4):
        I(f"v_xor_b32 v{20+q}, {q*64}, v13")
    I("s_lshl_b32 s64, s16, 17")
    I("s_lshl_b32 s65, s19, 15")
    I("s_add_u32 s64, s64, s65")
    I("s_lshl_b32 s65, s20, 9")
    I("s_add_u32 s64, s64, s65")
    I("s_lshl_b32 s65, s19, 14")
    I("s_mov_b32 m0, s65")
    I("s_nop 0")
    for i in range(16):
        I(f"buffer_load_dwordx4 v{20 + (i & 3)}, s[52:55], s64 offen nt lds")
        if i != 15:
            I("s_add_u32 m0, m0, 1024")
            I("s_add_u32 s64, s64, 2048")
    c("w_down rows 16t + 4w + 2n + rsub, half nh")
    I("v_and_b32 v15, 31, v1")
    I("v_lshlrev_b32 v15, 4, v15")
    I("v_lshl_add_u32 v15, v12, 10, v15")
    I("s_lshl_b32 s64, s21, 14")
    I("s_lshl_b32 s65, s19, 12")
    I("s_add_u32 s64, s64, s65")
    I("s_lshl_b32 s65, s20, 9")
    I("s_add_u32 s64, s64, s65")
    for n in range(2):
        I(f"buffer_load_dwordx4 v[{128+4*n}:{131+4*n}], v15, s[56:59], s64 offen offset:{n*2048} nt")
    I("v_lshrrev_b32 v50, 2, v3")
    I("v_lshl_add_u32 v51, v2, 2, v50")
    I("v_and_b32 v52, 7, v51")
    c("lds addr for w_down: row=4w+2n+rsub ; (row&7) = 4(w&1)+2n+rsub")
    I("v_and_b32 v57, 31, v1")
    I("v_xor_b32 v57, v57, v14")
    I("s_and_b32 s64, s19, 1")
    I("s_lshl_b32 s64, s64, 3")
    I("v_xor_b32 v57, s64, v57")
    I("v_lshlrev_b32 v57, 4, v57")
    I("v_lshl_add_u32 v57, v12, 9, v57")
    I("s_lshl_b32 s64, s19, 11")
    I(f"s_add_u32 s64, s64, {WUV}")
    I("v_add_u32 v57, s64, v57")
    I("v_xor_b32 v58, 64, v57")
    I("s_waitcnt vmcnt(18)")
    I("s_barrier")
    I("s_waitcnt vmcnt(0)")
    I("s_barrier")
    for n in range(2):
        I(f"ds_write_b128 v{57+n}, v[{128+4*n}:{131+4*n}] offset:{n*1024}")
    c("==== o-proj on 8 waves: 32 cols each")
    e("K3_O:")
    I(f"v_mul_u32_u24 v49, {CXS}, v48")
    I("v_lshl_add_u32 v49, v2, 3, v49")
    I(f"v_add_u32 v49, {CX}, v49")
    for ks in range(4):
        I(f"ds_read2_b64 v[{64+4*ks}:{67+4*ks}], v49 offset0:{ks*8} offset1:{ks*8+4}")
    I("v_lshlrev_b32 v54, 9, v51")
    I("v_lshl_add_u32 v54, v52, 5, v54")
    I("v_and_b32 v55, 3, v3")
    I("v_lshl_add_u32 v54, v55, 3, v54")
    I("s_lshr_b32 s64, s18, 2")
    I("s_lshl_b32 s64, s64, 8")
    I("v_add_u32 v54, s64, v54")
    I("s_and_b32 s64, s18, 3")
    I("s_lshl_b32 s64, s64, 6")
    I("v_xor_b32 v100, s64, v54")
    I("v_xor_b32 v101, 32, v100")
    for r in range(8):
        I(f"v_mov_b32 v{160+r}, 0")
    for ks in range(4):
        for nt in range(2):
            d = 192 + (ks * 2 + nt) * 4
            I(f"ds_read_b64_tr_b16 v[{d}:{d+1}], v{100+nt} offset:{ks*16384}")
            I(f"ds_read_b64_tr_b16 v[{d+2}:{d+3}], v{100+nt} offset:{ks*16384+8192}")
    for ks in range(4):
        for nt in range(2):
            d = 192 + (ks * 2 + nt) * 4
            I(f"s_waitcnt lgkmcnt({14-2*(ks*2+nt)})")
            I(f"v_mfma_f32_16x16x32_bf16 v[{160+4*nt}:{163+4*nt}], v[{64+4*ks}:{67+4*ks}], v[{d}:{d+3}], v[{160+4*nt}:{163+4*nt}]")
    I("s_cmp_ge_u32 s21, 86")
    I("s_cbranch_scc1 K3_NOFFN2")
    I("s_barrier")
    for nt in range(2):
        I(f"v_add_u32 v{100+nt}, {WUV}, v{100+nt}")
    for nt in range(2):
        d = 192 + nt * 2
        I(f"ds_read_b64_tr_b16 v[{d}:{d+1}], v{100+nt}")
    I("s_waitcnt lgkmcnt(0)")
    for nt in range(2):
        d = 192 + nt * 2
        I(f"v_mfma_f32_16x16x16_bf16 v[{160+4*nt}:{163+4*nt}], v[144:145], v[{d}:{d+1}], v[{160+4*nt}:{163+4*nt}]")
    e("K3_NOFFN2:")
    I("v_lshlrev_b32 v60, 12, v2")
    I("v_lshl_add_u32 v60, v3, 2, v60")
    I("v_cmp_lt_u32 vcc, 1, v2")
    I("v_mov_b32 v61, 0x7f000000")
    I("s_lshl_b32 s64, s2, 13")
    I("s_lshl_b32 s65, s18, 7")
    I("v_cndmask_b32 v60, v60, v61, vcc")
    I("s_add_u32 s64, s64, s65")
    I(f"s_add_u32 s64, s64, {OUTP}")
    I("s_nop 7")
    for nt in range(2):
        for r in range(4):
            I(f"buffer_store_dword v{160+4*nt+r}, v60, s[40:43], s64 offen offset:{r*1024+nt*64}{OST}")
    ht(2, 1, "f")
    if "TS" in FL:
        I("s_waitcnt vmcnt(0)")
        I("s_cmp_ge_u32 s18, 4")
        I("s_cbranch_scc1 K3_END")
        ts(2, 3)
    e("K3_END:")
    I("s_endpgm")

def k4():
    kstart("k4_kernel")
    I("s_cmp_ge_u32 s2, 64")
    I("s_cbranch_scc1 K4_END")
    I("s_load_dwordx2 s[4:5], s[0:1], 0")
    I("s_load_dwordx2 s[8:9], s[0:1], 80")
    I("s_load_dwordx2 s[6:7], s[0:1], 96")
    I("v_and_b32 v1, 15, v0")
    I("v_lshrrev_b32 v2, 4, v0")
    I("v_lshrrev_b32 v4, 6, v0")
    I("v_lshlrev_b32 v3, 16, v2")
    I("v_readfirstlane_b32 s18, v4")
    I("v_lshl_add_u32 v3, v1, 4, v3")
    I("s_lshr_b32 s16, s2, 3")
    I("s_lshl_b32 s16, s16, 10")
    I("s_and_b32 s19, s2, 3")
    I("s_lshl_b32 s19, s19, 8")
    I("s_add_u32 s16, s16, s19")
    I("s_bfe_u32 s19, s2, 0x10002")
    I("s_lshl_b32 s19, s19, 20")
    I("s_add_u32 s16, s16, s19")
    I("s_waitcnt lgkmcnt(0)")
    srd(20, 4, 5, 8192)
    srd(24, 8, 9, 8192)
    srd(40, 6, 7, WSSZ)
    ts(3, 0, r=76)
    if "HT" in FL:
        I("s_memrealtime s[92:93]")
    I(f"s_add_u32 s44, s16, {OUTP}")
    for k in range(8):
        I(f"buffer_load_dwordx4 v[{8+4*k}:{11+4*k}], v3, s[40:43], s44 offen")
        if k != 7: I("s_add_u32 s44, s44, 8192")
    I("v_lshlrev_b32 v4, 3, v1")
    I("s_lshl_b32 s17, s2, 7")
    I("buffer_load_dwordx2 v[72:73], v4, s[20:23], s17 offen")
    I("s_waitcnt vmcnt(1)")
    for k in range(1, 8):
        for q in range(4):
            I(f"v_add_f32 v{8+q}, v{8+q}, v{8+4*k+q}")
    for q in range(4):
        I(f"v_mov_b32 v{12+q}, v{8+q}")
    I("s_nop 1")
    for q in range(4):
        I(f"v_permlane16_swap_b32 v{8+q}, v{12+q}")
    I("s_nop 1")
    for q in range(4):
        I(f"v_add_f32 v{8+q}, v{8+q}, v{12+q}")
    for q in range(4):
        I(f"v_mov_b32 v{12+q}, v{8+q}")
    I("s_nop 1")
    for q in range(4):
        I(f"v_permlane32_swap_b32 v{8+q}, v{12+q}")
    I("s_nop 1")
    for q in range(4):
        I(f"v_add_f32 v{8+q}, v{8+q}, v{12+q}")
    I("v_lshlrev_b32 v5, 4, v0")
    I("ds_write_b128 v5, v[8:11]")
    I("s_waitcnt lgkmcnt(0)")
    I("s_barrier")
    I("v_lshlrev_b32 v5, 4, v1")
    for w in range(4):
        I(f"ds_read_b128 v[{16+4*w}:{19+4*w}], v5 offset:{w*1024}")
    I("s_waitcnt vmcnt(0) lgkmcnt(0)")
    for q in range(4):
        I(f"v_add_f32 v{16+q}, v{16+q}, v{20+q}")
        I(f"v_add_f32 v{24+q}, v{24+q}, v{28+q}")
        I(f"v_add_f32 v{16+q}, v{16+q}, v{24+q}")
    I("v_lshlrev_b32 v20, 16, v72")
    I("v_and_b32 v21, 0xffff0000, v72")
    I("v_lshlrev_b32 v22, 16, v73")
    I("v_and_b32 v23, 0xffff0000, v73")
    for q in range(4):
        I(f"v_add_f32 v{16+q}, v{16+q}, v{20+q}")
    I("v_cvt_pk_bf16_f32 v24, v16, v17")
    I("v_cvt_pk_bf16_f32 v25, v18, v19")
    I("v_cmp_lt_u32 vcc, 15, v0")
    I("v_mov_b32 v6, 0x7f000000")
    I("s_nop 1")
    I("v_cndmask_b32 v4, v4, v6, vcc")
    I("buffer_store_dwordx2 v[24:25], v4, s[24:27], s17 offen")
    if "HT" in FL:
        I("s_cmp_lg_u32 s2, 5")
        I("s_cbranch_scc1 K4_END")
        I("s_load_dwordx2 s[10:11], s[0:1], 88")
        I("s_memrealtime s[90:91]")
        I("s_waitcnt lgkmcnt(0)")
        I("s_sub_u32 s10, s10, 0")
        I("s_subb_u32 s11, s11, 0")
        srd(28, 10, 11, 256)
        I("v_lshlrev_b32 v30, 2, v0")
        I(f"v_add_u32 v31, {TSOFF + 0x40000}, v30")
        I("buffer_load_dword v32, v31, s[40:43], 0 offen sc1")
        I("s_waitcnt vmcnt(0)")
        I("v_mov_b32 v33, s92")
        I("v_cmp_eq_u32 vcc, 6, v0")
        I("s_nop 1")
        I("v_cndmask_b32 v32, v32, v33, vcc")
        I("v_mov_b32 v33, s90")
        I("v_cmp_eq_u32 vcc, 7, v0")
        I("s_nop 1")
        I("v_cndmask_b32 v32, v32, v33, vcc")
        I("v_cmp_gt_u32 vcc, 8, v0")
        I("s_and_saveexec_b64 s[86:87], vcc")
        I("buffer_store_dword v32, v30, s[28:31], 0 offen")
    if "TS" in FL:
        I("s_waitcnt vmcnt(0)")
        ts(3, 3, r=76)
    e("K4_END:")
    I("s_endpgm")
    e("KALL_END:")

e("; @launch kernel=k1_kernel grid=(256,1,1) block=(512,1,1) lds=160256")
e("; @launch kernel=k2_kernel grid=(256,1,1) block=(512,1,1) lds=163840")
e("; @launch kernel=k3_kernel grid=(256,1,1) block=(512,1,1) lds=106496")
e("; @launch kernel=k4_kernel grid=(64,1,1) block=(256,1,1) lds=4096")
e('.amdgcn_target "amdgcn-amd-amdhsa--gfx950"')
e(".text")
k1(); k2(); k3(); k4()
e('.section .rodata,"a"')
for n, v in (("k1_kernel", 256), ("k2_kernel", 256), ("k3_kernel", 256), ("k4_kernel", 80)):
    e(".p2align 6")
    kdesc(n, v)
if "NONT" in FL:
    L = [x.replace(" nt lds", " lds") if x.endswith(" nt lds") else (x[:-3] if x.endswith(" nt") else x) for x in L]
open(sys.argv[1], "w").write("\n".join(L) + "\n")
```
